```python
import torch

def _softmax(x, axis=-1):
    return torch.softmax(x, dim=axis)
def _gelu(x):
    return torch.nn.functional.gelu(x, approximate="tanh")
def _silu(x):
    return torch.nn.functional.silu(x)
def _sigmoid(x):
    return torch.sigmoid(x)
def _layernorm(x, axis=-1, eps=1e-5):
    m = x.mean(dim=axis, keepdim=True)
    v = x.var(dim=axis, keepdim=True, unbiased=False)
    return (x - m) / torch.sqrt(v + eps)
def _scatter_add(tgt, idx, src, axis=0):
    return tgt.clone().index_add_(axis, idx, src)
def _segment_sum(src, seg, n):
    out = torch.zeros((n,) + src.shape[1:], dtype=src.dtype)
    return out.index_add_(0, seg, src)
def _pad(x, pw):
    flat = tuple(v for pair in reversed(pw) for v in pair)
    return torch.nn.functional.pad(x, flat)

kernel_name = 'recurrent_scan__ssm_conv_h3__moe_arch_mod__prompt'

def setup_inputs():

    _w = (lambda a: (lambda t: t.to(torch.bfloat16) if t.is_floating_point() else t)(torch.as_tensor(a)))
    def _A_setup():
        B, S, D = 1, 2048, 640
        ks = 4
        return {
            "q": _w((lambda *s: torch.randn(*s, dtype=torch.bfloat16) * 0.1)(B, S, D)),
            "k": _w((lambda *s: torch.randn(*s, dtype=torch.bfloat16) * 1.6)(B, S, D)),
            "v": _w((lambda *s: torch.randn(*s, dtype=torch.bfloat16) * 1.6)(B, S, D)),
            "shift_k": _w((lambda *s: torch.randn(*s, dtype=torch.bfloat16) * 1.6)(D, ks) * 0.5),
            "ssm_k": _w((lambda *s: torch.randn(*s, dtype=torch.bfloat16) * 1.6)(D, S) * (1.0 / S ** 0.5)),
            "ssm_D": _w((lambda *s: torch.randn(*s, dtype=torch.bfloat16) * 1.6)(D)),
        }
    _A_in = _A_setup()

    def _B_setup():
        B, S, D, F, C = 1, 2048, 640, 1536, 8
        return {
            "x": _w((lambda *s: torch.randn(*s, dtype=torch.bfloat16) * 0.1)(B, S, D)),
            "w_r": _w((lambda *s: torch.randn(*s, dtype=torch.bfloat16) * 1.6)(D)),
            "w_gate": _w((lambda *s: torch.randn(*s, dtype=torch.bfloat16) * 1.6)(D, F)),
            "w_up": _w((lambda *s: torch.randn(*s, dtype=torch.bfloat16) * 1.6)(D, F)),
            "w_down": _w((lambda *s: torch.randn(*s, dtype=torch.bfloat16) * 1.6)(F, D)),
        }
    _B_in = _B_setup()

    return {
        "A_q": _A_in["q"],
        "A_k": _A_in["k"],
        "A_v": _A_in["v"],
        "A_shift_k": _A_in["shift_k"],
        "A_ssm_k": _A_in["ssm_k"],
        "A_ssm_D": _A_in["ssm_D"],
        "B_x": _B_in["x"],
        "B_w_r": _B_in["w_r"],
        "B_w_gate": _B_in["w_gate"],
        "B_w_up": _B_in["w_up"],
        "B_w_down": _B_in["w_down"],
    }

def reference(A_q, A_k, A_v, A_shift_k, A_ssm_k, A_ssm_D, B_x, B_w_r, B_w_gate, B_w_up, B_w_down):
    def _A_ref(q, k, v, shift_k, ssm_k, ssm_D):
        B, S, D = q.shape
        ks = shift_k.shape[-1]
        k_pad = _pad(k, ((0, 0), (ks - 1, 0), (0, 0)))
        k_shift = torch.zeros_like(k)
        for t in range(ks):
            k_shift = k_shift + k_pad[:, t:t + S, :] * shift_k[:, ks - 1 - t][None, None, :]
        kv = k_shift * v
        L = 2 * S
        kv_pad = _pad(kv, ((0, 0), (0, S), (0, 0)))
        kf_pad = _pad(ssm_k, ((0, 0), (0, S)))
        kv_f = (lambda x, axes=(-2,-1): torch.fft.rfft2(x.float(), dim=axes))(kv_pad[:, None, :, :], axes=(1, 2))
        kf_f = (lambda x, axes=(-2,-1): torch.fft.rfft2(x.float(), dim=axes))(kf_pad[:, None, :], axes=(1, 2))
        kf_f = (lambda x, *d: x.permute(*d))(kf_f, 1, 2, 0)
        y_f = kv_f * kf_f[None, :, :, :]
        y = (lambda x, s, axes=(-2,-1): torch.fft.irfft2(x, s=s, dim=axes).to(torch.bfloat16))(y_f, (1, L), axes=(1, 2))[:, 0, :S, :]
        y = y + kv * ssm_D[None, None, :]
        return q * y

    def _B_ref(x, w_r, w_gate, w_up, w_down):
        B, S, D = x.shape
        C = 8
        r = x @ w_r
        idx = torch.argsort(-r, axis=-1)[:, :C]
        idx_e = (lambda x, n, axis: torch.repeat_interleave(x, n, dim=axis))(idx.reshape(B, C, 1), D, axis=2)
        x_sel = (lambda x, i, axis: torch.take_along_dim(x, i, dim=axis))(x, idx_e, axis=1)
        g = _silu(x_sel @ w_gate)
        u = x_sel @ w_up
        y = (g * u) @ w_down
        r_sel = _sigmoid((lambda x, i, axis: torch.take_along_dim(x, i, dim=axis))(r, idx, axis=1))
        y = y * r_sel.reshape(B, C, 1)
        b_off = (torch.arange(B) * S).reshape(B, 1)
        flat_idx = (idx + b_off).reshape(B * C)
        zero = (x * 0.0).reshape(B * S, D)
        upd = _scatter_add(zero, flat_idx, y.reshape(B * C, D), axis=0)
        return x + upd.reshape(B, S, D)

    x = A_q
    xn = _layernorm(x, axis=-1)
    s = _A_ref(xn, A_k, A_v, A_shift_k, A_ssm_k, A_ssm_D)
    g = _silu(_B_ref(xn, B_w_r, B_w_gate, B_w_up, B_w_down))
    return x + s * g
```

```python
import re

REG_RE = re.compile(r'\b([vas])(\d+)\b|\b([vas])\[(\d+):(\d+)\]|\b(vcc|exec|m0|vcc_lo|vcc_hi|exec_lo|exec_hi)\b')

TRANS = ('v_exp_f32', 'v_log_f32', 'v_rcp_f32', 'v_rsq_f32', 'v_sqrt_f32', 'v_sin_f32', 'v_cos_f32', 'v_rcp_iflag_f32')
MFMA_PASS = {
    'v_mfma_f32_16x16x32_bf16': 4, 'v_mfma_f32_16x16x16_bf16': 4, 'v_mfma_f32_16x16x16_bf16_1k': 4,
    'v_mfma_f32_32x32x16_bf16': 8, 'v_mfma_f32_32x32x8_bf16': 8, 'v_mfma_f32_32x32x8_bf16_1k': 8,
}
RAW_D = {2: 5, 4: 8, 8: 12, 16: 20}
OVL_C = {2: 4, 4: 6, 8: 10, 16: 18}
WAR_C = {2: 1, 4: 3, 8: 7, 16: 15}


def regs_of(tok):
    out = set()
    for m in REG_RE.finditer(tok):
        if m.group(1):
            out.add((m.group(1), int(m.group(2))))
        elif m.group(3):
            for i in range(int(m.group(4)), int(m.group(5)) + 1):
                out.add((m.group(3), i))
        else:
            n = m.group(6)
            if n.startswith('vcc'):
                out.add(('x', 'vcc'))
            elif n.startswith('exec'):
                out.add(('x', 'exec'))
            else:
                out.add(('x', 'm0'))
    return out


def split_ops(s):
    ops, depth, cur = [], 0, ''
    for c in s:
        if c == '[':
            depth += 1
        if c == ']':
            depth -= 1
        if c == ',' and depth == 0:
            ops.append(cur.strip())
            cur = ''
        else:
            cur += c
    if cur.strip():
        ops.append(cur.strip())
    return ops


class Ins:
    def __init__(self, text):
        self.text = text
        t = text.split(';')[0].strip()
        self.is_label = t.endswith(':')
        self.is_dir = t.startswith('.') or t == ''
        self.op = ''
        self.w, self.r = set(), set()
        self.kind = 'other'
        self.states = 1
        if self.is_label or self.is_dir:
            self.states = 0
            return
        parts = t.split(None, 1)
        op = self.op = parts[0]
        rest = parts[1] if len(parts) > 1 else ''
        ops = split_ops(rest)
        if ops:
            last = ops[-1].split()
            ops[-1] = last[0] if last else ''
            self.mods = ' '.join(last[1:])
        else:
            self.mods = ''
        R = [regs_of(o) for o in ops]
        self.R = R
        base = re.sub(r'_(e32|e64|dpp|sdwa)$', '', op)
        self.base = base
        self.dpp = op.endswith('_dpp') or 'row_' in self.mods or 'quad_perm' in self.mods or 'wave_' in self.mods
        if op == 's_nop':
            self.states = int(ops[0], 0) + 1
            self.kind = 'salu'
        elif op.startswith('v_mfma'):
            self.kind = 'mfma'
            self.passes = MFMA_PASS[op]
            self.w = R[0]
            self.a, self.b, self.c = R[1], R[2], R[3]
            self.r = R[1] | R[2] | R[3]
        elif op.startswith('v_'):
            self.kind = 'valu'
            if base.startswith('v_cmp'):
                self.w = R[0]
                self.r = set().union(*R[1:])
            elif base in ('v_add_co_u32', 'v_sub_co_u32', 'v_subrev_co_u32', 'v_addc_co_u32', 'v_subb_co_u32', 'v_mad_u64_u32'):
                self.w = R[0] | R[1]
                self.r = set().union(*R[2:])
            elif base.startswith('v_permlane') and 'swap' in base:
                self.w = R[0] | R[1]
                self.r = R[0] | R[1]
            elif base in ('v_fmac_f32', 'v_dot2c_f32_bf16', 'v_writelane_b32', 'v_pk_fmac_f16'):
                self.w = R[0]
                self.r = set().union(*R)
            elif base == 'v_nop':
                pass
            else:
                self.w = R[0]
                self.r = set().union(*R[1:]) if len(R) > 1 else set()
                if self.dpp or op.endswith('_sdwa'):
                    self.r = self.r | R[0]
            self.trans = base in TRANS
            self.dl = base.startswith('v_dot')
        elif op.startswith('buffer_') or op.startswith('global_') or op.startswith('flat_'):
            self.kind = 'vmem'
            lds = ' lds' in (' ' + self.mods) or '_lds_' in op
            if op.startswith('buffer_inv') or op.startswith('buffer_wbl2'):
                pass
            elif 'load' in op and not lds:
                self.w = R[0]
                self.r = set().union(*R[1:])
                if 'd16' in op:
                    self.r |= R[0]
            else:
                self.r = set().union(*R)
                if 'atomic' in op and 'sc0' in self.mods:
                    self.w = R[0]
            self.lds = lds
            self.wide = ('store' in op) and ('x3' in op or 'x4' in op)
            if self.wide:
                self.data = R[0] if op.startswith('buffer_') else R[1]
        elif op.startswith('ds_'):
            self.kind = 'ds'
            if 'read' in op or 'permute' in op or 'swizzle' in op or '_rtn' in op:
                self.w = R[0]
                self.r = set().union(*R[1:])
            else:
                self.r = set().union(*R)
        elif op.startswith('s_'):
            self.kind = 'salu'
            if op.startswith('s_cmp') or op.startswith('s_cbranch') or op in ('s_branch', 's_waitcnt', 's_barrier', 's_endpgm', 's_setprio', 's_sleep'):
                self.r = set().union(*R) if R else set()
            else:
                self.w = R[0] if R else set()
                self.r = set().union(*R[1:]) if len(R) > 1 else set()
                if 'saveexec' in op:
                    self.w = self.w | {('x', 'exec')}


def isv(regs):
    return {r for r in regs if r[0] in 'va'}


def iss(regs):
    return {r for r in regs if r[0] == 's' or r == ('x', 'vcc')}


def need(p, c):
    n = 0
    if p.kind == 'valu':
        pw_v, pw_s = isv(p.w), iss(p.w)
        if c.kind == 'mfma' and pw_v & c.r:
            n = max(n, 2)
        if c.kind == 'valu':
            if c.dpp and pw_v & isv(c.r):
                n = max(n, 2)
            if c.base in ('v_readlane_b32', 'v_readfirstlane_b32') and pw_v & c.R[1]:
                n = max(n, 1)
            if c.base.startswith('v_permlane') and pw_v & c.r:
                n = max(n, 2)
            if p.trans and not c.trans and pw_v & c.r:
                n = max(n, 1)
            if pw_s & c.r:
                n = max(n, 2)
            if c.base in ('v_readlane_b32', 'v_writelane_b32') and len(c.R) > 2 and pw_s & c.R[2]:
                n = max(n, 4)
            if p.op.endswith('_sdwa') and 'dst_sel:DWORD' not in p.mods and pw_v & (c.r | c.w):
                n = max(n, 1)
        if c.kind == 'vmem' and pw_s & c.r:
            n = max(n, 5)
        if p.dl and pw_v & (c.r | c.w):
            same = c.kind == 'valu' and c.base == p.base
            if same and c.base == 'v_dot2c_f32_bf16':
                hit_ab = pw_v & set().union(*c.R[1:])
                n = max(n, 3 if hit_ab else 0)
            elif same:
                hit_ab = pw_v & (c.R[1] | c.R[2])
                hit_w = pw_v & c.w and not (pw_v & c.R[3])
                n = max(n, 3 if (hit_ab or hit_w) else 0)
            else:
                n = max(n, 3)
    if p.kind == 'mfma':
        if c.kind == 'mfma':
            if p.w & (c.a | c.b):
                n = max(n, RAW_D[p.passes])
            if p.w & c.c:
                if p.w == c.c and p.passes == c.passes:
                    n = max(n, 2 if p.passes == 2 else 0)
                else:
                    n = max(n, OVL_C[p.passes])
            elif p.w & c.w:
                n = max(n, RAW_D[p.passes])
        elif c.kind in ('valu', 'vmem', 'ds'):
            if p.w & (c.r | c.w):
                n = max(n, RAW_D[p.passes])
            if c.kind == 'valu' and p.c & c.w:
                n = max(n, WAR_C[p.passes])
    if p.kind == 'vmem' and getattr(p, 'wide', False):
        if p.data & c.w:
            n = max(n, 2)
    if p.kind == 'salu' and ('x', 'm0') in p.w:
        if (c.kind == 'vmem' and getattr(c, 'lds', False)) or (c.kind == 'ds' and 'addtid' in c.op):
            n = max(n, 1)
    return n


def hazard_pass(lines, report=None):
    ins = [Ins(l) for l in lines]
    labels = {}
    out = []
    pending = {}

    def window(seq):
        w, d = [], 0
        for q in reversed(seq):
            if q.states == 0:
                continue
            w.append((q, d))
            d += q.states
            if d > 24:
                break
        return w

    alt = []
    for c in ins:
        if c.is_label:
            name = c.text.split(';')[0].strip()[:-1]
            labels[name] = len(out)
            for snap in pending.pop(name, []):
                alt.append([snap, 0])
            out.append(c)
            continue
        if c.is_dir:
            out.append(c)
            continue
        req = 0
        for q, d in window(out):
            req = max(req, need(q, c) - d)
        for snap, dist in alt:
            for q, d in snap:
                req = max(req, need(q, c) - d - dist)
        while req > 0:
            k = min(req, 16)
            nop = Ins(f's_nop {k-1}')
            out.append(nop)
            for a in alt:
                a[1] += k
            if report is not None:
                report.append((k, c.text))
            req -= k
        out.append(c)
        for a in alt:
            a[1] += c.states
        alt = [a for a in alt if a[1] <= 24]
        if c.op.startswith('s_cbranch') or c.op == 's_branch':
            tgt = c.text.split(';')[0].split()[-1]
            if tgt in labels:
                seq = out[labels[tgt]:]
                win = window(out)
                dist = 0
                for q2 in seq:
                    if q2.states == 0:
                        continue
                    for q, d in win:
                        if need(q, q2) - d - dist > 0:
                            raise RuntimeError(f'loop-carried hazard: {q.text} -> {q2.text}')
                    dist += q2.states
                    if dist > 24:
                        break
            else:
                pending.setdefault(tgt, []).append(window(out))
    return [q.text for q in out]


class Asm:
    def __init__(self):
        self.lines = []

    def __call__(self, s):
        for l in s.strip('\n').split('\n'):
            l = l.strip()
            if l:
                self.lines.append(l)

    def label(self, n):
        self.lines.append(n + ':')

    def srd(self, d, base, nbytes, off=0):
        if off:
            self(f's_add_u32 s{d}, s{base}, {off}\ns_addc_u32 s{d+1}, s{base+1}, 0')
        else:
            self(f's_mov_b32 s{d}, s{base}\ns_mov_b32 s{d+1}, s{base+1}')
        self(f's_mov_b32 s{d+2}, {nbytes}\ns_mov_b32 s{d+3}, 0x20000')

    def text(self, report=None):
        body = hazard_pass(self.lines, report)
        return '\n'.join((l if l.endswith(':') else '    ' + l) for l in body) + '\n'


KD = """.p2align 6
.amdhsa_kernel {name}
  .amdhsa_next_free_vgpr {vgpr}
  .amdhsa_next_free_sgpr {sgpr}
  .amdhsa_accum_offset {acc}
  .amdhsa_group_segment_fixed_size 0
  .amdhsa_kernarg_size 112
  .amdhsa_user_sgpr_count 2
  .amdhsa_user_sgpr_kernarg_segment_ptr 1
  .amdhsa_system_sgpr_workgroup_id_x 1
  .amdhsa_float_denorm_mode_32 3
.end_amdhsa_kernel
"""


def max_regs(text):
    mv = ms = ma = -1
    for l in text.split('\n'):
        l = l.split(';')[0]
        for k, i in regs_of(l):
            if k == 'v':
                mv = max(mv, i)
            elif k == 's':
                ms = max(ms, i)
            elif k == 'a':
                ma = max(ma, i)
    return mv + 1, ms + 1, ma + 1


def module(header, kernels, launches):
    s = header
    for n, g, b, l in launches:
        s += f'; @launch kernel={n} grid=({g},1,1) block=({b},1,1) lds={l}\n'
    s += '.amdgcn_target "amdgcn-amd-amdhsa--gfx950"\n.text\n.p2align 12\n'
    for n, body in kernels:
        s += f'.globl {n}\n.p2align 8\n.type {n},@function\n{n}:\n{body}'
    s += '.section .rodata,"a"\n'
    for n, body in kernels:
        nv, ns, na = max_regs(body)
        acc = max(4, (nv + 3) // 4 * 4)
        tot = acc + na if na else max(nv, 1)
        s += KD.format(name=n, vgpr=tot, sgpr=max(ns, 8), acc=acc)
    return s
```

```python
import sys
from asmlib import *

HDR = open('recurrent_scan__ssm_conv_h3__moe_arch_mod__prompt.s.ref').read().split('; Override launch')[0]

NB = 2048 * 1280
WS_UR = 0
WS_Y2 = 4 << 20
WS_ST = 8 << 20
WS_KEY = WS_ST + (64 << 10)
WS_IDX = WS_ST + (128 << 10)
WS_P = 9 << 20
LOG2E = 0x3fb8aa3b
NLOG2E = 0xbfb8aa3b
INV640 = 0x3acccccd
EPS = 0x3727c5ac


def row_reduce_add(a, v, t, width32=True):
    for sh in (8, 4, 2, 1):
        a(f'v_add_f32_dpp v{v}, v{v}, v{v} row_ror:{sh} row_mask:0xf bank_mask:0xf')
    if width32:
        a(f'v_mov_b32 v{t}, v{v}')
        a(f'v_permlane16_swap_b32 v{v}, v{t}')
        a(f'v_add_f32 v{v}, v{v}, v{t}')


def rnd(a, d, s):
    a(f'v_cvt_pk_bf16_f32 v{d}, v{s}, v{s}')
    a(f'v_and_b32 v{d}, 0xffff0000, v{d}')


def k1():
    a = Asm()
    a(f'''
    s_cmp_ge_u32 s2, 256
    s_cbranch_scc1 K1_END
    s_load_dwordx4 s[4:7], s[0:1], 0
    s_load_dwordx4 s[8:11], s[0:1], 16
    s_load_dwordx2 s[12:13], s[0:1], 56
    s_load_dwordx2 s[14:15], s[0:1], 104
    v_lshrrev_b32 v1, 6, v0
    v_readfirstlane_b32 s3, v1
    s_mov_b32 s40, 0x3f803f80
    s_cmp_ge_u32 s3, 5
    s_cbranch_scc1 K1_LN
    ''')
    a('''
    s_and_b32 s16, s2, 7
    s_lshr_b32 s17, s2, 3
    s_mul_i32 s16, s16, 80
    s_lshl_b32 s17, s17, 6
    v_lshrrev_b32 v1, 3, v0
    v_and_b32 v2, 7, v0
    v_lshl_add_u32 v1, v1, 1, s16
    v_lshl_add_u32 v2, v2, 3, s17
    v_mul_u32_u24 v3, 1280, v2
    v_lshl_add_u32 v3, v1, 1, v3
    v_subrev_u32 v4, 3840, v3
    v_cmp_eq_u32 vcc, 0, v2
    v_mov_b32 v5, 0x80000000
    v_cndmask_b32 v4, v4, v5, vcc
    v_lshlrev_b32 v5, 3, v1
    v_sub_u32 v6, 2040, v2
    v_lshlrev_b32 v6, 1, v6
    v_lshl_add_u32 v6, v1, 12, v6
    s_mov_b32 s18, 5120
    s_waitcnt lgkmcnt(0)
    ''')
    a.srd(20, 6, NB)
    a.srd(24, 8, NB)
    a.srd(28, 10, 640 * 8)
    a.srd(32, 14, NB, WS_UR)
    KK, VV, W = 8, 20, 28
    a(f'buffer_load_dwordx4 v[{W}:{W+3}], v5, s[28:31], 0 offen')
    for i in range(3):
        a(f'buffer_load_dword v{KK+i}, v4, s[20:23], 0 offen offset:{1280*i}')
    for i in range(8):
        so = '0' if i < 4 else 's18'
        a(f'buffer_load_dword v{KK+3+i}, v3, s[20:23], {so} offen offset:{1280*(i%4)}')
    for i in range(8):
        so = '0' if i < 4 else 's18'
        a(f'buffer_load_dword v{VV+i}, v3, s[24:27], {so} offen offset:{1280*(i%4)}')
    WF = 32
    KF = 40
    a('s_waitcnt vmcnt(19)')
    for hf in range(2):
        for j in range(4):
            src = W + 2 * hf + j // 2
            if j % 2 == 0:
                a(f'v_lshlrev_b32 v{WF+4*hf+j}, 16, v{src}')
            else:
                a(f'v_and_b32 v{WF+4*hf+j}, 0xffff0000, v{src}')
    a('s_waitcnt vmcnt(8)')
    for i in range(11):
        a(f'v_lshlrev_b32 v{KF+i}, 16, v{KK+i}')
        a(f'v_and_b32 v{KF+11+i}, 0xffff0000, v{KK+i}')
    S = 64
    P = 80
    E = [(hf, t) for t in range(8) for hf in range(2)]
    idx = lambda hf, t: 8 * hf + t
    for hf, t in E:
        a(f'v_mul_f32 v{S+idx(hf,t)}, v{KF+11*hf+t}, v{WF+4*hf+3}')
    for j in (2, 1, 0):
        for hf, t in E:
            a(f'v_mul_f32 v{P+idx(hf,t)}, v{KF+11*hf+t+3-j}, v{WF+4*hf+j}')
        for hf, t in E:
            a(f'v_cvt_pk_bf16_f32 v{S+idx(hf,t)}, v{S+idx(hf,t)}, v{P+idx(hf,t)}')
        for hf, t in E:
            a(f'v_dot2_f32_bf16 v{S+idx(hf,t)}, v{S+idx(hf,t)}, s40, 0')
    for t in range(8):
        a(f'v_cvt_pk_bf16_f32 v{P+t}, v{S+t}, v{S+8+t}')
    a('s_waitcnt vmcnt(0)')
    for t in range(8):
        a(f'v_lshlrev_b32 v{S+t}, 16, v{P+t}')
        a(f'v_and_b32 v{S+8+t}, 0xffff0000, v{P+t}')
        a(f'v_lshlrev_b32 v{KF+t}, 16, v{VV+t}')
        a(f'v_and_b32 v{KF+8+t}, 0xffff0000, v{VV+t}')
    for hf, t in E:
        a(f'v_mul_f32 v{S+idx(hf,t)}, v{S+idx(hf,t)}, v{KF+idx(hf,t)}')
    for hf in range(2):
        for m in range(4):
            a(f'v_cvt_pk_bf16_f32 v{P+4*hf+m}, v{S+8*hf+7-2*m}, v{S+8*hf+6-2*m}')
    a(f'''
    s_mov_b32 s19, 4096
    buffer_store_dwordx4 v[{P}:{P+3}], v6, s[32:35], 0 offen
    buffer_store_dwordx4 v[{P+4}:{P+7}], v6, s[32:35], s19 offen
    s_endpgm
    ''')
    a.label('K1_LN')
    a('''
    s_sub_u32 s3, s3, 5
    s_lshl_b32 s16, s2, 3
    s_lshl_b32 s3, s3, 1
    s_add_u32 s16, s16, s3
    v_and_b32 v1, 63, v0
    v_lshrrev_b32 v2, 5, v1
    v_add_u32 v2, s16, v2
    v_and_b32 v1, 31, v1
    v_lshlrev_b32 v3, 4, v1
    v_lshlrev_b32 v4, 3, v1
    v_mul_u32_u24 v5, 1280, v2
    v_add_u32 v6, v5, v3
    v_add_u32 v7, v5, v4
    s_waitcnt lgkmcnt(0)
    ''')
    a.srd(20, 4, NB)
    a.srd(24, 12, 1280)
    a.srd(28, 14, 2048 * 8, WS_ST)
    a.srd(32, 14, 2048 * 4, WS_KEY)
    X, WR, XF = 8, 20, 32
    a(f'''
    buffer_load_dwordx4 v[{X}:{X+3}], v6, s[20:23], 0 offen
    buffer_load_dwordx4 v[{X+4}:{X+7}], v6, s[20:23], 0 offen offset:512
    buffer_load_dwordx2 v[{X+8}:{X+9}], v7, s[20:23], 0 offen offset:1024
    buffer_load_dwordx4 v[{WR}:{WR+3}], v3, s[24:27], 0 offen
    buffer_load_dwordx4 v[{WR+4}:{WR+7}], v3, s[24:27], 0 offen offset:512
    buffer_load_dwordx2 v[{WR+8}:{WR+9}], v4, s[24:27], 0 offen offset:1024
    s_mov_b32 s41, {INV640}
    s_waitcnt vmcnt(3)
    v_dot2_f32_bf16 v60, v{X}, s40, 0
    ''')
    for i in range(1, 10):
        a(f'v_dot2_f32_bf16 v60, v{X+i}, s40, v60')
    for i in range(10):
        a(f'v_lshlrev_b32 v{XF+2*i}, 16, v{X+i}')
        a(f'v_and_b32 v{XF+2*i+1}, 0xffff0000, v{X+i}')
    row_reduce_add(a, 60, 61)
    a('v_mul_f32 v60, s41, v60')
    rnd(a, 62, 60)
    a('v_sub_f32 v60, v60, v62')
    for i in range(20):
        a(f'v_sub_f32 v{XF+i}, v{XF+i}, v62')
    a(f'v_mul_f32 v64, v{XF}, v{XF}\nv_mul_f32 v65, v{XF+1}, v{XF+1}')
    for i in range(2, 20):
        a(f'v_fmac_f32 v{64+(i&1)}, v{XF+i}, v{XF+i}')
    a('v_add_f32 v64, v64, v65')
    for i in range(10):
        a(f'v_cvt_pk_bf16_f32 v{X+i}, v{XF+2*i}, v{XF+2*i+1}')
    row_reduce_add(a, 64, 61)
    a('''
    v_mul_f32 v64, s41, v64
    v_fma_f32 v64, -v60, v60, v64
    v_max_f32 v64, 0, v64
    ''')
    rnd(a, 64, 64)
    a(f'v_add_f32 v64, {EPS}, v64')
    rnd(a, 64, 64)
    a('v_sqrt_f32 v64, v64')
    rnd(a, 64, 64)
    a('v_rcp_f32 v63, v64')
    for i in range(10):
        a(f'v_lshlrev_b32 v{XF+2*i}, 16, v{X+i}')
        a(f'v_and_b32 v{XF+2*i+1}, 0xffff0000, v{X+i}')
    for i in range(20):
        a(f'v_mul_f32 v{XF+i}, v{XF+i}, v63')
    for i in range(10):
        a(f'v_cvt_pk_bf16_f32 v{X+i}, v{XF+2*i}, v{XF+2*i+1}')
    a('s_waitcnt vmcnt(0)')
    a(f'v_dot2_f32_bf16 v66, v{X}, v{WR}, 0')
    for i in range(1, 10):
        a(f'v_dot2_f32_bf16 v66, v{X+i}, v{WR+i}, v66')
    row_reduce_add(a, 66, 61)
    a('''
    v_add_f32 v66, 0, v66
    v_cvt_pk_bf16_f32 v66, v66, v66
    v_ashrrev_i32 v67, 31, v66
    v_or_b32 v67, 0x80000000, v67
    v_xor_b32 v66, v66, v67
    v_and_b32 v66, 0xffff0000, v66
    v_sub_u32 v67, 0xffff, v2
    v_or_b32 v66, v66, v67
    v_lshlrev_b32 v8, 3, v2
    v_lshlrev_b32 v9, 2, v2
    v_cmp_eq_u32 vcc, 0, v1
    s_and_saveexec_b64 s[36:37], vcc
    buffer_store_dwordx2 v[62:63], v8, s[28:31], 0 offen
    buffer_store_dword v66, v9, s[32:35], 0 offen
    ''')
    a.label('K1_END')
    a('s_endpgm')
    return a


H0_OFF, H1_OFF, U_OFF, CW_LDS = 0, 4160, 8288, 12864


def k2_conv(a):
    a(f'''
    s_mul_i32 s16, s16, 80
    s_lshl_b32 s17, s17, 2
    s_add_u32 s16, s16, s17
    s_add_u32 s16, s16, s3
    s_lshl_b32 s17, s16, 12
    s_mul_i32 s18, s3, {CW_LDS}
    v_and_b32 v1, 63, v0
    v_lshlrev_b32 v2, 4, v1
    s_waitcnt lgkmcnt(0)
    ''')
    a.srd(20, 8, NB)
    a.srd(24, 14, NB, WS_UR)
    a.srd(28, 14, NB, WS_Y2)
    a(f'''
    s_lshl_b32 s19, s16, 1
    s_and_b32 s19, s19, 0xfffffffc
    s_add_u32 s10, s10, s19
    s_addc_u32 s11, s11, 0
    s_load_dword s38, s[10:11], 0
    ''')
    HD, HX, UD = 100, 116, 120
    for m in range(4):
        a(f'buffer_load_dwordx4 v[{HD+4*m}:{HD+4*m+3}], v2, s[20:23], s17 offen offset:{1024*m}')
        a(f'buffer_load_dword v{HX+m}, v2, s[20:23], s17 offen offset:{1024*m+16}')
    for m in range(4):
        a(f'buffer_load_dwordx4 v[{UD+4*m}:{UD+4*m+3}], v2, s[24:27], s17 offen offset:{1024*m}')
    a(f'''
    v_add_u32 v3, s18, v2
    v_mov_b32 v4, 0
    v_mov_b32 v5, 0
    v_mov_b32 v6, 0
    v_mov_b32 v7, 0
    v_cmp_gt_u32 vcc, 30, v1
    s_and_saveexec_b64 s[36:37], vcc
    ds_write_b128 v3, v[4:7] offset:{U_OFF+4096}
    v_cmp_gt_u32 vcc, 2, v1
    s_and_b64 exec, exec, vcc
    ds_write_b128 v3, v[4:7] offset:{H0_OFF}
    ds_write_b128 v3, v[4:7] offset:{H1_OFF}
    s_mov_b64 exec, s[36:37]
    ''')
    for i in range(32):
        a(f'v_mov_b32 v{8+i}, 0')
    a(f'''
    v_and_b32 v40, 15, v1
    v_lshrrev_b32 v41, 4, v1
    v_and_b32 v42, 1, v40
    v_add_u32 v43, v40, v42
    v_lshlrev_b32 v43, 1, v43
    v_lshl_add_u32 v43, v41, 4, v43
    v_xor_b32 v42, 1, v42
    v_mul_u32_u24 v42, {H1_OFF}, v42
    v_add3_u32 v43, v43, v42, s18
    v_add_u32 v44, 1024, v43
    v_add_u32 v45, 2048, v43
    v_add_u32 v46, 3072, v43
    v_lshlrev_b32 v47, 5, v40
    v_sub_u32 v47, {U_OFF+480}, v47
    v_lshl_add_u32 v47, v41, 4, v47
    v_add_u32 v47, s18, v47
    ''')
    for m in range(4):
        a(f's_waitcnt vmcnt({10-2*m})')
        a(f'ds_write_b128 v3, v[{HD+4*m}:{HD+4*m+3}] offset:{H0_OFF+32+1024*m}')
        T = 48 + 4 * (m & 1)
        for d in range(4):
            hi = HD + 4 * m + d + 1 if d < 3 else HX + m
            a(f'v_alignbyte_b32 v{T+d}, v{hi}, v{HD+4*m+d}, 2')
        a(f'ds_write_b128 v3, v[{T}:{T+3}] offset:{H1_OFF+32+1024*m}')
        if m == 0:
            a(f'''
            v_lshlrev_b32 v56, 16, v{HD}
            s_mov_b64 exec, 1
            ds_write_b32 v3, v56 offset:{H1_OFF+28}
            s_mov_b64 exec, -1
            ''')
    for m in range(4):
        a(f's_waitcnt vmcnt({3-m})')
        a(f'ds_write_b128 v3, v[{UD+4*m}:{UD+4*m+3}] offset:{U_OFF+1024*m}')
    ACC = 8
    AF = [64, 128]
    GF = [96, 160]

    def loads(rho):
        L = []
        s = rho & 1
        for g in range(8):
            L.append(f'ds_read_b128 v[{GF[s]+4*g}:{GF[s]+4*g+3}], v47 offset:{512*(7-g)+64*rho}')
            o = 128 * (g & 1) + 16 * rho
            r = AF[s] + 4 * g
            L.append(f'ds_read2_b32 v[{r}:{r+1}], v{43+g//2} offset0:{o} offset1:{o+1}')
            L.append(f'ds_read2_b32 v[{r+2}:{r+3}], v{43+g//2} offset0:{o+2} offset1:{o+3}')
        return L
    a('s_waitcnt lgkmcnt(0)')
    for l in loads(0):
        a(l)
    pairs = [(g, d) for mx in range(8) for (g, d) in ([(mx, d) for d in range(mx)] + [(g, mx) for g in range(mx + 1)]) if g + d <= 7]
    assert len(pairs) == 36
    for rho in range(8):
        s = rho & 1
        a('s_waitcnt lgkmcnt(0)')
        L = loads(rho + 1) if rho < 7 else []
        for n, (g, d) in enumerate(pairs):
            i = g + d
            a(f'v_mfma_f32_16x16x32_bf16 v[{ACC+4*i}:{ACC+4*i+3}], v[{AF[s]+4*g}:{AF[s]+4*g+3}], v[{GF[s]+4*d}:{GF[s]+4*d+3}], v[{ACC+4*i}:{ACC+4*i+3}]')
            if L:
                a(L.pop(0))
        assert not L
    a(f'''
    v_lshlrev_b32 v48, 5, v40
    v_lshl_add_u32 v48, v41, 3, v48
    v_sub_u32 v49, {U_OFF+2*2044-3584}, v48
    v_add_u32 v49, s18, v49
    ''')
    UU = 64
    for i in range(8):
        a(f'ds_read_b64 v[{UU+2*i}:{UU+2*i+1}], v49 offset:{512*(7-i)}')
    a('''
    s_and_b32 s39, s16, 1
    s_cmp_eq_u32 s39, 1
    s_cselect_b32 s39, 16, 0
    s_lshr_b32 s38, s38, s39
    s_and_b32 s38, s38, 0xffff
    s_lshl_b32 s39, s38, 16
    s_mov_b32 s40, 0x3f803f80
    s_waitcnt lgkmcnt(0)
    ''')
    T = 96
    for i in range(8):
        for r in range(4):
            src = UU + 2 * i + (1 if r < 2 else 0)
            sel = 's39' if r % 2 == 0 else 's38'
            a(f'v_dot2_f32_bf16 v{T+4*i+r}, v{src}, {sel}, 0')
    for i in range(8):
        for r in range(4):
            a(f'v_cvt_pk_bf16_f32 v{T+4*i+r}, v{T+4*i+r}, v{ACC+4*i+r}')
    for i in range(8):
        for r in range(4):
            a(f'v_dot2_f32_bf16 v{T+4*i+r}, v{T+4*i+r}, s40, 0')
    for i in range(8):
        a(f'v_cvt_pk_bf16_f32 v{UU+2*i}, v{T+4*i}, v{T+4*i+1}')
        a(f'v_cvt_pk_bf16_f32 v{UU+2*i+1}, v{T+4*i+2}, v{T+4*i+3}')
        a(f'buffer_store_dwordx2 v[{UU+2*i}:{UU+2*i+1}], v48, s[28:31], s17 offen offset:{512*i}')
    a('s_endpgm')


SORT8 = [(0, 1), (2, 3), (4, 5), (6, 7), (0, 2), (1, 3), (4, 6), (5, 7), (1, 2), (5, 6), (0, 4), (3, 7), (1, 5), (2, 6), (1, 4), (3, 6), (2, 4), (3, 5), (3, 4)]


def k2_ffn(a):
    a(f'''
    s_sub_u32 s17, s17, 20
    s_lshl_b32 s17, s17, 3
    s_add_u32 s16, s16, s17
    s_load_dwordx4 s[44:47], s[0:1], 64
    s_load_dwordx2 s[48:49], s[0:1], 80
    v_and_b32 v1, 63, v0
    v_and_b32 v2, 15, v1
    v_lshrrev_b32 v3, 4, v1
    s_waitcnt lgkmcnt(0)
    ''')
    a.srd(20, 14, 2048 * 4, WS_KEY)
    a.srd(24, 4, NB)
    a.srd(28, 14, 2048 * 8, WS_ST)
    a.srd(32, 48, 1536 * 1280)
    a.srd(52, 14, 96 * 8 * 2560, WS_P)
    a.srd(56, 14, 64, WS_IDX)
    KEY = 8
    a(f'''
    v_lshlrev_b32 v4, 5, v0
    buffer_load_dwordx4 v[{KEY}:{KEY+3}], v4, s[20:23], 0 offen
    buffer_load_dwordx4 v[{KEY+4}:{KEY+7}], v4, s[20:23], 0 offen offset:16
    ''')
    a(f'''
    v_cmp_gt_u32 vcc, 8, v2
    v_mov_b32 v4, s46
    v_mov_b32 v5, s47
    v_mov_b32 v6, s44
    v_mov_b32 v7, s45
    v_cndmask_b32 v4, v4, v6, vcc
    v_cndmask_b32 v5, v5, v7, vcc
    s_mul_i32 s18, s3, 160
    v_lshl_add_u32 v6, v3, 3, s18
    v_mul_u32_u24 v6, 3072, v6
    v_and_b32 v7, 7, v2
    v_lshlrev_b32 v7, 2, v7
    s_lshl_b32 s19, s16, 5
    v_add3_u32 v6, v6, v7, s19
    v_add_co_u32 v4, vcc, v4, v6
    v_addc_co_u32 v5, vcc, 0, v5, vcc
    ''')
    WG = 64
    for c in range(5):
        for j in range(0, 8, 2):
            a(f'global_load_dword v{WG+8*c+j}, v[4:5], off')
            a(f'global_load_dword v{WG+8*c+j+1}, v[4:5], off offset:3072')
            step = 6144 if j < 6 else 6144 + 24 * 3072
            if not (c == 4 and j == 6):
                a(f'v_add_co_u32 v4, vcc, {step}, v4')
                a(f'v_addc_co_u32 v5, vcc, 0, v5, vcc')
    WD = 104
    a(f'''
    s_lshl_b32 s18, s16, 4
    v_lshl_add_u32 v6, v3, 2, s18
    v_mul_u32_u24 v6, 1280, v6
    v_lshl_add_u32 v6, v2, 2, v6
    s_mul_i32 s18, s3, 320
    v_add_u32 v6, s18, v6
    ''')
    for gg in range(5):
        for j in range(4):
            off = 1280 * j + 64 * gg
            so = 0 if off < 4096 else 64
            a(f'buffer_load_dword v{WD+4*gg+j}, v6, s[32:35], {so} offen offset:{off-so}')
    a('s_waitcnt vmcnt(60)')
    for (i, j) in SORT8:
        a(f'v_max_u32 v16, v{KEY+i}, v{KEY+j}')
        a(f'v_min_u32 v{KEY+j}, v{KEY+i}, v{KEY+j}')
        a(f'v_mov_b32 v{KEY+i}, v16')
    a('v_mov_b32 v18, 0')
    for rd in range(8):
        a(f'v_max_u32_dpp v16, v{KEY}, v{KEY} row_ror:8 row_mask:0xf bank_mask:0xf')
        for sh in (4, 2, 1):
            a(f'v_max_u32_dpp v16, v16, v16 row_ror:{sh} row_mask:0xf bank_mask:0xf')
        a('''
        v_readlane_b32 s60, v16, 0
        v_readlane_b32 s61, v16, 16
        v_readlane_b32 s62, v16, 32
        v_readlane_b32 s63, v16, 48
        s_max_u32 s60, s60, s61
        s_max_u32 s62, s62, s63
        s_max_u32 s60, s60, s62
        ''')
        a(f'v_writelane_b32 v18, s60, {rd}')
        if rd < 7:
            a(f'v_cmp_eq_u32 vcc, s60, v{KEY}')
            for i in range(7 - rd):
                a(f'v_cndmask_b32 v{KEY+i}, v{KEY+i}, v{KEY+i+1}, vcc')
    a(f'''
    s_lshl_b32 s18, s3, 5
    v_lshl_add_u32 v19, v1, 2, s18
    s_mov_b64 exec, 0xff
    ds_write_b32 v19, v18
    s_mov_b64 exec, -1
    s_waitcnt lgkmcnt(0)
    s_barrier
    v_and_b32 v19, 31, v1
    v_lshlrev_b32 v19, 2, v19
    v_mov_b32 v20, 0
    ds_read_b32 v18, v19
    ''')
    for i in range(8):
        a(f'ds_read_b128 v[{24+4*i}:{27+4*i}], v20 offset:{16*i}')
    a('v_mov_b32 v21, 0\ns_waitcnt lgkmcnt(0)')
    for i in range(32):
        pair = f's[{60+2*(i%4)}:{61+2*(i%4)}]'
        a(f'v_cmp_gt_u32 {pair}, v{24+i}, v18')
        if i >= 2:
            q = f's[{60+2*((i-2)%4)}:{61+2*((i-2)%4)}]'
            a(f'v_addc_co_u32 v21, vcc, 0, v21, {q}')
    for i in (30, 31):
        a(f'v_addc_co_u32 v21, vcc, 0, v21, s[{60+2*(i%4)}:{61+2*(i%4)}]')
    a(f'''
    s_lshl_b32 s18, s3, 5
    s_add_u32 s18, s18, 128
    v_lshl_add_u32 v19, v21, 2, s18
    v_cmp_gt_u32 vcc, 8, v21
    s_and_saveexec_b64 s[36:37], vcc
    ds_write_b32 v19, v18
    s_mov_b64 exec, -1
    v_and_b32 v19, 7, v1
    v_lshl_add_u32 v19, v19, 2, s18
    s_waitcnt lgkmcnt(0)
    ds_read_b32 v18, v19
    s_waitcnt lgkmcnt(0)
    v_and_b32 v19, 0xffff, v18
    v_sub_u32 v19, 0xffff, v19
    v_mul_u32_u24 v20, 1280, v19
    s_mul_i32 s18, s3, 320
    v_lshl_add_u32 v21, v3, 4, s18
    v_add_u32 v20, v20, v21
    v_lshlrev_b32 v21, 3, v19
    buffer_load_dwordx2 v[22:23], v21, s[28:31], 0 offen
    ''')
    XA = 24
    for c in range(5):
        a(f'buffer_load_dwordx4 v[{XA+4*c}:{XA+4*c+3}], v20, s[24:27], 0 offen offset:{64*c}')
    a(f'''
    s_or_b32 s18, s16, s3
    s_cmp_lg_u32 s18, 0
    s_cbranch_scc1 K2_NOIDX
    v_ashrrev_i32 v44, 31, v18
    v_not_b32 v44, v44
    v_or_b32 v44, 0x80000000, v44
    v_xor_b32 v44, v44, v18
    v_and_b32 v44, 0xffff0000, v44
    v_mul_f32 v44, {NLOG2E}, v44
    v_exp_f32 v44, v44
    v_add_f32 v44, 1.0, v44
    v_rcp_f32 v44, v44
    ''')
    rnd(a, 44, 44)
    a(f'''
    v_lshlrev_b32 v45, 2, v1
    s_mov_b64 exec, 0xff
    buffer_store_dword v19, v45, s[56:59], 0 offen
    buffer_store_dword v44, v45, s[56:59], 0 offen offset:32
    s_mov_b64 exec, -1
    ''')
    a.label('K2_NOIDX')
    a('s_mov_b32 s41, 0x05040100\ns_mov_b32 s42, 0x07060302')
    BE, BO = 128, 148
    a('s_waitcnt vmcnt(0)')
    for c in range(5):
        for d in range(4):
            a(f'v_perm_b32 v{BE+4*c+d}, v{WG+8*c+2*d+1}, v{WG+8*c+2*d}, s41')
            a(f'v_perm_b32 v{BO+4*c+d}, v{WG+8*c+2*d+1}, v{WG+8*c+2*d}, s42')
    XF = 64
    for i in range(20):
        a(f'v_lshlrev_b32 v{XF+2*i}, 16, v{XA+i}')
        a(f'v_and_b32 v{XF+2*i+1}, 0xffff0000, v{XA+i}')
    for i in range(40):
        a(f'v_sub_f32 v{XF+i}, v{XF+i}, v22')
    for i in range(20):
        a(f'v_cvt_pk_bf16_f32 v{XA+i}, v{XF+2*i}, v{XF+2*i+1}')
    for i in range(20):
        a(f'v_lshlrev_b32 v{XF+2*i}, 16, v{XA+i}')
        a(f'v_and_b32 v{XF+2*i+1}, 0xffff0000, v{XA+i}')
    for i in range(40):
        a(f'v_mul_f32 v{XF+i}, v{XF+i}, v23')
    for i in range(20):
        a(f'v_cvt_pk_bf16_f32 v{XA+i}, v{XF+2*i}, v{XF+2*i+1}')
    for c in range(5):
        ce = '0' if c == 0 else 'v[48:51]'
        co = '0' if c == 0 else 'v[52:55]'
        a(f'v_mfma_f32_16x16x32_bf16 v[48:51], v[{XA+4*c}:{XA+4*c+3}], v[{BE+4*c}:{BE+4*c+3}], {ce}')
        a(f'v_mfma_f32_16x16x32_bf16 v[52:55], v[{XA+4*c}:{XA+4*c+3}], v[{BO+4*c}:{BO+4*c+3}], {co}')
    a(f'''
    s_lshl_b32 s18, s3, 10
    s_add_u32 s18, s18, 512
    v_lshl_add_u32 v19, v1, 4, s18
    s_mov_b32 exec_lo, -1
    s_mov_b32 exec_hi, 0
    ds_write_b128 v19, v[48:51]
    ds_write_b128 v19, v[52:55] offset:512
    s_mov_b64 exec, -1
    s_waitcnt lgkmcnt(0)
    s_barrier
    ''')
    a(f'''
    v_and_b32 v19, 7, v1
    v_lshrrev_b32 v20, 2, v19
    v_and_b32 v19, 3, v19
    v_lshlrev_b32 v19, 2, v19
    v_lshl_add_u32 v19, v20, 8, v19
    v_lshl_add_u32 v19, v3, 5, v19
    ''')
    G = 64
    for j in range(4):
        for mtx in range(2):
            for w in range(4):
                off = 512 + w * 1024 + (j & 1) * 512 + (j >> 1) * 16 + mtx * 128
                a(f'ds_read_b32 v{G+16*mtx+4*j+w}, v19 offset:{off}')
    a('s_waitcnt lgkmcnt(0)')
    for mtx in range(2):
        for j in range(4):
            b = G + 16 * mtx + 4 * j
            a(f'v_add_f32 v{b}, v{b}, v{b+1}\nv_add_f32 v{b+2}, v{b+2}, v{b+3}')
    for mtx in range(2):
        for j in range(4):
            b = G + 16 * mtx + 4 * j
            a(f'v_add_f32 v{b}, v{b}, v{b+2}')
    for mtx in range(2):
        for j in range(4):
            rnd(a, G + 16 * mtx + 4 * j, G + 16 * mtx + 4 * j)
    for j in range(4):
        a(f'v_mul_f32 v{G+4*j+1}, {NLOG2E}, v{G+4*j}')
    for j in range(4):
        a(f'v_exp_f32 v{G+4*j+1}, v{G+4*j+1}')
    for j in range(4):
        a(f'v_add_f32 v{G+4*j+1}, 1.0, v{G+4*j+1}')
    for j in range(4):
        a(f'v_rcp_f32 v{G+4*j+1}, v{G+4*j+1}')
    for j in range(4):
        a(f'v_mul_f32 v{G+4*j}, v{G+4*j}, v{G+4*j+1}')
    for j in range(4):
        rnd(a, G + 4 * j, G + 4 * j)
    for j in range(4):
        a(f'v_mul_f32 v{G+4*j}, v{G+4*j}, v{G+16+4*j}')
    a(f'v_cvt_pk_bf16_f32 v56, v{G}, v{G+4}\nv_cvt_pk_bf16_f32 v57, v{G+8}, v{G+12}')
    DE, DO = 128, 138
    for gg in range(5):
        for d in range(2):
            a(f'v_perm_b32 v{DE+2*gg+d}, v{WD+4*gg+2*d+1}, v{WD+4*gg+2*d}, s41')
            a(f'v_perm_b32 v{DO+2*gg+d}, v{WD+4*gg+2*d+1}, v{WD+4*gg+2*d}, s42')
    OE, OO = 64, 84
    for gg in range(5):
        a(f'v_mfma_f32_16x16x16_bf16 v[{OE+4*gg}:{OE+4*gg+3}], v[56:57], v[{DE+2*gg}:{DE+2*gg+1}], 0')
        a(f'v_mfma_f32_16x16x16_bf16 v[{OO+4*gg}:{OO+4*gg+3}], v[56:57], v[{DO+2*gg}:{DO+2*gg+1}], 0')
    a(f'''
    s_mul_i32 s18, s16, {8*2560}
    s_mul_i32 s19, s3, 640
    s_add_u32 s18, s18, s19
    v_mul_u32_u24 v19, {4*2560}, v3
    v_lshl_add_u32 v19, v2, 3, v19
    v_add_u32 v19, s18, v19
    s_mov_b32 s60, 0
    s_mov_b32 s61, 2560
    s_mov_b32 s62, 5120
    s_mov_b32 s63, 7680
    s_mov_b32 exec_lo, -1
    s_mov_b32 exec_hi, 0
    ''')
    n = 0
    for gg in range(5):
        for r in range(4):
            t = 104 + 2 * (n % 10)
            n += 1
            a(f'v_mov_b32 v{t}, v{OE+4*gg+r}\nv_mov_b32 v{t+1}, v{OO+4*gg+r}')
            a(f'buffer_store_dwordx2 v[{t}:{t+1}], v19, s[52:55], s{60+r} offen offset:{128*gg}')
    a('s_endpgm')


def k2():
    a = Asm()
    a('''
    s_cmp_ge_u32 s2, 256
    s_cbranch_scc1 K2_END
    s_load_dwordx2 s[4:5], s[0:1], 0
    s_load_dwordx4 s[8:11], s[0:1], 32
    s_load_dwordx2 s[14:15], s[0:1], 104
    v_lshrrev_b32 v1, 6, v0
    v_readfirstlane_b32 s3, v1
    s_and_b32 s16, s2, 7
    s_lshr_b32 s17, s2, 3
    s_cmp_ge_u32 s17, 20
    s_cbranch_scc1 K2_FFN
    ''')
    k2_conv(a)
    a.label('K2_FFN')
    k2_ffn(a)
    a.label('K2_END')
    a('s_endpgm')
    return a


def silu_block(a, regs, tmp):
    for r, t in zip(regs, tmp):
        a(f'v_mul_f32 v{t}, {NLOG2E}, v{r}')
    for r, t in zip(regs, tmp):
        a(f'v_exp_f32 v{t}, v{t}')
    for r, t in zip(regs, tmp):
        a(f'v_add_f32 v{t}, 1.0, v{t}')
    for r, t in zip(regs, tmp):
        a(f'v_rcp_f32 v{t}, v{t}')
    for r, t in zip(regs, tmp):
        a(f'v_mul_f32 v{r}, v{r}, v{t}')


def k3():
    a = Asm()
    a(f'''
    s_cmp_ge_u32 s2, 320
    s_cbranch_scc1 K3_END
    s_load_dwordx2 s[4:5], s[0:1], 0
    s_load_dwordx2 s[6:7], s[0:1], 88
    s_load_dwordx2 s[14:15], s[0:1], 104
    s_waitcnt lgkmcnt(0)
    s_add_u32 s8, s14, {WS_IDX}
    s_addc_u32 s9, s15, 0
    s_load_dwordx16 s[44:59], s[8:9], 0
    ''')
    a.srd(20, 4, NB)
    a.srd(24, 6, NB)
    a.srd(28, 14, NB, WS_Y2)
    a.srd(32, 14, 2048 * 8, WS_ST)
    a('''
    s_cmp_ge_u32 s2, 256
    s_cbranch_scc1 K3_ROW
    s_and_b32 s16, s2, 7
    s_lshr_b32 s17, s2, 3
    s_mul_i32 s16, s16, 80
    s_lshl_b32 s17, s17, 6
    v_lshrrev_b32 v1, 3, v0
    v_and_b32 v2, 7, v0
    v_lshl_add_u32 v1, v1, 1, s16
    v_lshl_add_u32 v2, v2, 3, s17
    v_mul_u32_u24 v3, 1280, v2
    v_lshl_add_u32 v3, v1, 1, v3
    v_lshlrev_b32 v4, 1, v2
    v_lshl_add_u32 v4, v1, 12, v4
    v_lshlrev_b32 v5, 3, v2
    s_mov_b32 s18, 5120
    s_mov_b32 s19, 4096
    ''')
    Q, ST, Y = 8, 16, 32
    for i in range(8):
        so = '0' if i < 4 else 's18'
        a(f'buffer_load_dword v{Q+i}, v3, s[20:23], {so} offen offset:{1280*(i%4)}')
    for i in range(4):
        a(f'buffer_load_dwordx4 v[{ST+4*i}:{ST+4*i+3}], v5, s[32:35], 0 offen offset:{16*i}')
    a(f'buffer_load_dwordx4 v[{Y}:{Y+3}], v4, s[28:31], 0 offen')
    a(f'buffer_load_dwordx4 v[{Y+4}:{Y+7}], v4, s[28:31], s19 offen')
    a('v_mov_b32 v6, 0\ns_waitcnt lgkmcnt(0)')
    for k in range(8):
        a(f'''
        v_sub_u32 v7, s{44+k}, v2
        v_cmp_gt_u32 vcc, 8, v7
        v_lshlrev_b32 v7, v7, 1
        v_cndmask_b32 v7, 0, v7, vcc
        v_or_b32 v6, v6, v7
        ''')
    X, N, T = 40, 56, 72
    E = [(hf, t) for t in range(8) for hf in range(2)]
    ix = lambda hf, t: 2 * t + hf
    a('s_waitcnt vmcnt(2)')
    for t in range(8):
        a(f'v_lshlrev_b32 v{X+2*t}, 16, v{Q+t}\nv_and_b32 v{X+2*t+1}, 0xffff0000, v{Q+t}')
    for hf, t in E:
        a(f'v_sub_f32 v{N+ix(hf,t)}, v{X+ix(hf,t)}, v{ST+2*t}')

    def round_pairs(base):
        for t in range(8):
            a(f'v_cvt_pk_bf16_f32 v{Q+t}, v{base+2*t}, v{base+2*t+1}')
        for t in range(8):
            a(f'v_lshlrev_b32 v{base+2*t}, 16, v{Q+t}\nv_and_b32 v{base+2*t+1}, 0xffff0000, v{Q+t}')
    round_pairs(N)
    for hf, t in E:
        a(f'v_mul_f32 v{N+ix(hf,t)}, v{N+ix(hf,t)}, v{ST+2*t+1}')
    round_pairs(N)
    S = 88
    a('s_waitcnt vmcnt(0)')
    for hf, t in E:
        src = Y + 4 * hf + t // 2
        if t % 2 == 0:
            a(f'v_lshlrev_b32 v{S+ix(hf,t)}, 16, v{src}')
        else:
            a(f'v_and_b32 v{S+ix(hf,t)}, 0xffff0000, v{src}')
    for i in range(16):
        a(f'v_mul_f32 v{S+i}, v{S+i}, v{N+i}')
    round_pairs(S)
    silu_block(a, range(N, N + 16), range(T, T + 16))
    round_pairs(N)
    for i in range(16):
        a(f'v_mul_f32 v{S+i}, v{S+i}, v{N+i}')
    round_pairs(S)
    for i in range(16):
        a(f'v_add_f32 v{S+i}, v{S+i}, v{X+i}')
    for t in range(8):
        a(f'v_cvt_pk_bf16_f32 v{Q+t}, v{S+2*t}, v{S+2*t+1}')
        a(f'v_bfe_i32 v{T+t}, v6, {t}, 1')
        a(f'v_and_b32 v{T+t}, 0x80000000, v{T+t}')
        a(f'v_or_b32 v{T+t}, v{T+t}, v3')
    for i in range(8):
        so = '0' if i < 4 else 's18'
        a(f'buffer_store_dword v{Q+i}, v{T+i}, s[24:27], {so} offen offset:{1280*(i%4)}')
    a('s_endpgm')
    a.label('K3_ROW')
    a.srd(36, 14, 96 * 8 * 2560, WS_P)
    a(f'''
    s_sub_u32 s16, s2, 256
    s_lshr_b32 s17, s16, 3
    s_and_b32 s16, s16, 7
    s_mul_i32 s16, s16, 80
    s_mov_b32 s18, 0xcccd
    v_mul_u32_u24 v1, s18, v0
    v_lshrrev_b32 v1, 20, v1
    v_mul_u32_u24 v2, 20, v1
    v_sub_u32 v2, v0, v2
    s_mul_i32 s18, s17, 2560
    s_lshl_b32 s19, s16, 2
    s_add_u32 s18, s18, s19
    v_mul_u32_u24 v3, {8*2560}, v1
    v_lshl_add_u32 v3, v2, 4, v3
    v_add_u32 v3, s18, v3
    ''')
    for i in range(6):
        a(f's_mov_b32 s19, {i*16*8*2560}')
        a(f'buffer_load_dwordx4 v[{8+4*i}:{11+4*i}], v3, s[36:39], s19 offen')
    a('s_waitcnt lgkmcnt(0)')
    a('s_mov_b32 s60, s44\ns_mov_b32 s61, s52')
    for k in range(1, 8):
        a(f's_cmp_eq_u32 s17, {k}\ns_cselect_b32 s60, s{44+k}, s60\ns_cselect_b32 s61, s{52+k}, s61')
    a(f'''
    v_add_u32 v4, s16, v0
    s_mul_i32 s18, s60, 1280
    v_lshl_add_u32 v5, v4, 1, s18
    s_lshl_b32 s18, s60, 1
    v_lshl_add_u32 v6, v4, 12, s18
    s_lshl_b32 s18, s60, 3
    v_mov_b32 v7, s18
    v_cmp_gt_u32 vcc, 80, v0
    s_and_saveexec_b64 s[62:63], vcc
    s_cbranch_execz K3_R1
    buffer_load_ushort v40, v5, s[20:23], 0 offen
    buffer_load_ushort v41, v6, s[28:31], 0 offen
    buffer_load_dwordx2 v[42:43], v7, s[32:35], 0 offen
    ''')
    a.label('K3_R1')
    a('s_mov_b64 exec, -1\ns_waitcnt vmcnt(0)')
    for i in range(1, 6):
        for d in range(4):
            a(f'v_add_f32 v{8+d}, v{8+d}, v{8+4*i+d}')
    a(f'''
    v_lshlrev_b32 v44, 4, v0
    ds_write_b128 v44, v[8:11]
    s_waitcnt lgkmcnt(0)
    s_barrier
    s_and_saveexec_b64 s[64:65], vcc
    s_cbranch_execz K3_END
    v_lshlrev_b32 v44, 2, v0
    ''')
    for i in range(16):
        a(f'ds_read_b32 v{8+i}, v44 offset:{320*i}')
    a('s_waitcnt lgkmcnt(0)')
    for st in (8, 4, 2, 1):
        for i in range(st):
            a(f'v_add_f32 v{8+i}, v{8+i}, v{8+i+st}')
    rnd(a, 8, 8)
    a('v_mul_f32 v8, s61, v8')
    rnd(a, 8, 8)
    a('v_lshlrev_b32 v40, 16, v40\nv_lshlrev_b32 v41, 16, v41\nv_sub_f32 v9, v40, v42')
    rnd(a, 9, 9)
    a('v_mul_f32 v9, v9, v43')
    rnd(a, 9, 9)
    a('v_add_f32 v8, v8, v9')
    rnd(a, 8, 8)
    a('v_mul_f32 v9, v9, v41')
    rnd(a, 9, 9)
    silu_block(a, [8], [10])
    rnd(a, 8, 8)
    a('v_mul_f32 v8, v8, v9')
    rnd(a, 8, 8)
    a('''
    v_add_f32 v8, v8, v40
    v_cvt_pk_bf16_f32 v8, v8, v8
    buffer_store_short v8, v5, s[24:27], 0 offen
    ''')
    a.label('K3_END')
    a('s_endpgm')
    return a


def build(extra_empty=0):
    rep = []
    ks = [('prep_kernel', k1().text(rep)), ('conv_kernel', k2().text(rep)), ('fin_kernel', k3().text(rep))]
    ls = [('prep_kernel', 256, 576, 0), ('conv_kernel', 256, 256, 4 * CW_LDS), ('fin_kernel', 320, 320, 5120)]
    if extra_empty:
        ks.append(('nop_kernel', '    s_endpgm\n'))
        ls += [('nop_kernel', 256, 64, 0)] * extra_empty
    return module(HDR, ks, ls), rep


if __name__ == '__main__':
    out = sys.argv[1] if len(sys.argv) > 1 else 'v1.s'
    extra = int(sys.argv[2]) if len(sys.argv) > 2 else 0
    s, rep = build(extra)
    open(out, 'w').write(s)
    print('wrote', out, len(s), 'bytes; nops inserted:', len(rep), 'states', sum(k for k, _ in rep))
```

```python
import sys
from asmlib import *

HDR = open('recurrent_scan__ssm_conv_h3__moe_arch_mod__prompt.s.ref').read().split('; Override launch')[0]

NB = 2048 * 1280
OPT = dict(kv32=False, y32=False, fin32=False)
WS_UR = 0
WS_Y2 = 4 << 20
WS_ST = 8 << 20
WS_KEY = WS_ST + (64 << 10)
WS_IDX = WS_ST + (128 << 10)
WS_P = 9 << 20
LOG2E = 0x3fb8aa3b
NLOG2E = 0xbfb8aa3b
INV640 = 0x3acccccd
EPS = 0x3727c5ac


def row_reduce_add(a, v, t, width32=True):
    for sh in (8, 4, 2, 1):
        a(f'v_add_f32_dpp v{v}, v{v}, v{v} row_ror:{sh} row_mask:0xf bank_mask:0xf')
    if width32:
        a(f'v_mov_b32 v{t}, v{v}')
        a(f'v_permlane16_swap_b32 v{v}, v{t}')
        a(f'v_add_f32 v{v}, v{v}, v{t}')


def rnd(a, d, s):
    a(f'v_cvt_pk_bf16_f32 v{d}, v{s}, v{s}')
    a(f'v_and_b32 v{d}, 0xffff0000, v{d}')


def k1():
    a = Asm()
    a(f'''
    s_cmp_ge_u32 s2, 256
    s_cbranch_scc1 K1_END
    s_load_dwordx4 s[4:7], s[0:1], 0
    s_load_dwordx4 s[8:11], s[0:1], 16
    s_load_dwordx2 s[12:13], s[0:1], 56
    s_load_dwordx2 s[14:15], s[0:1], 104
    v_lshrrev_b32 v1, 6, v0
    v_readfirstlane_b32 s3, v1
    s_mov_b32 s40, 0x3f803f80
    s_cmp_ge_u32 s3, 5
    s_cbranch_scc1 K1_LN
    ''')
    a('''
    s_and_b32 s16, s2, 7
    s_lshr_b32 s17, s2, 3
    s_mul_i32 s16, s16, 80
    s_lshl_b32 s17, s17, 6
    v_lshrrev_b32 v1, 3, v0
    v_and_b32 v2, 7, v0
    v_lshl_add_u32 v1, v1, 1, s16
    v_lshl_add_u32 v2, v2, 3, s17
    v_mul_u32_u24 v3, 1280, v2
    v_lshl_add_u32 v3, v1, 1, v3
    v_subrev_u32 v4, 3840, v3
    v_cmp_eq_u32 vcc, 0, v2
    v_mov_b32 v5, 0x80000000
    v_cndmask_b32 v4, v4, v5, vcc
    v_lshlrev_b32 v5, 3, v1
    v_sub_u32 v6, 2040, v2
    v_lshlrev_b32 v6, 1, v6
    v_lshl_add_u32 v6, v1, 12, v6
    s_mov_b32 s18, 5120
    s_waitcnt lgkmcnt(0)
    ''')
    a.srd(20, 6, NB)
    a.srd(24, 8, NB)
    a.srd(28, 10, 640 * 8)
    a.srd(32, 14, NB, WS_UR)
    KK, VV, W = 8, 20, 28
    a(f'buffer_load_dwordx4 v[{W}:{W+3}], v5, s[28:31], 0 offen')
    for i in range(3):
        a(f'buffer_load_dword v{KK+i}, v4, s[20:23], 0 offen offset:{1280*i}')
    for i in range(8):
        so = '0' if i < 4 else 's18'
        a(f'buffer_load_dword v{KK+3+i}, v3, s[20:23], {so} offen offset:{1280*(i%4)}')
    for i in range(8):
        so = '0' if i < 4 else 's18'
        a(f'buffer_load_dword v{VV+i}, v3, s[24:27], {so} offen offset:{1280*(i%4)}')
    WF = 32
    KF = 40
    a('s_waitcnt vmcnt(19)')
    for hf in range(2):
        for j in range(4):
            src = W + 2 * hf + j // 2
            if j % 2 == 0:
                a(f'v_lshlrev_b32 v{WF+4*hf+j}, 16, v{src}')
            else:
                a(f'v_and_b32 v{WF+4*hf+j}, 0xffff0000, v{src}')
    a('s_waitcnt vmcnt(8)')
    for i in range(11):
        a(f'v_lshlrev_b32 v{KF+i}, 16, v{KK+i}')
        a(f'v_and_b32 v{KF+11+i}, 0xffff0000, v{KK+i}')
    S = 64
    P = 80
    E = [(hf, t) for t in range(8) for hf in range(2)]
    idx = lambda hf, t: 8 * hf + t
    for hf, t in E:
        a(f'v_mul_f32 v{S+idx(hf,t)}, v{KF+11*hf+t}, v{WF+4*hf+3}')
    if OPT['kv32']:
        for j in (2, 1, 0):
            for hf, t in E:
                a(f'v_fmac_f32 v{S+idx(hf,t)}, v{KF+11*hf+t+3-j}, v{WF+4*hf+j}')
        a('s_waitcnt vmcnt(0)')
        for t in range(8):
            a(f'v_lshlrev_b32 v{KF+t}, 16, v{VV+t}')
            a(f'v_and_b32 v{KF+8+t}, 0xffff0000, v{VV+t}')
    else:
        for j in (2, 1, 0):
            for hf, t in E:
                a(f'v_mul_f32 v{P+idx(hf,t)}, v{KF+11*hf+t+3-j}, v{WF+4*hf+j}')
            for hf, t in E:
                a(f'v_cvt_pk_bf16_f32 v{S+idx(hf,t)}, v{S+idx(hf,t)}, v{P+idx(hf,t)}')
            for hf, t in E:
                a(f'v_dot2_f32_bf16 v{S+idx(hf,t)}, v{S+idx(hf,t)}, s40, 0')
        for t in range(8):
            a(f'v_cvt_pk_bf16_f32 v{P+t}, v{S+t}, v{S+8+t}')
        a('s_waitcnt vmcnt(0)')
        for t in range(8):
            a(f'v_lshlrev_b32 v{S+t}, 16, v{P+t}')
            a(f'v_and_b32 v{S+8+t}, 0xffff0000, v{P+t}')
            a(f'v_lshlrev_b32 v{KF+t}, 16, v{VV+t}')
            a(f'v_and_b32 v{KF+8+t}, 0xffff0000, v{VV+t}')
    for hf, t in E:
        a(f'v_mul_f32 v{S+idx(hf,t)}, v{S+idx(hf,t)}, v{KF+idx(hf,t)}')
    for hf in range(2):
        for m in range(4):
            a(f'v_cvt_pk_bf16_f32 v{P+4*hf+m}, v{S+8*hf+7-2*m}, v{S+8*hf+6-2*m}')
    a(f'''
    s_mov_b32 s19, 4096
    buffer_store_dwordx4 v[{P}:{P+3}], v6, s[32:35], 0 offen
    buffer_store_dwordx4 v[{P+4}:{P+7}], v6, s[32:35], s19 offen
    s_endpgm
    ''')
    a.label('K1_LN')
    a('''
    s_sub_u32 s3, s3, 5
    s_lshl_b32 s16, s2, 3
    s_lshl_b32 s3, s3, 1
    s_add_u32 s16, s16, s3
    v_and_b32 v1, 63, v0
    v_lshrrev_b32 v2, 5, v1
    v_add_u32 v2, s16, v2
    v_and_b32 v1, 31, v1
    v_lshlrev_b32 v3, 4, v1
    v_lshlrev_b32 v4, 3, v1
    v_mul_u32_u24 v5, 1280, v2
    v_add_u32 v6, v5, v3
    v_add_u32 v7, v5, v4
    s_waitcnt lgkmcnt(0)
    ''')
    a.srd(20, 4, NB)
    a.srd(24, 12, 1280)
    a.srd(28, 14, 2048 * 8, WS_ST)
    a.srd(32, 14, 2048 * 4, WS_KEY)
    X, WR, XF = 8, 20, 32
    a(f'''
    buffer_load_dwordx4 v[{X}:{X+3}], v6, s[20:23], 0 offen
    buffer_load_dwordx4 v[{X+4}:{X+7}], v6, s[20:23], 0 offen offset:512
    buffer_load_dwordx2 v[{X+8}:{X+9}], v7, s[20:23], 0 offen offset:1024
    buffer_load_dwordx4 v[{WR}:{WR+3}], v3, s[24:27], 0 offen
    buffer_load_dwordx4 v[{WR+4}:{WR+7}], v3, s[24:27], 0 offen offset:512
    buffer_load_dwordx2 v[{WR+8}:{WR+9}], v4, s[24:27], 0 offen offset:1024
    s_mov_b32 s41, {INV640}
    s_waitcnt vmcnt(3)
    v_dot2_f32_bf16 v60, v{X}, s40, 0
    ''')
    for i in range(1, 10):
        a(f'v_dot2_f32_bf16 v60, v{X+i}, s40, v60')
    for i in range(10):
        a(f'v_lshlrev_b32 v{XF+2*i}, 16, v{X+i}')
        a(f'v_and_b32 v{XF+2*i+1}, 0xffff0000, v{X+i}')
    row_reduce_add(a, 60, 61)
    a('v_mul_f32 v60, s41, v60')
    rnd(a, 62, 60)
    a('v_sub_f32 v60, v60, v62')
    for i in range(20):
        a(f'v_sub_f32 v{XF+i}, v{XF+i}, v62')
    a(f'v_mul_f32 v64, v{XF}, v{XF}\nv_mul_f32 v65, v{XF+1}, v{XF+1}')
    for i in range(2, 20):
        a(f'v_fmac_f32 v{64+(i&1)}, v{XF+i}, v{XF+i}')
    a('v_add_f32 v64, v64, v65')
    for i in range(10):
        a(f'v_cvt_pk_bf16_f32 v{X+i}, v{XF+2*i}, v{XF+2*i+1}')
    row_reduce_add(a, 64, 61)
    a('''
    v_mul_f32 v64, s41, v64
    v_fma_f32 v64, -v60, v60, v64
    v_max_f32 v64, 0, v64
    ''')
    rnd(a, 64, 64)
    a(f'v_add_f32 v64, {EPS}, v64')
    rnd(a, 64, 64)
    a('v_sqrt_f32 v64, v64')
    rnd(a, 64, 64)
    a('v_rcp_f32 v63, v64')
    for i in range(10):
        a(f'v_lshlrev_b32 v{XF+2*i}, 16, v{X+i}')
        a(f'v_and_b32 v{XF+2*i+1}, 0xffff0000, v{X+i}')
    for i in range(20):
        a(f'v_mul_f32 v{XF+i}, v{XF+i}, v63')
    for i in range(10):
        a(f'v_cvt_pk_bf16_f32 v{X+i}, v{XF+2*i}, v{XF+2*i+1}')
    a('s_waitcnt vmcnt(0)')
    a(f'v_dot2_f32_bf16 v66, v{X}, v{WR}, 0')
    for i in range(1, 10):
        a(f'v_dot2_f32_bf16 v66, v{X+i}, v{WR+i}, v66')
    row_reduce_add(a, 66, 61)
    a('''
    v_add_f32 v66, 0, v66
    v_cvt_pk_bf16_f32 v66, v66, v66
    v_ashrrev_i32 v67, 31, v66
    v_or_b32 v67, 0x80000000, v67
    v_xor_b32 v66, v66, v67
    v_and_b32 v66, 0xffff0000, v66
    v_sub_u32 v67, 0xffff, v2
    v_or_b32 v66, v66, v67
    v_lshlrev_b32 v8, 3, v2
    v_lshlrev_b32 v9, 2, v2
    v_cmp_eq_u32 vcc, 0, v1
    s_and_saveexec_b64 s[36:37], vcc
    buffer_store_dwordx2 v[62:63], v8, s[28:31], 0 offen
    buffer_store_dword v66, v9, s[32:35], 0 offen
    ''')
    a.label('K1_END')
    a('s_endpgm')
    return a


H0_OFF, H1_OFF, U_OFF, CW_LDS = 0, 4160, 8288, 12864


def k2_conv(a):
    a(f'''
    s_mul_i32 s16, s16, 80
    s_lshl_b32 s17, s17, 2
    s_add_u32 s16, s16, s17
    s_add_u32 s16, s16, s3
    s_lshl_b32 s17, s16, 12
    s_mul_i32 s18, s3, {CW_LDS}
    v_and_b32 v1, 63, v0
    v_lshlrev_b32 v2, 4, v1
    s_waitcnt lgkmcnt(0)
    ''')
    a.srd(20, 8, NB)
    a.srd(24, 14, NB, WS_UR)
    a.srd(28, 14, NB, WS_Y2)
    a(f'''
    s_lshl_b32 s19, s16, 1
    s_and_b32 s19, s19, 0xfffffffc
    s_add_u32 s10, s10, s19
    s_addc_u32 s11, s11, 0
    s_load_dword s38, s[10:11], 0
    ''')
    HD, HX, UD = 100, 116, 120
    for m in range(4):
        a(f'buffer_load_dwordx4 v[{HD+4*m}:{HD+4*m+3}], v2, s[20:23], s17 offen offset:{1024*m}')
        a(f'buffer_load_dword v{HX+m}, v2, s[20:23], s17 offen offset:{1024*m+16}')
    for m in range(4):
        a(f'buffer_load_dwordx4 v[{UD+4*m}:{UD+4*m+3}], v2, s[24:27], s17 offen offset:{1024*m}')
    a(f'''
    v_add_u32 v3, s18, v2
    v_mov_b32 v4, 0
    v_mov_b32 v5, 0
    v_mov_b32 v6, 0
    v_mov_b32 v7, 0
    v_cmp_gt_u32 vcc, 30, v1
    s_and_saveexec_b64 s[36:37], vcc
    ds_write_b128 v3, v[4:7] offset:{U_OFF+4096}
    v_cmp_gt_u32 vcc, 2, v1
    s_and_b64 exec, exec, vcc
    ds_write_b128 v3, v[4:7] offset:{H0_OFF}
    ds_write_b128 v3, v[4:7] offset:{H1_OFF}
    s_mov_b64 exec, s[36:37]
    ''')
    for i in range(32):
        a(f'v_mov_b32 v{8+i}, 0')
    a(f'''
    v_and_b32 v40, 15, v1
    v_lshrrev_b32 v41, 4, v1
    v_and_b32 v42, 1, v40
    v_add_u32 v43, v40, v42
    v_lshlrev_b32 v43, 1, v43
    v_lshl_add_u32 v43, v41, 4, v43
    v_xor_b32 v42, 1, v42
    v_mul_u32_u24 v42, {H1_OFF}, v42
    v_add3_u32 v43, v43, v42, s18
    v_add_u32 v44, 1024, v43
    v_add_u32 v45, 2048, v43
    v_add_u32 v46, 3072, v43
    v_lshlrev_b32 v47, 5, v40
    v_sub_u32 v47, {U_OFF+480}, v47
    v_lshl_add_u32 v47, v41, 4, v47
    v_add_u32 v47, s18, v47
    ''')
    for m in range(4):
        a(f's_waitcnt vmcnt({10-2*m})')
        a(f'ds_write_b128 v3, v[{HD+4*m}:{HD+4*m+3}] offset:{H0_OFF+32+1024*m}')
        T = 48 + 4 * (m & 1)
        for d in range(4):
            hi = HD + 4 * m + d + 1 if d < 3 else HX + m
            a(f'v_alignbyte_b32 v{T+d}, v{hi}, v{HD+4*m+d}, 2')
        a(f'ds_write_b128 v3, v[{T}:{T+3}] offset:{H1_OFF+32+1024*m}')
        if m == 0:
            a(f'''
            v_lshlrev_b32 v56, 16, v{HD}
            s_mov_b64 exec, 1
            ds_write_b32 v3, v56 offset:{H1_OFF+28}
            s_mov_b64 exec, -1
            ''')
    for m in range(4):
        a(f's_waitcnt vmcnt({3-m})')
        a(f'ds_write_b128 v3, v[{UD+4*m}:{UD+4*m+3}] offset:{U_OFF+1024*m}')
    ACC = 8
    AF = [64, 128]
    GF = [96, 160]

    def loads(rho):
        L = []
        s = rho & 1
        for g in range(8):
            L.append(f'ds_read_b128 v[{GF[s]+4*g}:{GF[s]+4*g+3}], v47 offset:{512*(7-g)+64*rho}')
            o = 128 * (g & 1) + 16 * rho
            r = AF[s] + 4 * g
            L.append(f'ds_read2_b32 v[{r}:{r+1}], v{43+g//2} offset0:{o} offset1:{o+1}')
            L.append(f'ds_read2_b32 v[{r+2}:{r+3}], v{43+g//2} offset0:{o+2} offset1:{o+3}')
        return L
    a('s_waitcnt lgkmcnt(0)')
    for l in loads(0):
        a(l)
    pairs = [(g, d) for mx in range(8) for (g, d) in ([(mx, d) for d in range(mx)] + [(g, mx) for g in range(mx + 1)]) if g + d <= 7]
    assert len(pairs) == 36
    for rho in range(8):
        s = rho & 1
        a('s_waitcnt lgkmcnt(0)')
        L = loads(rho + 1) if rho < 7 else []
        for n, (g, d) in enumerate(pairs):
            i = g + d
            a(f'v_mfma_f32_16x16x32_bf16 v[{ACC+4*i}:{ACC+4*i+3}], v[{AF[s]+4*g}:{AF[s]+4*g+3}], v[{GF[s]+4*d}:{GF[s]+4*d+3}], v[{ACC+4*i}:{ACC+4*i+3}]')
            if L:
                a(L.pop(0))
        assert not L
    a(f'''
    v_lshlrev_b32 v48, 5, v40
    v_lshl_add_u32 v48, v41, 3, v48
    v_sub_u32 v49, {U_OFF+2*2044-3584}, v48
    v_add_u32 v49, s18, v49
    ''')
    UU = 64
    for i in range(8):
        a(f'ds_read_b64 v[{UU+2*i}:{UU+2*i+1}], v49 offset:{512*(7-i)}')
    a('''
    s_and_b32 s39, s16, 1
    s_cmp_eq_u32 s39, 1
    s_cselect_b32 s39, 16, 0
    s_lshr_b32 s38, s38, s39
    s_and_b32 s38, s38, 0xffff
    s_lshl_b32 s39, s38, 16
    s_mov_b32 s40, 0x3f803f80
    s_waitcnt lgkmcnt(0)
    ''')
    T = 96
    for i in range(8):
        for r in range(4):
            src = UU + 2 * i + (1 if r < 2 else 0)
            sel = 's39' if r % 2 == 0 else 's38'
            a(f'v_dot2_f32_bf16 v{T+4*i+r}, v{src}, {sel}, 0')
    if OPT['y32']:
        for i in range(8):
            for r in range(4):
                a(f'v_add_f32 v{T+4*i+r}, v{T+4*i+r}, v{ACC+4*i+r}')
    else:
        for i in range(8):
            for r in range(4):
                a(f'v_cvt_pk_bf16_f32 v{T+4*i+r}, v{T+4*i+r}, v{ACC+4*i+r}')
        for i in range(8):
            for r in range(4):
                a(f'v_dot2_f32_bf16 v{T+4*i+r}, v{T+4*i+r}, s40, 0')
    for i in range(8):
        a(f'v_cvt_pk_bf16_f32 v{UU+2*i}, v{T+4*i}, v{T+4*i+1}')
        a(f'v_cvt_pk_bf16_f32 v{UU+2*i+1}, v{T+4*i+2}, v{T+4*i+3}')
        a(f'buffer_store_dwordx2 v[{UU+2*i}:{UU+2*i+1}], v48, s[28:31], s17 offen offset:{512*i}')
    a('s_endpgm')


SORT8 = [(0, 1), (2, 3), (4, 5), (6, 7), (0, 2), (1, 3), (4, 6), (5, 7), (1, 2), (5, 6), (0, 4), (3, 7), (1, 5), (2, 6), (1, 4), (3, 6), (2, 4), (3, 5), (3, 4)]


def k2_ffn(a):
    a(f'''
    s_sub_u32 s17, s17, 20
    s_lshl_b32 s17, s17, 3
    s_add_u32 s16, s16, s17
    s_load_dwordx4 s[44:47], s[0:1], 64
    s_load_dwordx2 s[48:49], s[0:1], 80
    v_and_b32 v1, 63, v0
    v_and_b32 v2, 15, v1
    v_lshrrev_b32 v3, 4, v1
    s_waitcnt lgkmcnt(0)
    ''')
    a.srd(20, 14, 2048 * 4, WS_KEY)
    a.srd(24, 4, NB)
    a.srd(28, 14, 2048 * 8, WS_ST)
    a.srd(32, 48, 1536 * 1280)
    a.srd(52, 14, 96 * 8 * 2560, WS_P)
    a.srd(56, 14, 64, WS_IDX)
    KEY = 8
    a(f'''
    v_lshlrev_b32 v4, 5, v0
    buffer_load_dwordx4 v[{KEY}:{KEY+3}], v4, s[20:23], 0 offen
    buffer_load_dwordx4 v[{KEY+4}:{KEY+7}], v4, s[20:23], 0 offen offset:16
    ''')
    a(f'''
    v_cmp_gt_u32 vcc, 8, v2
    v_mov_b32 v4, s46
    v_mov_b32 v5, s47
    v_mov_b32 v6, s44
    v_mov_b32 v7, s45
    v_cndmask_b32 v4, v4, v6, vcc
    v_cndmask_b32 v5, v5, v7, vcc
    s_mul_i32 s18, s3, 160
    v_lshl_add_u32 v6, v3, 3, s18
    v_mul_u32_u24 v6, 3072, v6
    v_and_b32 v7, 7, v2
    v_lshlrev_b32 v7, 2, v7
    s_lshl_b32 s19, s16, 5
    v_add3_u32 v6, v6, v7, s19
    v_add_co_u32 v4, vcc, v4, v6
    v_addc_co_u32 v5, vcc, 0, v5, vcc
    ''')
    WG = 64
    for c in range(5):
        for j in range(0, 8, 2):
            a(f'global_load_dword v{WG+8*c+j}, v[4:5], off')
            a(f'global_load_dword v{WG+8*c+j+1}, v[4:5], off offset:3072')
            step = 6144 if j < 6 else 6144 + 24 * 3072
            if not (c == 4 and j == 6):
                a(f'v_add_co_u32 v4, vcc, {step}, v4')
                a(f'v_addc_co_u32 v5, vcc, 0, v5, vcc')
    WD = 104
    a(f'''
    s_lshl_b32 s18, s16, 4
    v_lshl_add_u32 v6, v3, 2, s18
    v_mul_u32_u24 v6, 1280, v6
    v_lshl_add_u32 v6, v2, 2, v6
    s_mul_i32 s18, s3, 320
    v_add_u32 v6, s18, v6
    ''')
    for gg in range(5):
        for j in range(4):
            off = 1280 * j + 64 * gg
            so = 0 if off < 4096 else 64
            a(f'buffer_load_dword v{WD+4*gg+j}, v6, s[32:35], {so} offen offset:{off-so}')
    a('s_waitcnt vmcnt(60)')
    for (i, j) in SORT8:
        a(f'v_max_u32 v16, v{KEY+i}, v{KEY+j}')
        a(f'v_min_u32 v{KEY+j}, v{KEY+i}, v{KEY+j}')
        a(f'v_mov_b32 v{KEY+i}, v16')
    a('v_mov_b32 v18, 0')
    for rd in range(8):
        a(f'v_max_u32_dpp v16, v{KEY}, v{KEY} row_ror:8 row_mask:0xf bank_mask:0xf')
        for sh in (4, 2, 1):
            a(f'v_max_u32_dpp v16, v16, v16 row_ror:{sh} row_mask:0xf bank_mask:0xf')
        a('''
        v_readlane_b32 s60, v16, 0
        v_readlane_b32 s61, v16, 16
        v_readlane_b32 s62, v16, 32
        v_readlane_b32 s63, v16, 48
        s_max_u32 s60, s60, s61
        s_max_u32 s62, s62, s63
        s_max_u32 s60, s60, s62
        ''')
        a(f'v_writelane_b32 v18, s60, {rd}')
        if rd < 7:
            a(f'v_cmp_eq_u32 vcc, s60, v{KEY}')
            for i in range(7 - rd):
                a(f'v_cndmask_b32 v{KEY+i}, v{KEY+i}, v{KEY+i+1}, vcc')
    a(f'''
    s_lshl_b32 s18, s3, 5
    v_lshl_add_u32 v19, v1, 2, s18
    s_mov_b64 exec, 0xff
    ds_write_b32 v19, v18
    s_mov_b64 exec, -1
    s_waitcnt lgkmcnt(0)
    s_barrier
    v_and_b32 v19, 31, v1
    v_lshlrev_b32 v19, 2, v19
    v_mov_b32 v20, 0
    ds_read_b32 v18, v19
    ''')
    for i in range(8):
        a(f'ds_read_b128 v[{24+4*i}:{27+4*i}], v20 offset:{16*i}')
    a('v_mov_b32 v21, 0\ns_waitcnt lgkmcnt(0)')
    for i in range(32):
        pair = f's[{60+2*(i%4)}:{61+2*(i%4)}]'
        a(f'v_cmp_gt_u32 {pair}, v{24+i}, v18')
        if i >= 2:
            q = f's[{60+2*((i-2)%4)}:{61+2*((i-2)%4)}]'
            a(f'v_addc_co_u32 v21, vcc, 0, v21, {q}')
    for i in (30, 31):
        a(f'v_addc_co_u32 v21, vcc, 0, v21, s[{60+2*(i%4)}:{61+2*(i%4)}]')
    a(f'''
    s_lshl_b32 s18, s3, 5
    s_add_u32 s18, s18, 128
    v_lshl_add_u32 v19, v21, 2, s18
    v_cmp_gt_u32 vcc, 8, v21
    s_and_saveexec_b64 s[36:37], vcc
    ds_write_b32 v19, v18
    s_mov_b64 exec, -1
    v_and_b32 v19, 7, v1
    v_lshl_add_u32 v19, v19, 2, s18
    s_waitcnt lgkmcnt(0)
    ds_read_b32 v18, v19
    s_waitcnt lgkmcnt(0)
    v_and_b32 v19, 0xffff, v18
    v_sub_u32 v19, 0xffff, v19
    v_mul_u32_u24 v20, 1280, v19
    s_mul_i32 s18, s3, 320
    v_lshl_add_u32 v21, v3, 4, s18
    v_add_u32 v20, v20, v21
    v_lshlrev_b32 v21, 3, v19
    buffer_load_dwordx2 v[22:23], v21, s[28:31], 0 offen
    ''')
    XA = 24
    for c in range(5):
        a(f'buffer_load_dwordx4 v[{XA+4*c}:{XA+4*c+3}], v20, s[24:27], 0 offen offset:{64*c}')
    a(f'''
    s_or_b32 s18, s16, s3
    s_cmp_lg_u32 s18, 0
    s_cbranch_scc1 K2_NOIDX
    v_ashrrev_i32 v44, 31, v18
    v_not_b32 v44, v44
    v_or_b32 v44, 0x80000000, v44
    v_xor_b32 v44, v44, v18
    v_and_b32 v44, 0xffff0000, v44
    v_mul_f32 v44, {NLOG2E}, v44
    v_exp_f32 v44, v44
    v_add_f32 v44, 1.0, v44
    v_rcp_f32 v44, v44
    ''')
    rnd(a, 44, 44)
    a(f'''
    v_lshlrev_b32 v45, 2, v1
    s_mov_b64 exec, 0xff
    buffer_store_dword v19, v45, s[56:59], 0 offen
    buffer_store_dword v44, v45, s[56:59], 0 offen offset:32
    s_mov_b64 exec, -1
    ''')
    a.label('K2_NOIDX')
    a('s_mov_b32 s41, 0x05040100\ns_mov_b32 s42, 0x07060302')
    BE, BO = 128, 148
    a('s_waitcnt vmcnt(0)')
    for c in range(5):
        for d in range(4):
            a(f'v_perm_b32 v{BE+4*c+d}, v{WG+8*c+2*d+1}, v{WG+8*c+2*d}, s41')
            a(f'v_perm_b32 v{BO+4*c+d}, v{WG+8*c+2*d+1}, v{WG+8*c+2*d}, s42')
    XF = 64
    for i in range(20):
        a(f'v_lshlrev_b32 v{XF+2*i}, 16, v{XA+i}')
        a(f'v_and_b32 v{XF+2*i+1}, 0xffff0000, v{XA+i}')
    for i in range(40):
        a(f'v_sub_f32 v{XF+i}, v{XF+i}, v22')
    for i in range(20):
        a(f'v_cvt_pk_bf16_f32 v{XA+i}, v{XF+2*i}, v{XF+2*i+1}')
    for i in range(20):
        a(f'v_lshlrev_b32 v{XF+2*i}, 16, v{XA+i}')
        a(f'v_and_b32 v{XF+2*i+1}, 0xffff0000, v{XA+i}')
    for i in range(40):
        a(f'v_mul_f32 v{XF+i}, v{XF+i}, v23')
    for i in range(20):
        a(f'v_cvt_pk_bf16_f32 v{XA+i}, v{XF+2*i}, v{XF+2*i+1}')
    for c in range(5):
        ce = '0' if c == 0 else 'v[48:51]'
        co = '0' if c == 0 else 'v[52:55]'
        a(f'v_mfma_f32_16x16x32_bf16 v[48:51], v[{XA+4*c}:{XA+4*c+3}], v[{BE+4*c}:{BE+4*c+3}], {ce}')
        a(f'v_mfma_f32_16x16x32_bf16 v[52:55], v[{XA+4*c}:{XA+4*c+3}], v[{BO+4*c}:{BO+4*c+3}], {co}')
    a(f'''
    s_lshl_b32 s18, s3, 10
    s_add_u32 s18, s18, 512
    v_lshl_add_u32 v19, v1, 4, s18
    s_mov_b32 exec_lo, -1
    s_mov_b32 exec_hi, 0
    ds_write_b128 v19, v[48:51]
    ds_write_b128 v19, v[52:55] offset:512
    s_mov_b64 exec, -1
    s_waitcnt lgkmcnt(0)
    s_barrier
    ''')
    a(f'''
    v_and_b32 v19, 7, v1
    v_lshrrev_b32 v20, 2, v19
    v_and_b32 v19, 3, v19
    v_lshlrev_b32 v19, 2, v19
    v_lshl_add_u32 v19, v20, 8, v19
    v_lshl_add_u32 v19, v3, 5, v19
    ''')
    G = 64
    for j in range(4):
        for mtx in range(2):
            for w in range(4):
                off = 512 + w * 1024 + (j & 1) * 512 + (j >> 1) * 16 + mtx * 128
                a(f'ds_read_b32 v{G+16*mtx+4*j+w}, v19 offset:{off}')
    a('s_waitcnt lgkmcnt(0)')
    for mtx in range(2):
        for j in range(4):
            b = G + 16 * mtx + 4 * j
            a(f'v_add_f32 v{b}, v{b}, v{b+1}\nv_add_f32 v{b+2}, v{b+2}, v{b+3}')
    for mtx in range(2):
        for j in range(4):
            b = G + 16 * mtx + 4 * j
            a(f'v_add_f32 v{b}, v{b}, v{b+2}')
    for mtx in range(2):
        for j in range(4):
            rnd(a, G + 16 * mtx + 4 * j, G + 16 * mtx + 4 * j)
    for j in range(4):
        a(f'v_mul_f32 v{G+4*j+1}, {NLOG2E}, v{G+4*j}')
    for j in range(4):
        a(f'v_exp_f32 v{G+4*j+1}, v{G+4*j+1}')
    for j in range(4):
        a(f'v_add_f32 v{G+4*j+1}, 1.0, v{G+4*j+1}')
    for j in range(4):
        a(f'v_rcp_f32 v{G+4*j+1}, v{G+4*j+1}')
    for j in range(4):
        a(f'v_mul_f32 v{G+4*j}, v{G+4*j}, v{G+4*j+1}')
    for j in range(4):
        rnd(a, G + 4 * j, G + 4 * j)
    for j in range(4):
        a(f'v_mul_f32 v{G+4*j}, v{G+4*j}, v{G+16+4*j}')
    a(f'v_cvt_pk_bf16_f32 v56, v{G}, v{G+4}\nv_cvt_pk_bf16_f32 v57, v{G+8}, v{G+12}')
    DE, DO = 128, 138
    for gg in range(5):
        for d in range(2):
            a(f'v_perm_b32 v{DE+2*gg+d}, v{WD+4*gg+2*d+1}, v{WD+4*gg+2*d}, s41')
            a(f'v_perm_b32 v{DO+2*gg+d}, v{WD+4*gg+2*d+1}, v{WD+4*gg+2*d}, s42')
    OE, OO = 64, 84
    for gg in range(5):
        a(f'v_mfma_f32_16x16x16_bf16 v[{OE+4*gg}:{OE+4*gg+3}], v[56:57], v[{DE+2*gg}:{DE+2*gg+1}], 0')
        a(f'v_mfma_f32_16x16x16_bf16 v[{OO+4*gg}:{OO+4*gg+3}], v[56:57], v[{DO+2*gg}:{DO+2*gg+1}], 0')
    a(f'''
    s_mul_i32 s18, s16, {8*2560}
    s_mul_i32 s19, s3, 640
    s_add_u32 s18, s18, s19
    v_mul_u32_u24 v19, {4*2560}, v3
    v_lshl_add_u32 v19, v2, 3, v19
    v_add_u32 v19, s18, v19
    s_mov_b32 s60, 0
    s_mov_b32 s61, 2560
    s_mov_b32 s62, 5120
    s_mov_b32 s63, 7680
    s_mov_b32 exec_lo, -1
    s_mov_b32 exec_hi, 0
    ''')
    n = 0
    for gg in range(5):
        for r in range(4):
            t = 104 + 2 * (n % 10)
            n += 1
            a(f'v_mov_b32 v{t}, v{OE+4*gg+r}\nv_mov_b32 v{t+1}, v{OO+4*gg+r}')
            a(f'buffer_store_dwordx2 v[{t}:{t+1}], v19, s[52:55], s{60+r} offen offset:{128*gg}')
    a('s_endpgm')


def k2():
    a = Asm()
    a('''
    s_cmp_ge_u32 s2, 256
    s_cbranch_scc1 K2_END
    s_load_dwordx2 s[4:5], s[0:1], 0
    s_load_dwordx4 s[8:11], s[0:1], 32
    s_load_dwordx2 s[14:15], s[0:1], 104
    v_lshrrev_b32 v1, 6, v0
    v_readfirstlane_b32 s3, v1
    s_and_b32 s16, s2, 7
    s_lshr_b32 s17, s2, 3
    s_cmp_ge_u32 s17, 20
    s_cbranch_scc1 K2_FFN
    ''')
    k2_conv(a)
    a.label('K2_FFN')
    k2_ffn(a)
    a.label('K2_END')
    a('s_endpgm')
    return a


def silu_block(a, regs, tmp):
    for r, t in zip(regs, tmp):
        a(f'v_mul_f32 v{t}, {NLOG2E}, v{r}')
    for r, t in zip(regs, tmp):
        a(f'v_exp_f32 v{t}, v{t}')
    for r, t in zip(regs, tmp):
        a(f'v_add_f32 v{t}, 1.0, v{t}')
    for r, t in zip(regs, tmp):
        a(f'v_rcp_f32 v{t}, v{t}')
    for r, t in zip(regs, tmp):
        a(f'v_mul_f32 v{r}, v{r}, v{t}')


def k3():
    a = Asm()
    a(f'''
    s_cmp_ge_u32 s2, 320
    s_cbranch_scc1 K3_END
    s_load_dwordx2 s[4:5], s[0:1], 0
    s_load_dwordx2 s[6:7], s[0:1], 88
    s_load_dwordx2 s[14:15], s[0:1], 104
    s_waitcnt lgkmcnt(0)
    s_add_u32 s8, s14, {WS_IDX}
    s_addc_u32 s9, s15, 0
    s_load_dwordx16 s[44:59], s[8:9], 0
    ''')
    a.srd(20, 4, NB)
    a.srd(24, 6, NB)
    a.srd(28, 14, NB, WS_Y2)
    a.srd(32, 14, 2048 * 8, WS_ST)
    a('''
    s_cmp_ge_u32 s2, 256
    s_cbranch_scc1 K3_ROW
    s_and_b32 s16, s2, 7
    s_lshr_b32 s17, s2, 3
    s_mul_i32 s16, s16, 80
    s_lshl_b32 s17, s17, 6
    v_lshrrev_b32 v1, 3, v0
    v_and_b32 v2, 7, v0
    v_lshl_add_u32 v1, v1, 1, s16
    v_lshl_add_u32 v2, v2, 3, s17
    v_mul_u32_u24 v3, 1280, v2
    v_lshl_add_u32 v3, v1, 1, v3
    v_lshlrev_b32 v4, 1, v2
    v_lshl_add_u32 v4, v1, 12, v4
    v_lshlrev_b32 v5, 3, v2
    s_mov_b32 s18, 5120
    s_mov_b32 s19, 4096
    ''')
    Q, ST, Y = 8, 16, 32
    for i in range(8):
        so = '0' if i < 4 else 's18'
        a(f'buffer_load_dword v{Q+i}, v3, s[20:23], {so} offen offset:{1280*(i%4)}')
    for i in range(4):
        a(f'buffer_load_dwordx4 v[{ST+4*i}:{ST+4*i+3}], v5, s[32:35], 0 offen offset:{16*i}')
    a(f'buffer_load_dwordx4 v[{Y}:{Y+3}], v4, s[28:31], 0 offen')
    a(f'buffer_load_dwordx4 v[{Y+4}:{Y+7}], v4, s[28:31], s19 offen')
    a('v_mov_b32 v6, 0\ns_waitcnt lgkmcnt(0)')
    for k in range(8):
        a(f'''
        v_sub_u32 v7, s{44+k}, v2
        v_cmp_gt_u32 vcc, 8, v7
        v_lshlrev_b32 v7, v7, 1
        v_cndmask_b32 v7, 0, v7, vcc
        v_or_b32 v6, v6, v7
        ''')
    X, N, T = 40, 56, 72
    E = [(hf, t) for t in range(8) for hf in range(2)]
    ix = lambda hf, t: 2 * t + hf
    a('s_waitcnt vmcnt(2)')
    for t in range(8):
        a(f'v_lshlrev_b32 v{X+2*t}, 16, v{Q+t}\nv_and_b32 v{X+2*t+1}, 0xffff0000, v{Q+t}')
    for hf, t in E:
        a(f'v_sub_f32 v{N+ix(hf,t)}, v{X+ix(hf,t)}, v{ST+2*t}')

    def round_pairs(base):
        for t in range(8):
            a(f'v_cvt_pk_bf16_f32 v{Q+t}, v{base+2*t}, v{base+2*t+1}')
        for t in range(8):
            a(f'v_lshlrev_b32 v{base+2*t}, 16, v{Q+t}\nv_and_b32 v{base+2*t+1}, 0xffff0000, v{Q+t}')
    round_pairs(N)
    for hf, t in E:
        a(f'v_mul_f32 v{N+ix(hf,t)}, v{N+ix(hf,t)}, v{ST+2*t+1}')
    round_pairs(N)
    S = 88
    a('s_waitcnt vmcnt(0)')
    for hf, t in E:
        src = Y + 4 * hf + t // 2
        if t % 2 == 0:
            a(f'v_lshlrev_b32 v{S+ix(hf,t)}, 16, v{src}')
        else:
            a(f'v_and_b32 v{S+ix(hf,t)}, 0xffff0000, v{src}')
    for i in range(16):
        a(f'v_mul_f32 v{S+i}, v{S+i}, v{N+i}')
    if not OPT['fin32']:
        round_pairs(S)
    silu_block(a, range(N, N + 16), range(T, T + 16))
    if not OPT['fin32']:
        round_pairs(N)
    for i in range(16):
        a(f'v_mul_f32 v{S+i}, v{S+i}, v{N+i}')
    if not OPT['fin32']:
        round_pairs(S)
    for i in range(16):
        a(f'v_add_f32 v{S+i}, v{S+i}, v{X+i}')
    for t in range(8):
        a(f'v_cvt_pk_bf16_f32 v{Q+t}, v{S+2*t}, v{S+2*t+1}')
        a(f'v_bfe_i32 v{T+t}, v6, {t}, 1')
        a(f'v_and_b32 v{T+t}, 0x80000000, v{T+t}')
        a(f'v_or_b32 v{T+t}, v{T+t}, v3')
    for i in range(8):
        so = '0' if i < 4 else 's18'
        a(f'buffer_store_dword v{Q+i}, v{T+i}, s[24:27], {so} offen offset:{1280*(i%4)}')
    a('s_endpgm')
    a.label('K3_ROW')
    a.srd(36, 14, 96 * 8 * 2560, WS_P)
    a(f'''
    s_sub_u32 s16, s2, 256
    s_lshr_b32 s17, s16, 3
    s_and_b32 s16, s16, 7
    s_mul_i32 s16, s16, 80
    s_mov_b32 s18, 0xcccd
    v_mul_u32_u24 v1, s18, v0
    v_lshrrev_b32 v1, 20, v1
    v_mul_u32_u24 v2, 20, v1
    v_sub_u32 v2, v0, v2
    s_mul_i32 s18, s17, 2560
    s_lshl_b32 s19, s16, 2
    s_add_u32 s18, s18, s19
    v_mul_u32_u24 v3, {8*2560}, v1
    v_lshl_add_u32 v3, v2, 4, v3
    v_add_u32 v3, s18, v3
    ''')
    for i in range(6):
        a(f's_mov_b32 s19, {i*16*8*2560}')
        a(f'buffer_load_dwordx4 v[{8+4*i}:{11+4*i}], v3, s[36:39], s19 offen')
    a('s_waitcnt lgkmcnt(0)')
    a('s_mov_b32 s60, s44\ns_mov_b32 s61, s52')
    for k in range(1, 8):
        a(f's_cmp_eq_u32 s17, {k}\ns_cselect_b32 s60, s{44+k}, s60\ns_cselect_b32 s61, s{52+k}, s61')
    a(f'''
    v_add_u32 v4, s16, v0
    s_mul_i32 s18, s60, 1280
    v_lshl_add_u32 v5, v4, 1, s18
    s_lshl_b32 s18, s60, 1
    v_lshl_add_u32 v6, v4, 12, s18
    s_lshl_b32 s18, s60, 3
    v_mov_b32 v7, s18
    v_cmp_gt_u32 vcc, 80, v0
    s_and_saveexec_b64 s[62:63], vcc
    s_cbranch_execz K3_R1
    buffer_load_ushort v40, v5, s[20:23], 0 offen
    buffer_load_ushort v41, v6, s[28:31], 0 offen
    buffer_load_dwordx2 v[42:43], v7, s[32:35], 0 offen
    ''')
    a.label('K3_R1')
    a('s_mov_b64 exec, -1\ns_waitcnt vmcnt(0)')
    for i in range(1, 6):
        for d in range(4):
            a(f'v_add_f32 v{8+d}, v{8+d}, v{8+4*i+d}')
    a(f'''
    v_lshlrev_b32 v44, 4, v0
    ds_write_b128 v44, v[8:11]
    s_waitcnt lgkmcnt(0)
    s_barrier
    s_and_saveexec_b64 s[64:65], vcc
    s_cbranch_execz K3_END
    v_lshlrev_b32 v44, 2, v0
    ''')
    for i in range(16):
        a(f'ds_read_b32 v{8+i}, v44 offset:{320*i}')
    a('s_waitcnt lgkmcnt(0)')
    for st in (8, 4, 2, 1):
        for i in range(st):
            a(f'v_add_f32 v{8+i}, v{8+i}, v{8+i+st}')
    rnd(a, 8, 8)
    a('v_mul_f32 v8, s61, v8')
    rnd(a, 8, 8)
    a('v_lshlrev_b32 v40, 16, v40\nv_lshlrev_b32 v41, 16, v41\nv_sub_f32 v9, v40, v42')
    rnd(a, 9, 9)
    a('v_mul_f32 v9, v9, v43')
    rnd(a, 9, 9)
    a('v_add_f32 v8, v8, v9')
    rnd(a, 8, 8)
    a('v_mul_f32 v9, v9, v41')
    rnd(a, 9, 9)
    silu_block(a, [8], [10])
    rnd(a, 8, 8)
    a('v_mul_f32 v8, v8, v9')
    rnd(a, 8, 8)
    a('''
    v_add_f32 v8, v8, v40
    v_cvt_pk_bf16_f32 v8, v8, v8
    buffer_store_short v8, v5, s[24:27], 0 offen
    ''')
    a.label('K3_END')
    a('s_endpgm')
    return a


def build(extra_empty=0):
    rep = []
    ks = [('prep_kernel', k1().text(rep)), ('conv_kernel', k2().text(rep)), ('fin_kernel', k3().text(rep))]
    ls = [('prep_kernel', 256, 576, 0), ('conv_kernel', 256, 256, 4 * CW_LDS), ('fin_kernel', 320, 320, 5120)]
    if extra_empty:
        ks.append(('nop_kernel', '    s_endpgm\n'))
        ls += [('nop_kernel', 256, 64, 0)] * extra_empty
    return module(HDR, ks, ls), rep


if __name__ == '__main__':
    out = sys.argv[1] if len(sys.argv) > 1 else 'v1.s'
    extra = int(sys.argv[2]) if len(sys.argv) > 2 else 0
    for o in sys.argv[3:]:
        OPT[o] = True
    s, rep = build(extra)
    open(out, 'w').write(s)
    print('wrote', out, len(s), 'bytes; nops inserted:', len(rep), 'states', sum(k for k, _ in rep))
```

```python
from asmlib import *
WS_STAMP = 32 << 20

def instrument(asm, kidx, nmid=0):
    out = []
    out += ['s_memrealtime s[90:91]', 's_load_dwordx2 s[88:89], s[0:1], 104', 's_mov_b32 s93, s2',
            'v_lshrrev_b32 v1, 6, v0', 's_nop 1', 'v_readfirstlane_b32 s92, v1', 's_waitcnt lgkmcnt(0)']
    n = 0
    for l in asm.lines:
        if l.startswith(';STAMP'):
            j = int(l.split()[1])
            out += [f's_memrealtime s[{80+2*j}:{81+2*j}]']
            continue
        if l.strip() == 's_endpgm':
            n += 1
            out += ['s_waitcnt vmcnt(0) lgkmcnt(0)', 's_memrealtime s[94:95]', 's_mov_b64 exec, 1',
                    f's_add_u32 s96, s88, {WS_STAMP + kidx*(1<<18)}', 's_addc_u32 s97, s89, 0', f's_mov_b32 s98, {1<<18}', 's_mov_b32 s99, 0x20000',
                    's_lshl_b32 s93, s93, 4', 's_add_u32 s93, s93, s92', 's_lshl_b32 s93, s93, 5', 'v_mov_b32 v0, s93',
                    's_waitcnt lgkmcnt(0)', 'v_mov_b32 v2, s90', 'v_mov_b32 v3, s94', 'v_mov_b32 v4, s80', 'v_mov_b32 v5, s82',
                    'v_mov_b32 v6, s84', 'v_mov_b32 v7, s86',
                    'buffer_store_dwordx4 v[2:5], v0, s[96:99], 0 offen', 'buffer_store_dwordx2 v[6:7], v0, s[96:99], 0 offen offset:16']
        out.append(l)
    asm.lines = out

def encoder(shapes, expr, base_ticks=6000, mult=10):
    a = Asm()
    a('s_cmp_ge_u32 s2, 1\ns_cbranch_scc1 ENC_END\ns_load_dwordx2 s[4:5], s[0:1], 104\ns_waitcnt lgkmcnt(0)')
    def reduce(kind, k, sdst, tag):
        nwg, nw = shapes[k]
        mx = kind.startswith('max'); off = 4 if kind.endswith('end') else 0
        op = 'max' if mx else 'min'
        a.srd(8, 4, 1 << 18, WS_STAMP + k*(1 << 18))
        a(f'v_mov_b32 v10, {0 if mx else -1}\ns_mov_b32 s20, 0')
        a.label(f'ENC_L{tag}')
        a(f'''
        v_add_u32 v1, s20, v0
        v_lshlrev_b32 v2, 9, v1
        v_cmp_gt_u32 vcc, {nwg}, v1
        s_and_saveexec_b64 s[22:23], vcc
        s_cbranch_execz ENC_S{tag}
        ''')
        for w in range(nw):
            a(f'buffer_load_dword v{20+w}, v2, s[8:11], 0 offen offset:{32*w+off}')
        a('s_waitcnt vmcnt(0)')
        for w in range(nw):
            a(f'v_{op}_u32 v10, v10, v{20+w}')
        a.label(f'ENC_S{tag}')
        a(f'''
        s_mov_b64 exec, -1
        s_add_u32 s20, s20, 64
        s_cmp_lt_u32 s20, {nwg}
        s_cbranch_scc1 ENC_L{tag}
        s_nop 4
        v_readlane_b32 s{sdst}, v10, 0
        ''')
        for l in range(1, 64):
            a(f'v_readlane_b32 s21, v10, {l}\ns_nop 0\ns_{op}_u32 s{sdst}, s{sdst}, s21')
    reduce('min_start', 0, 30, 'z')
    if expr is None:
        a('s_mov_b32 s31, 0')
    else:
        reduce(expr[0], expr[1], 31, 'a'); reduce(expr[2], expr[3], 32, 'b')
        a(f's_sub_u32 s31, s31, s32\ns_min_u32 s31, s31, 5000\ns_mul_i32 s31, s31, {mult}')
    a(f's_add_u32 s31, s31, {base_ticks}')
    a.label('ENC_W')
    a('''
    s_memrealtime s[34:35]
    s_waitcnt lgkmcnt(0)
    s_sub_u32 s34, s34, s30
    s_cmp_lt_u32 s34, s31
    s_cbranch_scc1 ENC_W
    ''')
    a.label('ENC_END')
    a('s_endpgm')
    return a
```

```python
import sys; sys.path.insert(0,'exp')
import gen1, diag
from asmlib import *
SZ = {0: 2621440, 8: 2621440, 16: 2621440, 32: 2621440, 48: 2621440, 64: 1966080, 72: 1966080, 80: 1966080}
def probe(slots, T, mod=''):
    a = Asm()
    a('s_cmp_ge_u32 s2, 256\ns_cbranch_scc1 P_END')
    for n, o in enumerate(slots):
        a(f's_load_dwordx2 s[{4+2*n}:{5+2*n}], s[0:1], {o}')
    a('s_waitcnt lgkmcnt(0)')
    r = 8
    for n, o in enumerate(slots):
        per = SZ[o] // 256
        a.srd(24, 4+2*n, SZ[o])
        a(f's_mul_i32 s28, s2, {per}\ns_add_u32 s26, s28, {per}\nv_lshlrev_b32 v1, 4, v0\nv_add_u32 v1, s28, v1')
        for i in range(-(-per // (T*16))):
            a(f's_mov_b32 s29, {i*T*16}\nbuffer_load_dwordx4 v[{r}:{r+3}], v1, s[24:27], s29 offen {mod}')
            r += 4
            if r > 120: r = 8
    a.label('P_END')
    a('s_endpgm')
    return a
def mk(name, slots, T, expr, mod=''):
    ks = [probe(slots, T, mod), gen1.k1(), gen1.k2(), gen1.k3()]
    diag.instrument(ks[0], 0)
    names = ['probe_kernel', 'prep_kernel','conv_kernel','fin_kernel']
    kk = [(n, k.text()) for n,k in zip(names, ks)] + [('enc_kernel', diag.encoder([(256, T//64)], expr, base_ticks=8000).text())]
    ls = [('probe_kernel', 256, T, 0), ('prep_kernel', 256, 576, 0), ('conv_kernel', 256, 256, 4*gen1.CW_LDS), ('fin_kernel', 320, 320, 5120), ('enc_kernel', 1, 64, 0)]
    open(f'exp/{name}.s','w').write(module(gen1.HDR, kk, ls))
E = ('max_end',0,'min_start',0)
mk('p_0', [0], 256, None)
mk('p_q', [0], 256, E)
mk('p_qkv', [0,8,16], 256, E)
mk('p_all', [0,8,16,32,64,72,80], 256, E)
mk('p_skew', [0], 256, ('max_start',0,'min_start',0))
mk('p_qkvnt', [0,8,16], 256, E, 'nt')
```

```python
import sys
from asmlib import *

KNAME = 'recurrent_scan__ssm_conv_h3__moe_arch_mod__prompt_kernel'
HDR = open('recurrent_scan__ssm_conv_h3__moe_arch_mod__prompt.s.ref').read().split('; Override launch')[0]

NB = 2048 * 1280
RS = 4224
WS_E = 0
WS_F1 = 4096
WS_F2 = 16384
WS_F3 = 24576
WS_IDX = 32768
WS_KEY = 64 << 10
WS_ST = 96 << 10
WS_UR = 1 << 20
WS_Y2 = 4 << 20
WS_P = 8 << 20
WS_SIZE = 16 << 20
NLOG2E = 0xbfb8aa3b
INV640 = 0x3acccccd
EPS = 0x3727c5ac
SPIN = 100000

H0_OFF, H1_OFF, U_OFF, CW_LDS = 0, 4160, 8288, 12864
L_G, L_U, L_D, L_MISC = 0, 20480, 40960, 61440
L_CNT, L_CAND, L_SLOT = L_MISC, L_MISC + 64, L_MISC + 192
LDS_BYTES = L_MISC + 512

OPT = dict(codepf=True)

S_WAVE, S_X, S_J, S_EP, S_CNT = 3, 16, 17, 56, 57
WS = 's[60:63]'
ONES, C_NL2E, C_ONE = 58, 70, 72


class K(Asm):
    def __init__(self):
        super().__init__()
        self.n = 0

    def lab(self, p):
        self.n += 1
        return f'{p}_{self.n}'

    def spin_begin(self, p):
        l = self.lab(p)
        self(f's_mov_b32 s{S_CNT}, 0')
        self.label(l)
        return l

    def spin_end_vcc(self, l):
        e = l + '_x'
        self(f'''
        s_cbranch_vccz {e}
        s_add_u32 s{S_CNT}, s{S_CNT}, 1
        s_cmp_lt_u32 s{S_CNT}, {SPIN}
        s_cbranch_scc1 {l}
        ''')
        self.label(e)

    def spin_end_exec(self, l, restore='-1'):
        e = l + '_x'
        self(f'''
        s_and_b64 exec, exec, vcc
        s_cbranch_execz {e}
        s_add_u32 s{S_CNT}, s{S_CNT}, 1
        s_cmp_lt_u32 s{S_CNT}, {SPIN}
        s_cbranch_scc1 {l}
        ''')
        self.label(e)
        self(f's_mov_b64 exec, {restore}')

    def maxtree(self, d, regs):
        regs = list(regs)
        self(f'v_max3_u32 v{d}, v{regs[0]}, v{regs[1]}, v{regs[2]}')
        regs = regs[3:]
        while len(regs) >= 2:
            self(f'v_max3_u32 v{d}, v{d}, v{regs[0]}, v{regs[1]}')
            regs = regs[2:]
        if regs:
            self(f'v_max_u32 v{d}, v{d}, v{regs[0]}')

    def tagcheck(self, d, regs):
        regs = list(regs)
        if len(regs) == 1:
            self(f'v_cmp_ne_u32 vcc, s{S_EP}, v{regs[0]}')
            return
        self(f'v_xor_b32 v{d}, v{regs[0]}, v{regs[1]}')
        for r in regs[2:]:
            self(f'v_xor_b32 v{d+1}, v{regs[0]}, v{r}\nv_or_b32 v{d}, v{d}, v{d+1}')
        self(f'v_xor_b32 v{d+1}, s{S_EP}, v{regs[0]}\nv_or_b32 v{d}, v{d}, v{d+1}\nv_cmp_ne_u32 vcc, 0, v{d}')

    def ldsync(self, vaddr, vtmp, slot):
        self(f'''
        v_mov_b32 v{vtmp}, 1
        s_mov_b64 exec, 1
        ds_add_u32 v{vaddr}, v{vtmp} offset:{4*slot}
        s_mov_b64 exec, -1
        ''')
        l = self.spin_begin('LS')
        self(f'''
        ds_read_b32 v{vtmp}, v{vaddr} offset:{4*slot}
        s_waitcnt lgkmcnt(0)
        v_cmp_gt_u32 vcc, 4, v{vtmp}
        ''')
        self.spin_end_vcc(l)


def rnd(a, d, s):
    a(f'v_cvt_pk_bf16_f32 v{d}, v{s}, v{s}')
    a(f'v_and_b32 v{d}, 0xffff0000, v{d}')


def unpack(a, d, s):
    a(f'v_lshlrev_b32 v{d}, 16, v{s}\nv_and_b32 v{d+1}, 0xffff0000, v{s}')


def pr(r):
    return f'v[{r}:{r+1}]'


def reduce32(a, v, t):
    for sh in (8, 4, 2, 1):
        a(f'v_add_f32_dpp v{v}, v{v}, v{v} row_ror:{sh} row_mask:0xf bank_mask:0xf')
    a(f'v_mov_b32 v{t}, v{v}\nv_permlane16_swap_b32 v{v}, v{t}\nv_add_f32 v{v}, v{v}, v{t}')


def tile_role(a):
    a(f'''
    s_sub_u32 s3, s3, 4
    s_mul_i32 s18, s{S_X}, 80
    s_lshl_b32 s19, s{S_J}, 6
    v_subrev_u32 v0, 256, v0
    v_lshrrev_b32 v1, 3, v0
    v_and_b32 v2, 7, v0
    v_lshl_add_u32 v1, v1, 1, s18
    v_lshl_add_u32 v2, v2, 3, s19
    v_mul_u32_u24 v3, 1280, v2
    v_lshl_add_u32 v3, v1, 1, v3
    v_subrev_u32 v4, 3840, v3
    v_cmp_eq_u32 vcc, 0, v2
    v_mov_b32 v5, 0x80000000
    v_cndmask_b32 v4, v4, v5, vcc
    v_lshlrev_b32 v5, 3, v1
    v_mul_u32_u24 v7, {RS}, v1
    v_lshlrev_b32 v8, 1, v2
    v_sub_u32 v6, {WS_UR + 4080}, v8
    v_add_u32 v6, v6, v7
    v_add_u32 v7, v7, v8
    v_add_u32 v7, {WS_Y2}, v7
    v_mov_b32 v88, -1
    v_mov_b32 v89, -1
    v_mov_b32 v90, -1
    v_mov_b32 v91, -1
    s_mov_b32 s18, 5120
    s_mov_b32 s19, {RS}
    s_waitcnt lgkmcnt(0)
    s_load_dword s{S_EP}, s[54:55], {WS_E}
    ''')
    a.srd(60, 54, WS_SIZE)
    a(f'''
    buffer_store_dwordx4 v[88:91], v6, {WS}, 0 offen sc1
    buffer_store_dwordx4 v[88:91], v6, {WS}, s19 offen sc1
    ''')
    a.srd(20, 6, NB)
    a.srd(28, 10, 640 * 8)
    KK, VV, W, WF, KF, S, P = 8, 20, 28, 32, 40, 64, 80
    a(f'buffer_load_dwordx4 v[{W}:{W+3}], v5, s[28:31], 0 offen')
    for i in range(3):
        a(f'buffer_load_dword v{KK+i}, v4, s[20:23], 0 offen offset:{1280*i}')
    for i in range(8):
        so = '0' if i < 4 else 's18'
        a(f'buffer_load_dword v{KK+3+i}, v3, s[20:23], {so} offen offset:{1280*(i%4)}')
    a.srd(24, 8, NB)
    for i in range(8):
        so = '0' if i < 4 else 's18'
        a(f'buffer_load_dword v{VV+i}, v3, s[24:27], {so} offen offset:{1280*(i%4)}')
    a.srd(32, 4, NB)
    a.srd(36, 52, NB)
    a(f'''
    s_barrier
    s_mul_i32 s40, s{S_X}, 5
    s_add_u32 s40, s40, s3
    s_lshl_b32 s40, s40, 5
    s_add_u32 s40, s40, s{S_J}
    s_lshl_b32 s40, s40, 2
    s_add_u32 s40, s40, {WS_F1}
    v_mov_b32 v92, s40
    s_mov_b32 s{C_NL2E}, {NLOG2E}
    s_mov_b32 s{C_NL2E+1}, {NLOG2E}
    s_mov_b32 s{C_ONE}, 1.0
    s_mov_b32 s{C_ONE+1}, 1.0
    s_waitcnt vmcnt(20) lgkmcnt(0)
    s_add_u32 s{S_EP}, s{S_EP}, 1
    v_mov_b32 v93, s{S_EP}
    s_mov_b64 exec, 1
    buffer_store_dword v93, v92, {WS}, 0 offen sc1
    s_mov_b64 exec, -1
    s_waitcnt vmcnt(20)
    ''')
    for j in range(4):
        for hf in range(2):
            src = W + 2 * hf + j // 2
            if j % 2 == 0:
                a(f'v_lshlrev_b32 v{WF+2*j+hf}, 16, v{src}')
            else:
                a(f'v_and_b32 v{WF+2*j+hf}, 0xffff0000, v{src}')
    a('s_waitcnt vmcnt(9)\n;STAMP 0')
    for i in range(11):
        unpack(a, KF + 2 * i, KK + i)
    for t in range(8):
        a(f'v_pk_mul_f32 {pr(S+2*t)}, {pr(KF+2*t)}, {pr(WF+6)}')
    for j in (2, 1, 0):
        for t in range(8):
            a(f'v_pk_fma_f32 {pr(S+2*t)}, {pr(KF+2*(t+3-j))}, {pr(WF+2*j)}, {pr(S+2*t)}')
    a('s_waitcnt vmcnt(1)')
    for t in range(8):
        unpack(a, KF + 2 * t, VV + t)
    for t in range(8):
        a(f'v_pk_mul_f32 {pr(S+2*t)}, {pr(S+2*t)}, {pr(KF+2*t)}')
    for hf in range(2):
        for m in range(4):
            a(f'v_cvt_pk_bf16_f32 v{P+4*hf+m}, v{S+2*(7-2*m)+hf}, v{S+2*(6-2*m)+hf}')
        so = '0' if hf == 0 else 's19'
        a(f'buffer_store_dwordx4 v[{P+4*hf}:{P+4*hf+3}], v6, {WS}, {so} offen sc1')
    a(';STAMP 1')
    Q, ST, X, F, T = 8, 16, 32, 48, 64
    for i in range(8):
        so = '0' if i < 4 else 's18'
        a(f'buffer_load_dword v{Q+i}, v3, s[32:35], {so} offen offset:{1280*(i%4)}')
    a(f'v_lshlrev_b32 v5, 3, v2\nv_add_u32 v5, {WS_ST}, v5')
    l = a.spin_begin('TS')
    for i in range(4):
        a(f'buffer_load_dwordx4 v[{ST+4*i}:{ST+4*i+3}], v5, {WS}, 0 offen offset:{16*i} sc1')
    a('s_waitcnt vmcnt(0)')
    a.tagcheck(T, [ST + 2 * i + 1 for i in range(8)])
    a.spin_end_exec(l)
    for t in range(8):
        a(f'v_and_b32 v{ST+2*t+1}, 0xffff0000, v{ST+2*t}')
        a(f'v_lshlrev_b32 v{ST+2*t}, 16, v{ST+2*t}')
        a(f'v_rcp_f32 v{ST+2*t+1}, v{ST+2*t+1}')
    for t in range(8):
        unpack(a, X + 2 * t, Q + t)
    for t in range(8):
        a(f'v_pk_add_f32 {pr(F+2*t)}, {pr(X+2*t)}, {pr(ST+2*t)} op_sel_hi:[1,0] neg_lo:[0,1] neg_hi:[0,1]')

    def round_pairs(base):
        for t in range(8):
            a(f'v_cvt_pk_bf16_f32 v{Q+t}, v{base+2*t}, v{base+2*t+1}')
        for t in range(8):
            unpack(a, base + 2 * t, Q + t)
    round_pairs(F)
    for t in range(8):
        a(f'v_pk_mul_f32 {pr(F+2*t)}, {pr(F+2*t)}, {pr(ST+2*t)} op_sel:[0,1] op_sel_hi:[1,1]')
    round_pairs(F)
    for t in range(8):
        a(f'v_pk_mul_f32 {pr(T+2*t)}, {pr(F+2*t)}, s[{C_NL2E}:{C_NL2E+1}]')
    for i in range(16):
        a(f'v_exp_f32 v{T+i}, v{T+i}')
    for t in range(8):
        a(f'v_pk_mul_f32 {pr(F+2*t)}, {pr(F+2*t)}, {pr(F+2*t)}')
        a(f'v_pk_add_f32 {pr(T+2*t)}, {pr(T+2*t)}, s[{C_ONE}:{C_ONE+1}]')
    for i in range(16):
        a(f'v_rcp_f32 v{T+i}, v{T+i}')
    for t in range(8):
        a(f'v_pk_mul_f32 {pr(F+2*t)}, {pr(F+2*t)}, {pr(T+2*t)}')
    a(';STAMP 2')
    a(f'''
    v_and_b32 v8, 7, v0
    v_lshlrev_b32 v8, 3, v8
    s_lshl_b32 s40, s{S_X}, 7
    s_add_u32 s40, s40, {WS_IDX}
    v_and_b32 v9, 15, v0
    v_lshlrev_b32 v9, 2, v9
    s_lshl_b32 s41, s{S_X}, 9
    s_lshl_b32 s42, s3, 6
    s_add_u32 s41, s41, s42
    s_add_u32 s41, s41, {WS_F2}
    ''')
    l = a.spin_begin('TI')
    a(f'''
    buffer_load_dwordx2 v[10:11], v8, {WS}, s40 offen sc1
    buffer_load_dword v12, v9, {WS}, s41 offen sc1
    s_waitcnt vmcnt(0)
    ''')
    a.tagcheck(14, [11, 12])
    a.spin_end_vcc(l)
    Y = 80
    a(f'buffer_load_dwordx4 v[{Y}:{Y+3}], v7, {WS}, 0 offen sc1')
    a(f'buffer_load_dwordx4 v[{Y+4}:{Y+7}], v7, {WS}, s19 offen sc1')
    a('v_mov_b32 v6, 0')
    for k in range(8):
        a(f'v_readlane_b32 s{44+k}, v10, {k}')
    for k in range(8):
        a(f'''
        v_sub_u32 v8, s{44+k}, v2
        v_cmp_gt_u32 vcc, 8, v8
        v_lshlrev_b32 v8, v8, 1
        v_cndmask_b32 v8, 0, v8, vcc
        v_or_b32 v6, v6, v8
        ''')
    AD = 16
    for t in range(8):
        a(f'v_bfe_i32 v{AD+t}, v6, {t}, 1\nv_and_b32 v{AD+t}, 0x80000000, v{AD+t}\nv_or_b32 v{AD+t}, v{AD+t}, v3')
    e = a.lab('TY0')
    a('s_waitcnt vmcnt(0)')
    a.maxtree(8, range(Y, Y + 8))
    a(f'v_cmp_eq_u32 vcc, -1, v8\ns_cbranch_vccz {e}\ns_mov_b64 exec, vcc')
    l = a.spin_begin('TY')
    a(f'buffer_load_dwordx4 v[{Y}:{Y+3}], v7, {WS}, 0 offen sc1')
    a(f'buffer_load_dwordx4 v[{Y+4}:{Y+7}], v7, {WS}, s19 offen sc1')
    a('s_waitcnt vmcnt(0)')
    a.maxtree(8, range(Y, Y + 8))
    a('v_cmp_eq_u32 vcc, -1, v8')
    a.spin_end_exec(l)
    a.label(e)
    a(';STAMP 3')
    for t in range(8):
        for hf in range(2):
            src = Y + 4 * hf + t // 2
            if t % 2 == 0:
                a(f'v_lshlrev_b32 v{T+2*t+hf}, 16, v{src}')
            else:
                a(f'v_and_b32 v{T+2*t+hf}, 0xffff0000, v{src}')
        a(f'v_pk_fma_f32 {pr(T+2*t)}, {pr(T+2*t)}, {pr(F+2*t)}, {pr(X+2*t)}')
        a(f'v_cvt_pk_bf16_f32 v{Q+t}, v{T+2*t}, v{T+2*t+1}')
        so = '0' if t < 4 else 's18'
        a(f'buffer_store_dword v{Q+t}, v{AD+t}, s[36:39], {so} offen offset:{1280*(t%4)}')
    a('s_endpgm')


LX, LW, LF = 72, 84, 96
HD, HX = 40, 56


def ln_loads(a):
    a(f'''
    s_lshl_b32 s18, s2, 3
    s_lshl_b32 s19, s3, 1
    s_add_u32 s18, s18, s19
    v_and_b32 v1, 63, v0
    v_lshrrev_b32 v2, 5, v1
    v_add_u32 v2, s18, v2
    v_and_b32 v3, 31, v1
    v_lshlrev_b32 v4, 4, v3
    v_lshlrev_b32 v5, 3, v3
    v_mul_u32_u24 v6, 1280, v2
    v_add_u32 v7, v6, v5
    v_add_u32 v6, v6, v4
    s_waitcnt lgkmcnt(0)
    s_load_dword s{S_EP}, s[54:55], {WS_E}
    ''')
    a.srd(20, 4, NB)
    a(f'''
    buffer_load_dwordx4 v[{LX}:{LX+3}], v6, s[20:23], 0 offen
    buffer_load_dwordx4 v[{LX+4}:{LX+7}], v6, s[20:23], 0 offen offset:512
    buffer_load_dwordx2 v[{LX+8}:{LX+9}], v7, s[20:23], 0 offen offset:1024
    ''')
    a.srd(24, 44, 1280)
    a(f'''
    buffer_load_dwordx4 v[{LW}:{LW+3}], v4, s[24:27], 0 offen
    buffer_load_dwordx4 v[{LW+4}:{LW+7}], v4, s[24:27], 0 offen offset:512
    buffer_load_dwordx2 v[{LW+8}:{LW+9}], v5, s[24:27], 0 offen offset:1024
    ''')
    a.srd(60, 54, WS_SIZE)


def ln_compute(a, later):
    A = 120
    a(f'''
    s_mov_b32 s{ONES}, 0x3f803f80
    s_mov_b32 s41, {INV640}
    s_waitcnt vmcnt({later+3})
    v_dot2_f32_bf16 v{A}, v{LX}, s{ONES}, 0
    ''')
    for i in range(1, 10):
        a(f'v_dot2_f32_bf16 v{A}, v{LX+i}, s{ONES}, v{A}')
    for i in range(3):
        unpack(a, LF + 2 * i, LX + i)
    for n, sh in enumerate((8, 4, 2, 1)):
        a(f'v_add_f32_dpp v{A}, v{A}, v{A} row_ror:{sh} row_mask:0xf bank_mask:0xf')
        unpack(a, LF + 2 * (3 + n), LX + 3 + n)
    a(f'v_mov_b32 v{A+1}, v{A}')
    unpack(a, LF + 14, LX + 7)
    a(f'v_permlane16_swap_b32 v{A}, v{A+1}')
    unpack(a, LF + 16, LX + 8)
    a(f'v_add_f32 v{A}, v{A}, v{A+1}')
    unpack(a, LF + 18, LX + 9)
    a(f'v_mul_f32 v{A}, s41, v{A}')
    rnd(a, A + 2, A)
    a(f'v_sub_f32 v{A}, v{A}, v{A+2}')
    for i in range(10):
        a(f'v_pk_add_f32 {pr(LF+2*i)}, {pr(LF+2*i)}, {pr(A+2)} op_sel_hi:[1,0] neg_lo:[0,1] neg_hi:[0,1]')
    a(f'v_pk_mul_f32 {pr(A+4)}, {pr(LF)}, {pr(LF)}')
    for i in range(1, 10):
        a(f'v_pk_fma_f32 {pr(A+4)}, {pr(LF+2*i)}, {pr(LF+2*i)}, {pr(A+4)}')
    a(f'v_add_f32 v{A+4}, v{A+4}, v{A+5}')
    cv = [f'v_cvt_pk_bf16_f32 v{LX+i}, v{LF+2*i}, v{LF+2*i+1}' for i in range(10)]
    a(cv.pop(0) + '\n' + cv.pop(0))
    for sh in (8, 4, 2, 1):
        a(f'v_add_f32_dpp v{A+4}, v{A+4}, v{A+4} row_ror:{sh} row_mask:0xf bank_mask:0xf')
        a(cv.pop(0) + '\n' + cv.pop(0))
    a(f'v_mov_b32 v{A+1}, v{A+4}')
    unpack(a, LF, LX)
    a(f'v_permlane16_swap_b32 v{A+4}, v{A+1}')
    a(f'''
    v_add_f32 v{A+4}, v{A+4}, v{A+1}
    v_mul_f32 v{A+4}, s41, v{A+4}
    v_fma_f32 v{A+4}, -v{A}, v{A}, v{A+4}
    v_max_f32 v{A+4}, 0, v{A+4}
    ''')
    rnd(a, A + 4, A + 4)
    a(f'v_add_f32 v{A+4}, {EPS}, v{A+4}')
    rnd(a, A + 4, A + 4)
    a(f'v_sqrt_f32 v{A+4}, v{A+4}')
    unpack(a, LF + 2, LX + 1)
    rnd(a, A + 4, A + 4)
    a(f'v_rcp_f32 v{A+3}, v{A+4}')
    for i in range(2, 10):
        unpack(a, LF + 2 * i, LX + i)
    for i in range(10):
        a(f'v_pk_mul_f32 {pr(LF+2*i)}, {pr(LF+2*i)}, {pr(A+2)} op_sel:[0,1] op_sel_hi:[1,1]')
    for i in range(10):
        a(f'v_cvt_pk_bf16_f32 v{LX+i}, v{LF+2*i}, v{LF+2*i+1}')
    a(f's_waitcnt vmcnt({later})')
    a(f'v_dot2_f32_bf16 v{A+6}, v{LX}, v{LW}, 0')
    for i in range(1, 10):
        a(f'v_dot2_f32_bf16 v{A+6}, v{LX+i}, v{LW+i}, v{A+6}')
    a(f'''
    v_lshrrev_b32 v{A+2}, 16, v{A+2}
    v_or_b32 v{LF}, v{A+2}, v{A+4}
    v_lshlrev_b32 v{LF+4}, 3, v2
    s_waitcnt lgkmcnt(0)
    s_add_u32 s{S_EP}, s{S_EP}, 1
    v_mov_b32 v{LF+1}, s{S_EP}
    v_mov_b32 v{LF+3}, s{S_EP}
    ''')
    reduce32(a, A + 6, A + 1)
    a(f'''
    v_add_f32 v{A+6}, 0, v{A+6}
    v_cvt_pk_bf16_f32 v{A+6}, v{A+6}, v{A+6}
    v_ashrrev_i32 v{A+7}, 31, v{A+6}
    v_or_b32 v{A+7}, 0x80000000, v{A+7}
    v_xor_b32 v{A+6}, v{A+6}, v{A+7}
    v_and_b32 v{A+6}, 0xffff0000, v{A+6}
    v_sub_u32 v{A+7}, 2047, v2
    v_or_b32 v{LF+2}, v{A+6}, v{A+7}
    s_mov_b32 s40, {WS_KEY}
    s_mov_b32 s41, {WS_ST}
    s_mov_b32 exec_lo, 1
    s_mov_b32 exec_hi, 1
    buffer_store_dwordx2 v[{LF+2}:{LF+3}], v{LF+4}, {WS}, s40 offen sc1
    buffer_store_dwordx2 v[{LF}:{LF+1}], v{LF+4}, {WS}, s41 offen sc1
    s_mov_b64 exec, -1
    ''')


def lds_schedule(a, ops):
    issued, pos, done = 0, {}, 0
    for o in ops:
        if o[0] == 'ld':
            a(o[1])
            issued += 1
            pos[o[2]] = issued
        else:
            needp = max(pos[k] for k in o[2])
            if needp > done:
                n = issued - needp
                n = min(n, 15)
                a(f's_waitcnt lgkmcnt({n})')
                done = issued - n
            a(o[1])


def conv_role(a):
    a(f'''
    s_mul_i32 s18, s{S_X}, 80
    s_lshl_b32 s19, s{S_J}, 2
    s_add_u32 s19, s19, s3
    s_add_u32 s64, s18, s19
    s_lshl_b32 s65, s64, 12
    s_mul_i32 s66, s64, {RS}
    s_mul_i32 s67, s3, {CW_LDS}
    v_lshlrev_b32 v8, 4, v1
    ''')
    a.srd(28, 12, NB)
    for m in range(4):
        a(f'buffer_load_dwordx4 v[{HD+4*m}:{HD+4*m+3}], v8, s[28:31], s65 offen offset:{1024*m}')
        a(f'buffer_load_dword v{HX+m}, v8, s[28:31], s65 offen offset:{1024*m+16}')
    a(f'''
    s_lshl_b32 s40, s64, 1
    s_and_b32 s40, s40, 0xfffffffc
    s_add_u32 s14, s14, s40
    s_addc_u32 s15, s15, 0
    s_load_dword s68, s[14:15], 0
    s_barrier
    v_add_u32 v9, s67, v8
    v_mov_b32 v12, 0
    v_mov_b32 v13, 0
    v_mov_b32 v14, 0
    v_mov_b32 v15, 0
    s_mov_b64 exec, 0x3fffffff
    ds_write_b128 v9, v[12:15] offset:{U_OFF+4096}
    s_mov_b64 exec, 3
    ds_write_b128 v9, v[12:15] offset:{H0_OFF}
    ds_write_b128 v9, v[12:15] offset:{H1_OFF}
    s_mov_b64 exec, -1
    ''')
    ln_compute(a, 8)
    a(';STAMP 0')
    AA, GA = 112, 116
    a(f'''
    v_mov_b32 v12, -1
    v_mov_b32 v13, -1
    v_mov_b32 v14, -1
    v_mov_b32 v15, -1
    s_add_u32 s40, s66, {WS_Y2}
    ''')
    for m in range(4):
        a(f'buffer_store_dwordx4 v[12:15], v8, {WS}, s40 offen offset:{1024*m} sc1')
    a(f'''
    v_and_b32 v10, 15, v1
    v_lshrrev_b32 v11, 4, v1
    v_and_b32 v16, 1, v10
    v_add_u32 v{AA}, v10, v16
    v_lshlrev_b32 v{AA}, 1, v{AA}
    v_lshl_add_u32 v{AA}, v11, 4, v{AA}
    v_xor_b32 v16, 1, v16
    v_mul_u32_u24 v16, {H1_OFF}, v16
    v_add3_u32 v{AA}, v{AA}, v16, s67
    v_add_u32 v{AA+1}, 1024, v{AA}
    v_add_u32 v{AA+2}, 2048, v{AA}
    v_add_u32 v{AA+3}, 3072, v{AA}
    v_lshlrev_b32 v{GA}, 5, v10
    v_sub_u32 v{GA}, {U_OFF+480}, v{GA}
    v_lshl_add_u32 v{GA}, v11, 4, v{GA}
    v_add_u32 v{GA}, s67, v{GA}
    v_lshlrev_b32 v{GA+1}, 5, v10
    v_lshl_add_u32 v{GA+1}, v11, 3, v{GA+1}
    v_sub_u32 v{GA+2}, {U_OFF+2*2044-3584}, v{GA+1}
    v_add_u32 v{GA+2}, s67, v{GA+2}
    s_waitcnt vmcnt(6)
    ''')
    for m in range(4):
        a(f'ds_write_b128 v9, v[{HD+4*m}:{HD+4*m+3}] offset:{H0_OFF+32+1024*m}')
        T = 20 + 4 * m
        for d in range(4):
            hi = HD + 4 * m + d + 1 if d < 3 else HX + m
            a(f'v_alignbyte_b32 v{T+d}, v{hi}, v{HD+4*m+d}, 2')
        a(f'ds_write_b128 v9, v[{T}:{T+3}] offset:{H1_OFF+32+1024*m}')
    a(f'''
    v_lshlrev_b32 v16, 16, v{HD}
    s_mov_b64 exec, 1
    ds_write_b32 v9, v16 offset:{H1_OFF+28}
    s_mov_b64 exec, -1
    s_mul_i32 s40, s{S_X}, 5
    s_lshr_b32 s41, s{S_J}, 2
    s_add_u32 s40, s40, s41
    s_lshl_b32 s40, s40, 7
    s_add_u32 s40, s40, {WS_F1}
    v_and_b32 v16, 31, v1
    v_lshlrev_b32 v16, 2, v16
    ''')
    l = a.spin_begin('CF')
    a(f'buffer_load_dword v17, v16, {WS}, s40 offen sc1\ns_waitcnt vmcnt(0)')
    a.tagcheck(18, [17])
    a.spin_end_vcc(l)
    UD = 72
    a(f'''
    s_lshl_b32 s40, s{S_X}, 9
    s_lshl_b32 s41, s19, 2
    s_add_u32 s40, s40, s41
    s_add_u32 s40, s40, {WS_F2}
    v_mov_b32 v16, s40
    v_mov_b32 v17, s{S_EP}
    s_mov_b64 exec, 1
    buffer_store_dword v17, v16, {WS}, 0 offen sc1
    s_mov_b64 exec, -1
    s_add_u32 s40, s66, {WS_UR}
    ''')
    ACC, AF, GF = 8, 40, 72

    def ldA(g, rho):
        o = 128 * (g & 1) + 16 * rho
        r = AF + 4 * g
        return [('ld', f'ds_read2_b32 v[{r}:{r+1}], v{AA+g//2} offset0:{o} offset1:{o+1}', ('A0', g, rho)),
                ('ld', f'ds_read2_b32 v[{r+2}:{r+3}], v{AA+g//2} offset0:{o+2} offset1:{o+3}', ('A', g, rho))]

    def greg(d, rho):
        return GF + 4 * d if (d >= 2 or rho % 2 == 0) else GF + 32 + 4 * d

    def ldG(d, rho):
        r = greg(d, rho)
        return [('ld', f'ds_read_b128 v[{r}:{r+3}], v{GA} offset:{512*(7-d)+64*rho}', ('G', d, rho))]
    for g in range(7, -1, -1):
        for o in ldA(g, 0):
            a(o[1])
    l = a.spin_begin('CU')
    for m in range(4):
        a(f'buffer_load_dwordx4 v[{UD+4*m}:{UD+4*m+3}], v8, {WS}, s40 offen offset:{1024*m} sc1')
    a('s_waitcnt vmcnt(0)')
    a.maxtree(18, range(UD, UD + 16))
    a('v_cmp_eq_u32 vcc, -1, v18')
    a.spin_end_exec(l)
    a(';STAMP 1')
    for m in range(4):
        a(f'ds_write_b128 v9, v[{UD+4*m}:{UD+4*m+3}] offset:{U_OFF+1024*m}')
    a('s_waitcnt lgkmcnt(0)')
    ops = []
    for d in range(8):
        ops += ldG(d, 0)
    first = set()
    for rho in range(8):
        nxt = rho + 1 < 8
        for g in range(7, -1, -1):
            for d in range(8 - g):
                i = g + d
                c = f'v[{ACC+4*i}:{ACC+4*i+3}]' if i in first else '0'
                first.add(i)
                keys = [('G', d, rho)] + ([('A', g, rho)] if rho else [])
                r = greg(d, rho)
                ops.append(('mfma', f'v_mfma_f32_16x16x32_bf16 v[{ACC+4*i}:{ACC+4*i+3}], v[{AF+4*g}:{AF+4*g+3}], v[{r}:{r+3}], {c}', keys))
                if nxt and g == 0 and d >= 2:
                    ops += ldG(d, rho + 1)
                if nxt and g == 3 and d < 2:
                    ops += ldG(d, rho + 1)
            if nxt:
                ops += ldA(g, rho + 1)
    lds_schedule(a, ops)
    UU, T = 40, 72
    for i in range(8):
        a(f'ds_read_b64 v[{UU+2*i}:{UU+2*i+1}], v{GA+2} offset:{512*(7-i)}')
    a(f'''
    s_and_b32 s41, s64, 1
    s_lshl_b32 s41, s41, 4
    s_lshr_b32 s68, s68, s41
    s_and_b32 s68, s68, 0xffff
    s_lshl_b32 s69, s68, 16
    s_add_u32 s40, s66, {WS_Y2}
    s_waitcnt lgkmcnt(0)
    ;STAMP 2
    ''')
    for i in range(8):
        for r in range(4):
            src = UU + 2 * i + (1 if r < 2 else 0)
            sel = 's69' if r % 2 == 0 else 's68'
            a(f'v_dot2_f32_bf16 v{T+4*i+r}, v{src}, {sel}, v{ACC+4*i+r}')
        if i:
            p = i - 1
            a(f'v_cvt_pk_bf16_f32 v{UU+2*p}, v{T+4*p}, v{T+4*p+1}')
            a(f'v_cvt_pk_bf16_f32 v{UU+2*p+1}, v{T+4*p+2}, v{T+4*p+3}')
            a(f'buffer_store_dwordx2 v[{UU+2*p}:{UU+2*p+1}], v{GA+1}, {WS}, s40 offen offset:{512*p} sc1')
    p = 7
    a(f'v_cvt_pk_bf16_f32 v{UU+2*p}, v{T+4*p}, v{T+4*p+1}')
    a(f'v_cvt_pk_bf16_f32 v{UU+2*p+1}, v{T+4*p+2}, v{T+4*p+3}')
    a(f'buffer_store_dwordx2 v[{UU+2*p}:{UU+2*p+1}], v{GA+1}, {WS}, s40 offen offset:{512*p} sc1')
    a('s_endpgm')


SORT8 = [(0, 1), (2, 3), (4, 5), (6, 7), (0, 2), (1, 3), (4, 6), (5, 7), (1, 2), (5, 6), (0, 4), (3, 7), (1, 5), (2, 6), (1, 4), (3, 6), (2, 4), (3, 5), (3, 4)]
TOKMASK = ('s_mov_b32 exec_lo, 0x00ff00ff\ns_mov_b32 exec_hi, 0x00ff00ff')


def silu(a, regs, tmp):
    for r, t in zip(regs, tmp):
        a(f'v_mul_f32 v{t}, {NLOG2E}, v{r}')
    for r, t in zip(regs, tmp):
        a(f'v_exp_f32 v{t}, v{t}')
    for r, t in zip(regs, tmp):
        a(f'v_add_f32 v{t}, 1.0, v{t}')
    for r, t in zip(regs, tmp):
        a(f'v_rcp_f32 v{t}, v{t}')
    for r, t in zip(regs, tmp):
        a(f'v_mul_f32 v{r}, v{r}, v{t}')


def ffn_role(a):
    a(f'''
    s_sub_u32 s65, s{S_J}, 20
    s_mul_i32 s64, s{S_X}, 12
    s_add_u32 s64, s64, s65
    v_lshrrev_b32 v8, 1, v1
    v_mul_u32_u24 v8, 3072, v8
    v_and_b32 v9, 1, v1
    v_lshl_add_u32 v8, v9, 4, v8
    s_mul_i32 s40, s3, {160*3072}
    s_lshl_b32 s41, s64, 5
    s_add_u32 s40, s40, s41
    s_mul_i32 s42, s3, 5120
    ''')
    a.srd(28, 46, 640 * 3072)
    a.srd(32, 48, 640 * 3072)
    a.srd(36, 50, 1536 * 1280)
    for c in range(5):
        a(f'''
        s_add_u32 m0, s42, {L_G + 1024*c}
        buffer_load_dwordx4 v8, s[28:31], s40 offen lds
        s_add_u32 m0, s42, {L_U + 1024*c}
        buffer_load_dwordx4 v8, s[32:35], s40 offen lds
        ''')
        if c < 4:
            a(f's_add_u32 s40, s40, {32*3072}')
    a(f'''
    s_mul_i32 s40, s64, {16*1280}
    s_mul_i32 s41, s3, 320
    s_add_u32 s40, s40, s41
    s_mov_b32 s41, 0xcccd
    ''')
    for c in range(5):
        a(f'''
        v_add_u32 v9, {64*c}, v1
        v_mul_u32_u24 v10, s41, v9
        v_lshrrev_b32 v10, 20, v10
        v_mul_u32_u24 v10, {1280-320}, v10
        v_lshl_add_u32 v9, v9, 4, v10
        s_add_u32 m0, s42, {L_D + 1024*c}
        buffer_load_dwordx4 v9, s[36:39], s40 offen lds
        ''')
    a(f'''
    v_mov_b32 v12, 0
    v_mov_b32 v13, 0
    v_mov_b32 v14, 0
    v_mov_b32 v15, 0
    v_mov_b32 v11, {L_CNT}
    ds_write_b128 v11, v[12:15]
    s_waitcnt lgkmcnt(0)
    s_barrier
    ''')
    ln_compute(a, 15)
    a(f'''
    v_and_b32 v2, 15, v1
    v_lshrrev_b32 v3, 4, v1
    v_mul_u32_u24 v10, 2560, v2
    v_lshl_add_u32 v10, v3, 4, v10
    s_mul_i32 s66, s64, 20480
    s_mul_i32 s41, s3, 640
    s_add_u32 s66, s66, s41
    s_add_u32 s66, s66, {WS_P}
    v_mov_b32 v12, -1
    v_mov_b32 v13, -1
    v_mov_b32 v14, -1
    v_mov_b32 v15, -1
    {TOKMASK}
    ''')
    for nt in range(10):
        a(f'buffer_store_dwordx4 v[12:15], v10, {WS}, s66 offen offset:{64*nt} sc1')
    KG = 16
    a(f'''
    s_mov_b64 exec, -1
    v_lshlrev_b32 v4, 6, v0
    s_mov_b32 s40, {WS_KEY}
    ''')
    l = a.spin_begin('FK')
    for i in range(4):
        a(f'buffer_load_dwordx4 v[{KG+4*i}:{KG+4*i+3}], v4, {WS}, s40 offen offset:{16*i} sc1')
    a('s_waitcnt vmcnt(0)')
    a.tagcheck(32, [KG + 2 * i + 1 for i in range(8)])
    a.spin_end_exec(l)
    a(f'''
    ;STAMP 0
    s_lshl_b32 s40, s3, 9
    s_lshl_b32 s41, s64, 2
    s_add_u32 s40, s40, s41
    s_add_u32 s40, s40, {WS_F3}
    v_mov_b32 v4, s40
    v_mov_b32 v5, s{S_EP}
    s_mov_b64 exec, 1
    buffer_store_dword v5, v4, {WS}, 0 offen sc1
    s_mov_b64 exec, -1
    ''')
    key = [KG + 2 * i for i in range(8)]
    spare = KG + 1
    for (i, j) in SORT8:
        a(f'v_max_u32 v{spare}, v{key[i]}, v{key[j]}\nv_min_u32 v{key[j]}, v{key[i]}, v{key[j]}')
        key[i], spare = spare, key[i]
    a('v_mov_b32 v34, 0')
    for rd in range(8):
        a(f'v_max_u32_dpp v33, v{key[0]}, v{key[0]} row_ror:8 row_mask:0xf bank_mask:0xf')
        for sh in (4, 2, 1):
            a(f'v_max_u32_dpp v33, v33, v33 row_ror:{sh} row_mask:0xf bank_mask:0xf')
        a('''
        v_readlane_b32 s40, v33, 0
        v_readlane_b32 s41, v33, 16
        v_readlane_b32 s42, v33, 32
        v_readlane_b32 s43, v33, 48
        s_max_u32 s40, s40, s41
        s_max_u32 s42, s42, s43
        s_max_u32 s40, s40, s42
        ''')
        if rd < 7:
            a(f'v_cmp_eq_u32 vcc, s40, v{key[0]}')
        a(f'v_writelane_b32 v34, s40, {rd}')
        for i in range(7 - rd):
            a(f'v_cndmask_b32 v{key[i]}, v{key[i]}, v{key[i+1]}, vcc')
    a(f'''
    s_lshl_b32 s40, s3, 5
    s_add_u32 s40, s40, {L_CAND}
    v_lshl_add_u32 v35, v1, 2, s40
    s_mov_b64 exec, 0xff
    ds_write_b32 v35, v34
    s_mov_b64 exec, -1
    ''')
    a.ldsync(11, 35, 0)
    a(f'''
    v_and_b32 v35, 31, v1
    v_lshlrev_b32 v35, 2, v35
    ds_read_b32 v34, v35 offset:{L_CAND}
    ''')
    CA = 40
    for i in range(8):
        a(f'ds_read_b128 v[{CA+4*i}:{CA+4*i+3}], v11 offset:{L_CAND-L_CNT+16*i}')
    a('v_mov_b32 v36, 0\ns_waitcnt lgkmcnt(0)')
    sp = lambda i: f's[{72+2*(i%4)}:{73+2*(i%4)}]'
    for i in range(32):
        a(f'v_cmp_gt_u32 {sp(i)}, v{CA+i}, v34')
        if i >= 2:
            a(f'v_addc_co_u32 v36, vcc, 0, v36, {sp(i-2)}')
    for i in (30, 31):
        a(f'v_addc_co_u32 v36, vcc, 0, v36, {sp(i)}')
    a(f'''
    s_lshl_b32 s40, s3, 5
    s_add_u32 s40, s40, {L_SLOT}
    v_lshl_add_u32 v35, v36, 2, s40
    v_cmp_gt_u32 vcc, 8, v36
    s_mov_b64 exec, vcc
    ds_write_b32 v35, v34
    s_mov_b64 exec, -1
    v_and_b32 v35, 7, v1
    v_lshl_add_u32 v35, v35, 2, s40
    ds_read_b32 v34, v35
    s_mul_i32 s40, s3, 320
    v_lshl_add_u32 v36, v3, 4, s40
    v_bfe_u32 v37, v1, 3, 1
    v_lshl_add_u32 v36, v37, 6, v36
    s_mov_b32 s41, {WS_ST}
    s_waitcnt lgkmcnt(0)
    ;STAMP 1
    v_and_b32 v35, 0x7ff, v34
    v_sub_u32 v35, 2047, v35
    v_mul_u32_u24 v37, 1280, v35
    v_add_u32 v36, v36, v37
    v_lshlrev_b32 v37, 3, v35
    ''')
    XP = 40
    for p in range(3):
        a(f'buffer_load_dwordx4 v[{XP+4*p}:{XP+4*p+3}], v36, s[20:23], 0 offen offset:{128*p}')
    l = a.spin_begin('FS')
    a(f'buffer_load_dwordx2 v[38:39], v37, {WS}, s41 offen sc1')
    a('s_waitcnt vmcnt(0)')
    a.tagcheck(32, [39])
    a.spin_end_vcc(l)
    WA = 72
    a(f'''
    v_lshrrev_b32 v4, 2, v2
    v_and_b32 v5, 3, v2
    v_lshlrev_b32 v6, 5, v4
    v_lshl_add_u32 v6, v5, 3, v6
    v_lshl_add_u32 v6, v3, 8, v6
    s_mul_i32 s42, s3, 5120
    v_add_u32 v6, s42, v6
    ''')
    for c in range(5):
        for mt, base in enumerate((L_G, L_U)):
            r = WA + 8 * c + 4 * mt
            a(f'ds_read_b64_tr_b16 v[{r}:{r+1}], v6 offset:{base+1024*c}')
            a(f'ds_read_b64_tr_b16 v[{r+2}:{r+3}], v6 offset:{base+1024*c+128}')
    sk = a.lab('FI')
    a(f'''
    s_or_b32 s40, s65, s3
    s_cmp_lg_u32 s40, 0
    s_cbranch_scc1 {sk}
    v_mov_b32 v32, v35
    v_mov_b32 v33, s{S_EP}
    v_lshlrev_b32 v7, 3, v1
    s_lshl_b32 s40, s{S_X}, 7
    s_add_u32 s40, s40, {WS_IDX}
    s_mov_b64 exec, 0xff
    buffer_store_dwordx2 v[32:33], v7, {WS}, s40 offen sc1
    s_mov_b64 exec, -1
    ''')
    a.label(sk)
    XF = 112
    a(f'''
    v_and_b32 v39, 0xffff0000, v38
    v_lshlrev_b32 v38, 16, v38
    v_rcp_f32 v39, v39
    ''')
    for i in range(12):
        unpack(a, XF + 2 * i, XP + i)
    for i in range(12):
        a(f'v_pk_add_f32 {pr(XF+2*i)}, {pr(XF+2*i)}, {pr(38)} op_sel_hi:[1,0] neg_lo:[0,1] neg_hi:[0,1]')
    for i in range(12):
        a(f'v_cvt_pk_bf16_f32 v{XP+i}, v{XF+2*i}, v{XF+2*i+1}')
    for i in range(12):
        unpack(a, XF + 2 * i, XP + i)
    for i in range(12):
        a(f'v_pk_mul_f32 {pr(XF+2*i)}, {pr(XF+2*i)}, {pr(38)} op_sel:[0,1] op_sel_hi:[1,1]')
    for i in range(12):
        a(f'v_cvt_pk_bf16_f32 v{XP+i}, v{XF+2*i}, v{XF+2*i+1}')
    XO = 52
    for i in range(8):
        a(f'v_mov_b32_dpp v{XO+i}, v{XP+i} row_ror:8 row_mask:0xf bank_mask:0xf')
    a('s_waitcnt lgkmcnt(0)')
    for c in (0, 2, 4, 1, 3):
        xr = XP + 4 * (c // 2) if c % 2 == 0 else XO + 4 * (c // 2)
        for mt in range(2):
            acc = 60 + 4 * mt
            r = WA + 8 * c + 4 * mt
            cc = '0' if c == 0 else f'v[{acc}:{acc+3}]'
            a(f'v_mfma_f32_16x16x32_bf16 v[{acc}:{acc+3}], v[{r}:{r+3}], v[{xr}:{xr+3}], {cc}')
    WDN = 72
    a(f'''
    v_lshl_add_u32 v6, v3, 2, v4
    v_mul_u32_u24 v6, 320, v6
    v_lshl_add_u32 v6, v5, 3, v6
    v_add_u32 v6, s42, v6
    v_lshl_add_u32 v7, v1, 4, s42
    ''')
    a(f'ds_write_b128 v7, v[60:63] offset:{L_G}\nds_write_b128 v7, v[64:67] offset:{L_G+1024}')
    for nt in range(10):
        a(f'ds_read_b64_tr_b16 v[{WDN+2*nt}:{WDN+2*nt+1}], v6 offset:{L_D+32*nt}')
    a.ldsync(11, 32, 1)
    R = 96
    a('v_lshlrev_b32 v7, 4, v1')
    for w in range(4):
        for mt in range(2):
            a(f'ds_read_b128 v[{R+8*w+4*mt}:{R+8*w+4*mt+3}], v7 offset:{L_G+5120*w+1024*mt}')
    a('s_waitcnt lgkmcnt(0)')
    for i in range(4):
        a(f'v_pk_add_f32 {pr(R+2*i)}, {pr(R+2*i)}, {pr(R+8+2*i)}')
        a(f'v_pk_add_f32 {pr(R+16+2*i)}, {pr(R+16+2*i)}, {pr(R+24+2*i)}')
    for i in range(4):
        a(f'v_pk_add_f32 {pr(R+2*i)}, {pr(R+2*i)}, {pr(R+16+2*i)}')
    for i in range(4):
        a(f'v_cvt_pk_bf16_f32 v{R+8+i}, v{R+2*i}, v{R+2*i+1}')
    for i in range(4):
        unpack(a, R + 2 * i, R + 8 + i)
    silu(a, range(R, R + 4), range(R + 8, R + 12))
    for i in range(2):
        a(f'v_cvt_pk_bf16_f32 v{R+8+i}, v{R+2*i}, v{R+2*i+1}')
    for i in range(2):
        unpack(a, R + 2 * i, R + 8 + i)
    for i in range(2):
        a(f'v_pk_mul_f32 {pr(R+2*i)}, {pr(R+2*i)}, {pr(R+4+2*i)}')
    for i in range(2):
        a(f'v_cvt_pk_bf16_f32 v{60+i}, v{R+2*i}, v{R+2*i+1}')
    O = 96
    for nt in range(10):
        a(f'v_mfma_f32_16x16x16_bf16 v[{O+4*nt}:{O+4*nt+3}], v[{WDN+2*nt}:{WDN+2*nt+1}], v[60:61], 0')
    a(TOKMASK)
    for nt in range(10):
        a(f'buffer_store_dwordx4 v[{O+4*nt}:{O+4*nt+3}], v10, {WS}, s66 offen offset:{64*nt} sc1')
    a(f'''
    s_mov_b64 exec, -1
    ;STAMP 2
    s_cmp_ge_u32 s65, 8
    s_cbranch_scc1 K_END
    ''')
    a(f'''
    v_readlane_b32 s44, v35, s65
    v_readlane_b32 s45, v34, s65
    s_mov_b32 s41, 0xcccd
    v_mul_u32_u24 v4, s41, v0
    v_lshrrev_b32 v4, 20, v4
    v_mul_u32_u24 v5, {20480-320}, v4
    v_lshl_add_u32 v5, v0, 4, v5
    s_mul_i32 s40, s65, 2560
    s_mul_i32 s41, s{S_X}, 320
    s_add_u32 s40, s40, s41
    s_add_u32 s40, s40, {WS_P}
    v_add_u32 v5, s40, v5
    v_min_u32 v6, 47, v1
    v_lshlrev_b32 v6, 3, v6
    v_min_u32 v7, 39, v1
    v_lshlrev_b32 v7, 3, v7
    s_lshr_b32 s40, s{S_X}, 1
    s_lshl_b32 s40, s40, 9
    s_add_u32 s40, s40, {WS_F3}
    s_lshl_b32 s41, s{S_X}, 9
    s_add_u32 s41, s41, {WS_F2}
    s_mul_i32 s42, s{S_X}, 80
    v_min_u32 v8, 79, v0
    v_add_u32 v8, s42, v8
    s_mul_i32 s42, s44, 1280
    v_lshl_add_u32 v9, v8, 1, s42
    s_lshl_b32 s42, s44, 1
    s_and_b32 s42, s42, 0xfffffffc
    s_add_u32 s42, s42, {WS_Y2}
    v_mul_u32_u24 v8, {RS}, v8
    v_add_u32 v8, s42, v8
    buffer_load_ushort v12, v9, s[20:23], 0 offen
    ''')
    a.srd(24, 52, NB)
    l = a.spin_begin('RF')
    a(f'''
    buffer_load_dwordx2 v[14:15], v6, {WS}, s40 offen sc1
    buffer_load_dwordx2 v[16:17], v7, {WS}, s41 offen sc1
    s_waitcnt vmcnt(0)
    ''')
    a.tagcheck(18, [14, 15, 16, 17])
    a.spin_end_vcc(l)
    sk = a.lab('RB')
    a(f'''
    s_or_b32 s40, s64, s3
    s_cmp_lg_u32 s40, 0
    s_cbranch_scc1 {sk}
    v_lshlrev_b32 v14, 4, v1
    s_mov_b32 s40, {WS_F1}
    s_mov_b32 s41, {WS_F1+4096}
    ''')
    l = a.spin_begin('RE')
    for i in range(4):
        a(f'buffer_load_dwordx4 v[{40+4*i}:{43+4*i}], v14, {WS}, s40 offen offset:{1024*i} sc1')
    a(f'buffer_load_dwordx4 v[56:59], v14, {WS}, s41 offen sc1\ns_waitcnt vmcnt(0)')
    a.tagcheck(18, range(40, 60))
    a.spin_end_vcc(l)
    a(f'''
    v_mov_b32 v14, {WS_E}
    v_mov_b32 v15, s{S_EP}
    s_mov_b64 exec, 1
    buffer_store_dword v15, v14, {WS}, 0 offen sc1
    s_mov_b64 exec, -1
    ''')
    a.label(sk)
    PR = 40
    for i in range(8):
        a(f's_mov_b32 s{72+i}, {i*12*20480}')
    a('v_cmp_gt_u32 vcc, 240, v0\ns_mov_b64 s[46:47], vcc\ns_mov_b64 exec, vcc')
    l = a.spin_begin('RP')
    for i in range(8):
        a(f'buffer_load_dwordx4 v[{PR+4*i}:{PR+4*i+3}], v5, {WS}, s{72+i} offen sc1')
    a('s_waitcnt vmcnt(0)')
    a.maxtree(18, range(PR, PR + 32))
    a('v_cmp_eq_u32 vcc, -1, v18')
    a.spin_end_exec(l, 's[46:47]')
    a(';STAMP 3')
    for st in (16, 8, 4):
        for i in range(0, st, 2):
            a(f'v_pk_add_f32 {pr(PR+i)}, {pr(PR+i)}, {pr(PR+st+i)}')
    a(f'''
    v_lshlrev_b32 v14, 4, v0
    ds_write_b128 v14, v[{PR}:{PR+3}] offset:{L_U}
    s_mov_b64 exec, -1
    ''')
    a.ldsync(11, 32, 2)
    a(f'''
    s_cmp_ge_u32 s3, 2
    s_cbranch_scc1 K_END
    v_min_u32 v14, 79, v0
    v_lshlrev_b32 v14, 2, v14
    ''')
    for i in range(12):
        a(f'ds_read_b32 v{PR+i}, v14 offset:{L_U+320*i}')
    l = a.spin_begin('RY')
    a(f'buffer_load_dword v13, v8, {WS}, 0 offen sc1')
    a(f'''
    s_ashr_i32 s40, s45, 31
    s_not_b32 s40, s40
    s_or_b32 s40, s40, 0x80000000
    s_xor_b32 s40, s40, s45
    s_and_b32 s40, s40, 0xffff0000
    v_mov_b32 v20, s40
    v_mul_f32 v20, {NLOG2E}, v20
    v_exp_f32 v20, v20
    v_readlane_b32 s48, v38, s65
    v_readlane_b32 s49, v39, s65
    v_add_f32 v20, 1.0, v20
    v_rcp_f32 v20, v20
    v_lshlrev_b32 v21, 16, v12
    v_subrev_f32 v22, s48, v21
    ''')
    rnd(a, 20, 20)
    rnd(a, 22, 22)
    a('v_mul_f32 v22, s49, v22')
    rnd(a, 22, 22)
    a('s_waitcnt vmcnt(0) lgkmcnt(0)\nv_cmp_eq_u32 vcc, -1, v13')
    a.spin_end_vcc(l)
    for i in range(6):
        a(f'v_add_f32 v{PR+i}, v{PR+i}, v{PR+6+i}')
    for i in range(3):
        a(f'v_add_f32 v{PR+i}, v{PR+i}, v{PR+3+i}')
    a(f'v_add_f32 v{PR}, v{PR}, v{PR+1}\nv_add_f32 v{PR}, v{PR}, v{PR+2}')
    rnd(a, PR, PR)
    a(f'v_mul_f32 v{PR}, v{PR}, v20')
    rnd(a, PR, PR)
    a(f'v_add_f32 v{PR}, v{PR}, v22')
    rnd(a, PR, PR)
    silu(a, [PR], [PR + 1])
    a(f'''
    s_and_b32 s40, s44, 1
    s_xor_b32 s40, s40, 1
    s_lshl_b32 s40, s40, 4
    v_lshlrev_b32 v13, s40, v13
    v_and_b32 v13, 0xffff0000, v13
    v_mul_f32 v22, v22, v13
    v_fma_f32 v22, v22, v{PR}, v21
    v_cvt_pk_bf16_f32 v22, v22, v22
    v_cmp_gt_u32 vcc, 80, v0
    s_mov_b64 exec, vcc
    buffer_store_short v22, v9, s[24:27], 0 offen
    s_endpgm
    ''')


def kernel():
    a = K()
    a(f'''
    s_cmp_ge_u32 s2, 256
    s_cbranch_scc1 K_END
    s_load_dwordx8 s[4:11], s[0:1], 0
    s_load_dwordx4 s[12:15], s[0:1], 32
    s_load_dwordx8 s[44:51], s[0:1], 56
    s_load_dwordx2 s[52:53], s[0:1], 88
    s_load_dwordx2 s[54:55], s[0:1], 104
    v_lshrrev_b32 v1, 6, v0
    s_and_b32 s{S_X}, s2, 7
    v_readfirstlane_b32 s3, v1
    s_lshr_b32 s{S_J}, s2, 3
    s_cmp_ge_u32 s3, 4
    s_cbranch_scc1 K_TILE
    ''')
    ln_loads(a)
    a(f's_cmp_ge_u32 s{S_J}, 20\ns_cbranch_scc1 K_FFN')
    conv_role(a)
    a.label('K_FFN')
    ffn_role(a)
    a.label('K_TILE')
    tile_role(a)
    a.label('K_END')
    a('s_endpgm')
    return a


def single_module(body):
    s = HDR + f'; @launch grid=(256,1,1) block=(576,1,1) lds={LDS_BYTES}\n'
    s += f'.amdgcn_target "amdgcn-amd-amdhsa--gfx950"\n.text\n.globl {KNAME}\n.p2align 8\n.type {KNAME},@function\n{KNAME}:\n{body}'
    nv, ns, na = max_regs(body)
    s += '.section .rodata,"a"\n' + KD.format(name=KNAME, vgpr=nv, sgpr=ns, acc=(nv + 3) // 4 * 4)
    return s


if __name__ == '__main__':
    out = sys.argv[1]
    rep = []
    k = kernel()
    if 'diag' in sys.argv[2:]:
        import diag
        diag.instrument(k, 0)
    body = k.text(rep)
    open(out, 'w').write(single_module(body))
    print('wrote', out, 'regs', max_regs(body), 'nops', len(rep), sum(n for n, _ in rep), 'lines', body.count('\n'))
```

```python
import sys, re
from asmlib import *

KNAME = 'recurrent_scan__ssm_conv_h3__moe_arch_mod__prompt_kernel'
HDR = open('recurrent_scan__ssm_conv_h3__moe_arch_mod__prompt.s.ref').read().split('; Override launch')[0]

NB = 2048 * 1280
RS = 4224
RSU = 8320
WS_E = 0
WS_IDX = 4096
WS_RI = 64 << 10
WS_F2 = 128 << 10
WS_F3 = 256 << 10
WS_F1 = 512 << 10
WS_UR = 1 << 20
WS_Y2 = 7 << 20
WS_P = 10 << 20
PTOK = 40 * 128
PF = 8 * PTOK
WS_SIZE = 16 << 20
NLOG2E = 0xbfb8aa3b
INV640 = 0x3acccccd
EPS = 0x3727c5ac
SPIN = 100000

H0_OFF, H1_OFF, U_OFF, CW_LDS = 0, 4160, 8288, 12864
L_G, L_U, L_D, L_MISC = 0, 20480, 40960, 61440
L_CNT, L_CAND, L_SLOT = L_MISC, L_MISC + 64, L_MISC + 192
C_CLR = 3
L_RI = L_MISC + 320
L_TP = L_MISC + 512
LDS_BYTES = L_MISC + 512 + 5 * 2304

OPT = dict(urperm=1, ho1=1, prio=1, late=1, span=16384, codepf=True, dma_late=False, sleep=0, nodma=False)

S_WAVE, S_X, S_J, S_EP, S_CNT = 3, 16, 17, 56, 57
WS = 's[60:63]'
ONES, C_NL2E, C_ONE = 58, 70, 72


class K(Asm):
    def __init__(self):
        super().__init__()
        self.n = 0

    def lab(self, p):
        self.n += 1
        return f'{p}_{self.n}'

    def spin_begin(self, p):
        l = self.lab(p)
        self(f's_mov_b32 s{S_CNT}, 0')
        self.label(l)
        return l

    def spin_end_vcc(self, l):
        e = l + '_x'
        self(f'''
        s_cbranch_vccz {e}
        {self.slp(l)}
        s_add_u32 s{S_CNT}, s{S_CNT}, 1
        s_cmp_lt_u32 s{S_CNT}, {SPIN}
        s_cbranch_scc1 {l}
        ''')
        self.label(e)

    def spin_end_exec(self, l, restore='-1'):
        e = l + '_x'
        self(f'''
        s_and_b64 exec, exec, vcc
        s_cbranch_execz {e}
        {self.slp(l)}
        s_add_u32 s{S_CNT}, s{S_CNT}, 1
        s_cmp_lt_u32 s{S_CNT}, {SPIN}
        s_cbranch_scc1 {l}
        ''')
        self.label(e)
        self(f's_mov_b64 exec, {restore}')

    def slp(self, l):
        n = OPT['sleep']
        return f's_sleep {n}' if n and not l.startswith('LS') else ''

    def maxtree(self, d, regs):
        regs = list(regs)
        self(f'v_max3_u32 v{d}, v{regs[0]}, v{regs[1]}, v{regs[2]}')
        regs = regs[3:]
        while len(regs) >= 2:
            self(f'v_max3_u32 v{d}, v{d}, v{regs[0]}, v{regs[1]}')
            regs = regs[2:]
        if regs:
            self(f'v_max_u32 v{d}, v{d}, v{regs[0]}')

    def tagcheck(self, d, regs):
        regs = list(regs)
        if len(regs) == 1:
            self(f'v_cmp_ne_u32 vcc, s{S_EP}, v{regs[0]}')
            return
        self(f'v_xor_b32 v{d}, v{regs[0]}, v{regs[1]}')
        for r in regs[2:]:
            self(f'v_xor_b32 v{d+1}, v{regs[0]}, v{r}\nv_or_b32 v{d}, v{d}, v{d+1}')
        self(f'v_xor_b32 v{d+1}, s{S_EP}, v{regs[0]}\nv_or_b32 v{d}, v{d}, v{d+1}\nv_cmp_ne_u32 vcc, 0, v{d}')

    def ldsync(self, vaddr, vtmp, slot):
        self(f'''
        v_mov_b32 v{vtmp}, 1
        s_mov_b64 exec, 1
        ds_add_u32 v{vaddr}, v{vtmp} offset:{4*slot}
        s_mov_b64 exec, -1
        ''')
        l = self.spin_begin('LS')
        self(f'''
        ds_read_b32 v{vtmp}, v{vaddr} offset:{4*slot}
        s_waitcnt lgkmcnt(0)
        v_cmp_gt_u32 vcc, 4, v{vtmp}
        ''')
        self.spin_end_vcc(l)


def rnd(a, d, s):
    a(f'v_cvt_pk_bf16_f32 v{d}, v{s}, v{s}')
    a(f'v_and_b32 v{d}, 0xffff0000, v{d}')


def unpack(a, d, s):
    a(f'v_lshlrev_b32 v{d}, 16, v{s}\nv_and_b32 v{d+1}, 0xffff0000, v{s}')


def pr(r):
    return f'v[{r}:{r+1}]'


def reduce32(a, v, t):
    for sh in (8, 4, 2, 1):
        a(f'v_add_f32_dpp v{v}, v{v}, v{v} row_ror:{sh} row_mask:0xf bank_mask:0xf')
    a(f'v_mov_b32 v{t}, v{v}\nv_permlane16_swap_b32 v{v}, v{t}\nv_add_f32 v{v}, v{v}, v{t}')


def tile_role(a):
    a(f'''
    s_sub_u32 s3, s3, 4
    s_and_b32 s18, s2, 3
    s_mul_i32 s18, s18, 160
    s_lshl_b32 s19, s3, 5
    s_add_u32 s64, s18, s19
    s_lshr_b32 s19, s2, 2
    s_lshl_b32 s19, s19, 5
    v_and_b32 v0, 63, v0
    v_and_b32 v1, 15, v0
    v_lshrrev_b32 v2, 4, v0
    v_lshl_add_u32 v1, v1, 1, s64
    v_lshl_add_u32 v2, v2, 3, s19
    v_mul_u32_u24 v3, 1280, v2
    v_lshl_add_u32 v3, v1, 1, v3
    v_subrev_u32 v4, 3840, v3
    v_cmp_eq_u32 vcc, 0, v2
    v_mov_b32 v5, 0x80000000
    v_cndmask_b32 v4, v4, v5, vcc
    v_lshlrev_b32 v5, 3, v1
    s_mov_b32 s18, 5120
    s_mov_b32 s19, {RS}
    s_waitcnt lgkmcnt(0)
    ''')
    a.srd(20, 6, NB)
    KK, VV, W, WF, KF, S, P = 8, 20, 28, 32, 40, 64, 80
    for i in range(8):
        so = '0' if i < 4 else 's18'
        a(f'buffer_load_dword v{KK+3+i}, v3, s[20:23], {so} offen offset:{1280*(i%4)}')
    for i in range(3):
        a(f'buffer_load_dword v{KK+i}, v4, s[20:23], 0 offen offset:{1280*i}')
    a.srd(28, 10, 640 * 8)
    a(f'buffer_load_dwordx4 v[{W}:{W+3}], v5, s[28:31], 0 offen')
    a.srd(24, 8, NB)
    for i in range(8):
        so = '0' if i < 4 else 's18'
        a(f'buffer_load_dword v{VV+i}, v3, s[24:27], {so} offen offset:{1280*(i%4)}')
    a('s_barrier')
    a.srd(32, 4, NB)
    a.srd(36, 52, NB)
    a.srd(60, 54, WS_SIZE)
    a(f'''
    v_mul_u32_u24 v7, {RS}, v1
    v_lshl_add_u32 v7, v2, 1, v7
    v_add_u32 v7, {WS_Y2}, v7
    s_lshr_b32 s40, s2, 2
    s_lshl_b32 s40, s40, 7
    s_mul_i32 s65, s64, {RSU}
    s_sub_u32 s65, s65, s40
    s_add_u32 s65, s65, {WS_UR + 63*128}
    s_add_u32 s66, s65, {RSU if not OPT['urperm'] else 16*RSU}
    ''')
    if OPT['urperm']:
        a(f'''
        v_lshrrev_b32 v6, 2, v0
        v_mul_u32_u24 v6, {RSU}, v6
        v_and_b32 v90, 3, v0
        v_lshl_add_u32 v6, v90, 4, v6
        s_mul_i32 s40, s3, 2304
        s_add_u32 s40, s40, {L_TP}
        v_lshrrev_b32 v91, 3, v0
        v_add_u32 v91, v91, v0
        v_lshl_add_u32 v91, v91, 4, s40
        v_and_b32 v90, 15, v0
        v_mul_u32_u24 v90, 144, v90
        v_lshrrev_b32 v93, 4, v0
        v_sub_u32 v93, 3, v93
        v_lshl_add_u32 v90, v93, 4, v90
        v_add_u32 v90, s40, v90
        ''')
    else:
        a(f'''
        v_and_b32 v6, 15, v0
        v_mul_u32_u24 v6, {2*RSU}, v6
        v_lshrrev_b32 v93, 4, v0
        v_sub_u32 v93, 3, v93
        v_lshl_add_u32 v6, v93, 4, v6
        ''')
    a(f'''
    v_mov_b32 v92, {L_CNT}
    s_mov_b32 s{C_NL2E}, {NLOG2E}
    s_mov_b32 s{C_NL2E+1}, {NLOG2E}
    s_mov_b32 s{C_ONE}, 1.0
    s_mov_b32 s{C_ONE+1}, 1.0
    s_waitcnt vmcnt(8)
    ;STAMP 0
    ''')
    for j in range(4):
        for hf in range(2):
            src = W + 2 * hf + j // 2
            if j % 2 == 0:
                a(f'v_lshlrev_b32 v{WF+2*j+hf}, 16, v{src}')
            else:
                a(f'v_and_b32 v{WF+2*j+hf}, 0xffff0000, v{src}')
    for i in range(11):
        unpack(a, KF + 2 * i, KK + i)
    for t in range(8):
        a(f'v_pk_mul_f32 {pr(S+2*t)}, {pr(KF+2*t)}, {pr(WF+6)}')
    for j in (2, 1, 0):
        for t in range(8):
            a(f'v_pk_fma_f32 {pr(S+2*t)}, {pr(KF+2*(t+3-j))}, {pr(WF+2*j)}, {pr(S+2*t)}')
    def lwait():
        l = a.spin_begin('LS')
        a(f'ds_read_b64 v[88:89], v92 offset:{4*C_CLR-4}\ns_waitcnt lgkmcnt(0)\nv_cmp_gt_u32 vcc, 4, v89')
        a.spin_end_vcc(l)
        a('ds_read_b32 v88, v92 offset:16')
    if OPT['ho1']:
        lwait()
    a('s_waitcnt vmcnt(0)')
    for t in range(8):
        unpack(a, KF + 2 * t, VV + t)
    for t in range(8):
        a(f'v_pk_mul_f32 {pr(S+2*t)}, {pr(S+2*t)}, {pr(KF+2*t)}')
    for hf in range(2):
        for m in range(4):
            a(f'v_cvt_pk_bf16_f32 v{P+4*hf+m}, v{S+2*(7-2*m)+hf}, v{S+2*(6-2*m)+hf}')
        if OPT['urperm']:
            a(f'ds_write_b128 v90, v[{P+4*hf}:{P+4*hf+3}] offset:{64*hf}')
        else:
            a(f'buffer_store_dwordx4 v[{P+4*hf}:{P+4*hf+3}], v6, {WS}, s{65+hf} offen sc1')
    if OPT['urperm']:
        a(f'ds_read_b128 v[{S}:{S+3}], v91\nds_read_b128 v[{S+4}:{S+7}], v91 offset:1152')
        for hf in range(2):
            a(f's_waitcnt lgkmcnt({1-hf})\nbuffer_store_dwordx4 v[{S+4*hf}:{S+4*hf+3}], v6, {WS}, s{65+hf} offen sc1')
    a(';STAMP 1')
    if not OPT['ho1']:
        lwait()
        a(f'''
        s_lshr_b32 s40, s64, 5
        s_lshl_b32 s40, s40, 6
        s_lshr_b32 s41, s2, 2
        s_add_u32 s40, s40, s41
        s_lshl_b32 s40, s40, 7
        s_add_u32 s40, s40, {WS_F1}
        v_mov_b32 v90, s40
        s_waitcnt vmcnt(0) lgkmcnt(0)
        s_mov_b64 exec, 1
        buffer_store_dword v88, v90, {WS}, 0 offen sc1
        s_mov_b64 exec, -1
        ''')
    a(f's_waitcnt lgkmcnt(0)\nv_readfirstlane_b32 s{S_EP}, v88')
    Q, ST, X, F, T = 8, 16, 32, 48, 64
    for i in range(8):
        so = '0' if i < 4 else 's18'
        a(f'buffer_load_dword v{Q+i}, v3, s[32:35], {so} offen offset:{1280*(i%4)}')
    a(f'v_lshlrev_b32 v5, 4, v2\nv_add_u32 v5, {WS_RI+64}, v5')
    l = a.spin_begin('TS')
    for i in range(4):
        a(f'buffer_load_dwordx4 v[{ST+4*i}:{ST+4*i+3}], v5, {WS}, 0 offen offset:{16*i} sc1')
    a('s_waitcnt vmcnt(0)')
    a.tagcheck(T, [ST + 2 * i + 1 for i in range(8)])
    a.spin_end_exec(l)
    for t in range(8):
        a(f'v_and_b32 v{T+2*t}, 0xffff0000, v{ST+2*t}')
        a(f'v_lshlrev_b32 v{ST+2*t}, 16, v{ST+2*t}')
        a(f'v_rcp_f32 v{T+2*t}, v{T+2*t}')
    for t in range(8):
        unpack(a, X + 2 * t, Q + t)
    for t in range(8):
        a(f'v_pk_add_f32 {pr(F+2*t)}, {pr(X+2*t)}, {pr(ST+2*t)} op_sel_hi:[1,0] neg_lo:[0,1] neg_hi:[0,1]')

    def round_pairs(base):
        for t in range(8):
            a(f'v_cvt_pk_bf16_f32 v{Q+t}, v{base+2*t}, v{base+2*t+1}')
        for t in range(8):
            unpack(a, base + 2 * t, Q + t)
    round_pairs(F)
    for t in range(8):
        a(f'v_pk_mul_f32 {pr(F+2*t)}, {pr(F+2*t)}, {pr(T+2*t)} op_sel_hi:[1,0]')
    round_pairs(F)
    for t in range(8):
        a(f'v_pk_mul_f32 {pr(T+2*t)}, {pr(F+2*t)}, s[{C_NL2E}:{C_NL2E+1}]')
    for i in range(16):
        a(f'v_exp_f32 v{T+i}, v{T+i}')
    for t in range(8):
        a(f'v_pk_mul_f32 {pr(F+2*t)}, {pr(F+2*t)}, {pr(F+2*t)}')
        a(f'v_pk_add_f32 {pr(T+2*t)}, {pr(T+2*t)}, s[{C_ONE}:{C_ONE+1}]')
    for i in range(16):
        a(f'v_rcp_f32 v{T+i}, v{T+i}')
    for t in range(8):
        a(f'v_pk_mul_f32 {pr(F+2*t)}, {pr(F+2*t)}, {pr(T+2*t)}')
    a(';STAMP 2')
    a(f'''
    v_and_b32 v8, 7, v0
    v_lshlrev_b32 v8, 3, v8
    s_lshl_b32 s40, s{S_X}, 7
    s_add_u32 s40, s40, {WS_IDX}
    v_and_b32 v9, 31, v0
    v_lshlrev_b32 v9, 7, v9
    s_lshl_b32 s41, s64, 7
    s_add_u32 s41, s41, {WS_F2}
    ''')
    l = a.spin_begin('TI')
    a(f'''
    buffer_load_dwordx2 v[10:11], v8, {WS}, s40 offen sc1
    buffer_load_dword v12, v9, {WS}, s41 offen sc1
    s_waitcnt vmcnt(0)
    ''')
    a.tagcheck(14, [11, 12])
    a.spin_end_vcc(l)
    Y = 80
    a(f'buffer_load_dwordx4 v[{Y}:{Y+3}], v7, {WS}, 0 offen sc1')
    a(f'buffer_load_dwordx4 v[{Y+4}:{Y+7}], v7, {WS}, s19 offen sc1')
    a('v_mov_b32 v6, 0')
    for k in range(8):
        a(f'v_readlane_b32 s{44+k}, v10, {k}')
    for k in range(8):
        a(f'''
        v_sub_u32 v8, s{44+k}, v2
        v_cmp_gt_u32 vcc, 8, v8
        v_lshlrev_b32 v8, v8, 1
        v_cndmask_b32 v8, 0, v8, vcc
        v_or_b32 v6, v6, v8
        ''')
    AD = 16
    for t in range(8):
        a(f'v_bfe_i32 v{AD+t}, v6, {t}, 1\nv_and_b32 v{AD+t}, 0x80000000, v{AD+t}\nv_or_b32 v{AD+t}, v{AD+t}, v3')
    e = a.lab('TY0')
    a('s_waitcnt vmcnt(0)')
    a.maxtree(8, range(Y, Y + 8))
    a(f'v_cmp_eq_u32 vcc, -1, v8\ns_cbranch_vccz {e}\ns_mov_b64 exec, vcc')
    l = a.spin_begin('TY')
    a(f'buffer_load_dwordx4 v[{Y}:{Y+3}], v7, {WS}, 0 offen sc1')
    a(f'buffer_load_dwordx4 v[{Y+4}:{Y+7}], v7, {WS}, s19 offen sc1')
    a('s_waitcnt vmcnt(0)')
    a.maxtree(8, range(Y, Y + 8))
    a('v_cmp_eq_u32 vcc, -1, v8')
    a.spin_end_exec(l)
    a.label(e)
    a(';STAMP 3')
    for t in range(8):
        for hf in range(2):
            src = Y + 4 * hf + t // 2
            if t % 2 == 0:
                a(f'v_lshlrev_b32 v{T+2*t+hf}, 16, v{src}')
            else:
                a(f'v_and_b32 v{T+2*t+hf}, 0xffff0000, v{src}')
        a(f'v_pk_fma_f32 {pr(T+2*t)}, {pr(T+2*t)}, {pr(F+2*t)}, {pr(X+2*t)}')
        a(f'v_cvt_pk_bf16_f32 v{Q+t}, v{T+2*t}, v{T+2*t+1}')
        so = '0' if t < 4 else 's18'
        a(f'buffer_store_dword v{Q+t}, v{AD+t}, s[36:39], {so} offen offset:{1280*(t%4)}')
    a('s_endpgm')


LX, LW, LF = 72, 84, 96
HD, HX = 40, 56


def ln_loads(a):
    a(f'''
    s_lshl_b32 s18, s2, 3
    s_lshl_b32 s19, s3, 1
    s_add_u32 s18, s18, s19
    v_and_b32 v1, 63, v0
    v_lshrrev_b32 v2, 5, v1
    v_add_u32 v2, s18, v2
    v_and_b32 v3, 31, v1
    v_lshlrev_b32 v4, 4, v3
    v_lshlrev_b32 v5, 3, v3
    v_mul_u32_u24 v6, 1280, v2
    v_add_u32 v7, v6, v5
    v_add_u32 v6, v6, v4
    s_waitcnt lgkmcnt(0)
    ''')
    a.srd(20, 4, NB)
    a(f'''
    buffer_load_dwordx4 v[{LX}:{LX+3}], v6, s[20:23], 0 offen
    buffer_load_dwordx4 v[{LX+4}:{LX+7}], v6, s[20:23], 0 offen offset:512
    buffer_load_dwordx2 v[{LX+8}:{LX+9}], v7, s[20:23], 0 offen offset:1024
    ''')
    a.srd(24, 44, 1280)
    a(f'''
    buffer_load_dwordx4 v[{LW}:{LW+3}], v4, s[24:27], 0 offen
    buffer_load_dwordx4 v[{LW+4}:{LW+7}], v4, s[24:27], 0 offen offset:512
    buffer_load_dwordx2 v[{LW+8}:{LW+9}], v5, s[24:27], 0 offen offset:1024
    ''')
    a.srd(60, 54, WS_SIZE)
    a(f'''
    v_mov_b32 v12, 0
    v_mov_b32 v13, 0
    v_mov_b32 v14, 0
    v_mov_b32 v15, 0
    v_mov_b32 v11, {L_CNT}
    ds_write_b128 v11, v[12:15]
    ds_write_b32 v11, v12 offset:20
    s_and_b32 s40, s2, 3
    s_mul_i32 s40, s40, 160
    s_mul_i32 s41, s3, 40
    s_add_u32 s40, s40, s41
    s_mul_i32 s40, s40, {RSU}
    s_lshr_b32 s41, s2, 2
    s_lshl_b32 s41, s41, 7
    s_sub_u32 s40, s40, s41
    s_add_u32 s40, s40, {WS_UR + 63*128}
    v_lshrrev_b32 v16, 2, v1
    v_mul_u32_u24 v16, {RSU}, v16
    v_and_b32 v17, 3, v1
    v_lshl_add_u32 v16, v17, 4, v16
    v_mov_b32 v20, -1
    v_mov_b32 v21, -1
    v_mov_b32 v22, -1
    v_mov_b32 v23, -1
    s_add_u32 s41, s40, {16*RSU}
    s_add_u32 s42, s40, {32*RSU}
    s_waitcnt lgkmcnt(0)
    s_barrier
    s_load_dword s{S_EP}, s[54:55], {WS_E}
    ''')
    if OPT['ho1']:
        a(f'''
        buffer_store_dwordx4 v[20:23], v16, {WS}, s40 offen sc1
        buffer_store_dwordx4 v[20:23], v16, {WS}, s41 offen sc1
        s_mov_b32 exec_hi, 0
        buffer_store_dwordx4 v[20:23], v16, {WS}, s42 offen sc1
        s_mov_b32 exec_hi, -1
        ''')


def prefetch(a):
    e, d, c = a.lab('PF'), a.lab('PF'), a.lab('PF')
    a(f'''
    s_mul_i32 s40, s{S_J}, 60
    v_min_u32 v16, 59, v1
    v_add_u32 v16, s40, v16
    s_cmp_eq_u32 s3, 2
    s_cbranch_scc1 {d}
    s_cmp_eq_u32 s3, 3
    s_cbranch_scc1 {c}
    s_mov_b32 s40, 0x5556
    v_mul_u32_u24 v17, s40, v16
    v_lshrrev_b32 v17, 16, v17
    v_mul_u32_u24 v17, {3072-384}, v17
    v_lshl_add_u32 v16, v16, 7, v17
    s_mul_i32 s40, s{S_X}, 384
    s_cmp_eq_u32 s3, 0
    s_cselect_b32 s36, s46, s48
    s_cselect_b32 s37, s47, s49
    s_mov_b32 s38, {640*3072}
    s_mov_b32 s39, 0x20000
    buffer_load_dword v19, v16, s[36:39], s40 offen
    s_branch {e}
    ''')
    a.label(d)
    a(f'v_lshlrev_b32 v16, 7, v16\ns_mul_i32 s40, s{S_X}, {192*1280}')
    a.srd(36, 50, 1536 * 1280)
    a(f'buffer_load_dword v19, v16, s[36:39], s40 offen\ns_branch {e}')
    a.label(c)
    a(f'''
    s_getpc_b64 s[36:37]
    {c}_pc:
    s_sub_u32 s36, s36, {c}_pc-K_FIRST
    s_subb_u32 s37, s37, 0
    s_mov_b32 s38, K_END-K_FIRST
    s_mov_b32 s39, 0x20000
    s_lshl_b32 s40, s{S_J}, 10
    v_min_u32 v16, 7, v1
    v_lshlrev_b32 v16, 7, v16
    buffer_load_dword v19, v16, s[36:39], s40 offen
    ''')
    a.label(e)


def ln_compute(a, later, extra):
    A = 120
    a(f'''
    v_mov_b32 v18, 1
    s_mov_b32 s{ONES}, 0x3f803f80
    s_mov_b32 s41, {INV640}
    s_waitcnt vmcnt({0 if OPT['late'] else later}) lgkmcnt(0)
    s_add_u32 s{S_EP}, s{S_EP}, 1
    v_mov_b32 v17, s{S_EP}
    s_mov_b64 exec, 1
    ds_write_b32 v11, v17 offset:16
    ds_add_u32 v11, v18 offset:{4*C_CLR}
    s_mov_b64 exec, -1
    ''')
    if OPT['late']:
        extra()
    a(f'''
    s_mov_b32 s41, {INV640}
    v_dot2_f32_bf16 v{A}, v{LX}, s{ONES}, 0
    ''')
    for i in range(1, 10):
        a(f'v_dot2_f32_bf16 v{A}, v{LX+i}, s{ONES}, v{A}')
    for i in range(3):
        unpack(a, LF + 2 * i, LX + i)
    for n, sh in enumerate((8, 4, 2, 1)):
        a(f'v_add_f32_dpp v{A}, v{A}, v{A} row_ror:{sh} row_mask:0xf bank_mask:0xf')
        unpack(a, LF + 2 * (3 + n), LX + 3 + n)
    a(f'v_mov_b32 v{A+1}, v{A}')
    unpack(a, LF + 14, LX + 7)
    a(f'v_permlane16_swap_b32 v{A}, v{A+1}')
    unpack(a, LF + 16, LX + 8)
    a(f'v_add_f32 v{A}, v{A}, v{A+1}')
    unpack(a, LF + 18, LX + 9)
    a(f'v_mul_f32 v{A}, s41, v{A}')
    rnd(a, A + 2, A)
    a(f'v_sub_f32 v{A}, v{A}, v{A+2}')
    for i in range(10):
        a(f'v_pk_add_f32 {pr(LF+2*i)}, {pr(LF+2*i)}, {pr(A+2)} op_sel_hi:[1,0] neg_lo:[0,1] neg_hi:[0,1]')
    a(f'v_pk_mul_f32 {pr(A+4)}, {pr(LF)}, {pr(LF)}')
    for i in range(1, 10):
        a(f'v_pk_fma_f32 {pr(A+4)}, {pr(LF+2*i)}, {pr(LF+2*i)}, {pr(A+4)}')
    a(f'v_add_f32 v{A+4}, v{A+4}, v{A+5}')
    cv = [f'v_cvt_pk_bf16_f32 v{LX+i}, v{LF+2*i}, v{LF+2*i+1}' for i in range(10)]
    a(cv.pop(0) + '\n' + cv.pop(0))
    for sh in (8, 4, 2, 1):
        a(f'v_add_f32_dpp v{A+4}, v{A+4}, v{A+4} row_ror:{sh} row_mask:0xf bank_mask:0xf')
        a(cv.pop(0) + '\n' + cv.pop(0))
    a(f'v_mov_b32 v{A+1}, v{A+4}')
    unpack(a, LF, LX)
    a(f'v_permlane16_swap_b32 v{A+4}, v{A+1}')
    a(f'''
    v_add_f32 v{A+4}, v{A+4}, v{A+1}
    v_mul_f32 v{A+4}, s41, v{A+4}
    v_fma_f32 v{A+4}, -v{A}, v{A}, v{A+4}
    v_max_f32 v{A+4}, 0, v{A+4}
    ''')
    rnd(a, A + 4, A + 4)
    a(f'v_add_f32 v{A+4}, {EPS}, v{A+4}')
    rnd(a, A + 4, A + 4)
    a(f'v_sqrt_f32 v{A+4}, v{A+4}')
    unpack(a, LF + 2, LX + 1)
    rnd(a, A + 4, A + 4)
    a(f'v_rcp_f32 v{A+6}, v{A+4}')
    for i in range(2, 10):
        unpack(a, LF + 2 * i, LX + i)
    for i in range(10):
        a(f'v_pk_mul_f32 {pr(LF+2*i)}, {pr(LF+2*i)}, {pr(A+6)} op_sel_hi:[1,0]')
    for i in range(10):
        a(f'v_cvt_pk_bf16_f32 v{LX+i}, v{LF+2*i}, v{LF+2*i+1}')
    a(f'v_dot2_f32_bf16 v{A+6}, v{LX}, v{LW}, 0')
    for i in range(1, 10):
        a(f'v_dot2_f32_bf16 v{A+6}, v{LX+i}, v{LW+i}, v{A+6}')
    a(f'''
    v_lshrrev_b32 v{A+2}, 16, v{A+2}
    v_or_b32 v{LF}, v{A+2}, v{A+4}
    v_and_b32 v{LF+4}, 7, v2
    v_lshlrev_b32 v{LF+4}, 3, v{LF+4}
    v_mov_b32 v{LF+1}, 1
    v_lshlrev_b32 v{LF+6}, 3, v1
    ''')
    reduce32(a, A + 6, A + 1)
    a(f'''
    v_add_f32 v{A+6}, 0, v{A+6}
    v_cvt_pk_bf16_f32 v{A+6}, v{A+6}, v{A+6}
    v_ashrrev_i32 v{A+7}, 31, v{A+6}
    v_or_b32 v{A+7}, 0x80000000, v{A+7}
    v_xor_b32 v{A+6}, v{A+6}, v{A+7}
    v_and_b32 v{A+6}, 0xffff0000, v{A+6}
    v_sub_u32 v{A+7}, 2047, v2
    v_or_b32 v{LF+2}, v{A+6}, v{A+7}
    s_mov_b32 exec_lo, 1
    s_mov_b32 exec_hi, 1
    ds_write_b32 v{LF+4}, v{LF+2} offset:{L_RI}
    ds_write_b32 v{LF+4}, v{LF} offset:{L_RI+64}
    s_mov_b32 exec_hi, 0
    ds_add_rtn_u32 v{LF+1}, v11, v{LF+1} offset:20
    s_mov_b64 exec, 0xffff
    ds_read_b32 v{LF+2}, v{LF+6} offset:{L_RI}
    v_mov_b32 v{LF+3}, s{S_EP}
    s_lshl_b32 s40, s2, 7
    s_add_u32 s40, s40, {WS_RI}
    s_waitcnt lgkmcnt(0)
    v_readfirstlane_b32 s41, v{LF+1}
    s_cmp_eq_u32 s41, 3
    s_cselect_b32 s40, s40, 0x80000000
    buffer_store_dwordx2 v[{LF+2}:{LF+3}], v{LF+6}, {WS}, s40 offen sc1
    s_mov_b64 exec, -1
    ''')


def lds_schedule(a, ops):
    issued, pos, done = 0, {}, 0
    for o in ops:
        if o[0] == 'ld':
            a(o[1])
            issued += 1
            pos[o[2]] = issued
        elif o[0] == 'raw':
            a(o[1])
        else:
            needp = max(pos[k] for k in o[2])
            if needp > done:
                n = issued - needp
                n = min(n, 15)
                a(f's_waitcnt lgkmcnt({n})')
                done = issued - n
            a(o[1])


def conv_role(a):
    a(f'''
    s_mul_i32 s18, s{S_X}, 80
    s_lshl_b32 s19, s{S_J}, 2
    s_add_u32 s19, s19, s3
    s_add_u32 s64, s18, s19
    s_lshl_b32 s65, s64, 12
    s_mul_i32 s66, s64, {RS}
    s_mul_i32 s59, s64, {RSU}
    s_mul_i32 s67, s3, {CW_LDS}
    v_lshlrev_b32 v8, 4, v1
    ''')
    a.srd(28, 12, NB)

    def extra():
        for m in range(4):
            a(f'buffer_load_dwordx4 v[{HD+4*m}:{HD+4*m+3}], v8, s[28:31], s65 offen offset:{1024*m}')
            a(f'buffer_load_dword v{HX+m}, v8, s[28:31], s65 offen offset:{1024*m+16}')
        prefetch(a)
    if not OPT['late']:
        extra()
    a(f'''
    s_lshl_b32 s40, s64, 1
    s_and_b32 s40, s40, 0xfffffffc
    s_add_u32 s14, s14, s40
    s_addc_u32 s15, s15, 0
    s_load_dword s68, s[14:15], 0
    v_add_u32 v9, s67, v8
    v_mov_b32 v12, 0
    v_mov_b32 v13, 0
    v_mov_b32 v14, 0
    v_mov_b32 v15, 0
    s_mov_b64 exec, 0x3fffffff
    ds_write_b128 v9, v[12:15] offset:{U_OFF+4096}
    s_mov_b64 exec, 3
    ds_write_b128 v9, v[12:15] offset:{H0_OFF}
    ds_write_b128 v9, v[12:15] offset:{H1_OFF}
    s_mov_b64 exec, -1
    ''')
    ln_compute(a, 9, extra)
    a(';STAMP 0')
    AA, GA = 112, 116
    a(f'''
    v_and_b32 v10, 15, v1
    v_lshrrev_b32 v11, 4, v1
    v_and_b32 v16, 1, v10
    v_add_u32 v{AA}, v10, v16
    v_lshlrev_b32 v{AA}, 1, v{AA}
    v_lshl_add_u32 v{AA}, v11, 4, v{AA}
    v_xor_b32 v16, 1, v16
    v_mul_u32_u24 v16, {H1_OFF}, v16
    v_add3_u32 v{AA}, v{AA}, v16, s67
    v_add_u32 v{AA+1}, 1024, v{AA}
    v_add_u32 v{AA+2}, 2048, v{AA}
    v_add_u32 v{AA+3}, 3072, v{AA}
    v_lshlrev_b32 v{GA}, 5, v10
    v_sub_u32 v{GA}, {U_OFF+480}, v{GA}
    v_lshl_add_u32 v{GA}, v11, 4, v{GA}
    v_add_u32 v{GA}, s67, v{GA}
    v_lshlrev_b32 v{GA+1}, 5, v10
    v_lshl_add_u32 v{GA+1}, v11, 3, v{GA+1}
    v_sub_u32 v{GA+2}, {U_OFF+2*2044-3584}, v{GA+1}
    v_add_u32 v{GA+2}, s67, v{GA+2}
    s_waitcnt vmcnt(2)
    ''')
    for m in range(4):
        a(f'ds_write_b128 v9, v[{HD+4*m}:{HD+4*m+3}] offset:{H0_OFF+32+1024*m}')
        T = 20 + 4 * m
        for d in range(4):
            hi = HD + 4 * m + d + 1 if d < 3 else HX + m
            a(f'v_alignbyte_b32 v{T+d}, v{hi}, v{HD+4*m+d}, 2')
        a(f'ds_write_b128 v9, v[{T}:{T+3}] offset:{H1_OFF+32+1024*m}')
    a(f'''
    v_lshlrev_b32 v16, 16, v{HD}
    s_mov_b64 exec, 1
    ds_write_b32 v9, v16 offset:{H1_OFF+28}
    s_mov_b64 exec, -1
    ''')
    if OPT['ho1']:
        a(f's_lshr_b32 s40, s{S_X}, 1\ns_lshl_b32 s40, s40, 7\ns_add_u32 s40, s40, {WS_RI+4}\nv_lshlrev_b32 v16, 9, v1')
    else:
        a(f's_lshr_b32 s40, s64, 5\ns_lshl_b32 s40, s40, 13\ns_add_u32 s40, s40, {WS_F1}\nv_lshlrev_b32 v16, 7, v1')
    UD = 72
    ACC, AF, GF = 8, 40, 72

    def ldA(g, rho):
        o = 128 * (g & 1) + 16 * rho
        r = AF + 4 * g
        return [('ld', f'ds_read2_b32 v[{r}:{r+1}], v{AA+g//2} offset0:{o} offset1:{o+1}', ('A0', g, rho)),
                ('ld', f'ds_read2_b32 v[{r+2}:{r+3}], v{AA+g//2} offset0:{o+2} offset1:{o+3}', ('A', g, rho))]
    for g in range(7, -1, -1):
        for o in ldA(g, 0):
            a(o[1])
    l = a.spin_begin('CF')
    a(f'buffer_load_dword v17, v16, {WS}, s40 offen sc1\ns_waitcnt vmcnt(0)')
    a.tagcheck(18, [17])
    a.spin_end_vcc(l)
    a(f'''
    s_lshl_b32 s40, s64, 7
    s_add_u32 s40, s40, {WS_F2}
    v_mov_b32 v{GA+3}, s40
    v_mov_b32 v{GA+4}, s{S_EP}
    v_mov_b32 v12, -1
    v_mov_b32 v13, -1
    v_mov_b32 v14, -1
    v_mov_b32 v15, -1
    s_add_u32 s40, s59, {WS_UR}
    s_add_u32 s42, s59, {WS_UR+4096}
    s_add_u32 s41, s66, {WS_Y2}
    v_lshrrev_b32 v16, 2, v1
    v_and_b32 v17, 3, v1
    v_lshlrev_b32 v17, 4, v17
    v_lshl_add_u32 v16, v16, 7, v17
    ''')

    def greg(d, rho):
        return GF + 4 * d if (d >= 2 or rho % 2 == 0) else GF + 32 + 4 * d

    def ldG(d, rho):
        r = greg(d, rho)
        return [('ld', f'ds_read_b128 v[{r}:{r+3}], v{GA} offset:{512*(7-d)+64*rho}', ('G', d, rho))]
    if OPT['ho1']:
        l = a.spin_begin('CU')
    for m in range(4):
        a(f'buffer_load_dwordx4 v[{UD+4*m}:{UD+4*m+3}], v16, {WS}, s{40+2*(m//2)} offen offset:{2048*(m%2)} sc1')
    if OPT['ho1']:
        a('s_waitcnt vmcnt(0)')
        a.maxtree(18, range(UD, UD + 16))
        a('v_cmp_eq_u32 vcc, -1, v18')
        a.spin_end_exec(l)
    if OPT['prio']:
        a('s_setprio 3')
    for m in range(4):
        if not OPT['ho1']:
            a(f's_waitcnt vmcnt({3-m})')
        a(f'ds_write_b128 v9, v[{UD+4*m}:{UD+4*m+3}] offset:{U_OFF+1024*m}')
    a(';STAMP 1')
    for m in range(4):
        a(f'buffer_store_dwordx4 v[12:15], v8, {WS}, s41 offen offset:{1024*m} sc1')
    a('s_waitcnt lgkmcnt(0)')
    ops = []
    for d in range(8):
        ops += ldG(d, 0)
    first = set()
    for rho in range(8):
        nxt = rho + 1 < 8
        if rho == 3:
            ops.append(('raw', f's_waitcnt vmcnt(0)\ns_mov_b64 exec, 1\nbuffer_store_dword v{GA+4}, v{GA+3}, {WS}, 0 offen sc1\ns_mov_b64 exec, -1'))
        for g in range(7, -1, -1):
            for d in range(8 - g):
                i = g + d
                c = f'v[{ACC+4*i}:{ACC+4*i+3}]' if i in first else '0'
                first.add(i)
                keys = [('G', d, rho)] + ([('A', g, rho)] if rho else [])
                r = greg(d, rho)
                ops.append(('mfma', f'v_mfma_f32_16x16x32_bf16 v[{ACC+4*i}:{ACC+4*i+3}], v[{AF+4*g}:{AF+4*g+3}], v[{r}:{r+3}], {c}', keys))
                if nxt and g == 0 and d >= 2:
                    ops += ldG(d, rho + 1)
                if nxt and g == 3 and d < 2:
                    ops += ldG(d, rho + 1)
            if nxt:
                ops += ldA(g, rho + 1)
    lds_schedule(a, ops)
    UU, T = 40, 72
    for i in range(8):
        a(f'ds_read_b64 v[{UU+2*i}:{UU+2*i+1}], v{GA+2} offset:{512*(7-i)}')
    a(f'''
    s_and_b32 s41, s64, 1
    s_lshl_b32 s41, s41, 4
    s_lshr_b32 s68, s68, s41
    s_and_b32 s68, s68, 0xffff
    s_lshl_b32 s69, s68, 16
    s_add_u32 s40, s66, {WS_Y2}
    s_waitcnt lgkmcnt(0)
    ;STAMP 2
    ''')
    for i in range(8):
        for r in range(4):
            src = UU + 2 * i + (1 if r < 2 else 0)
            sel = 's69' if r % 2 == 0 else 's68'
            a(f'v_dot2_f32_bf16 v{T+4*i+r}, v{src}, {sel}, v{ACC+4*i+r}')
        if i:
            p = i - 1
            a(f'v_cvt_pk_bf16_f32 v{UU+2*p}, v{T+4*p}, v{T+4*p+1}')
            a(f'v_cvt_pk_bf16_f32 v{UU+2*p+1}, v{T+4*p+2}, v{T+4*p+3}')
            a(f'buffer_store_dwordx2 v[{UU+2*p}:{UU+2*p+1}], v{GA+1}, {WS}, s40 offen offset:{512*p} sc1')
    p = 7
    a(f'v_cvt_pk_bf16_f32 v{UU+2*p}, v{T+4*p}, v{T+4*p+1}')
    a(f'v_cvt_pk_bf16_f32 v{UU+2*p+1}, v{T+4*p+2}, v{T+4*p+3}')
    a(f'buffer_store_dwordx2 v[{UU+2*p}:{UU+2*p+1}], v{GA+1}, {WS}, s40 offen offset:{512*p} sc1')
    a('s_endpgm')


SORT8 = [(0, 1), (2, 3), (4, 5), (6, 7), (0, 2), (1, 3), (4, 6), (5, 7), (1, 2), (5, 6), (0, 4), (3, 7), (1, 5), (2, 6), (1, 4), (3, 6), (2, 4), (3, 5), (3, 4)]
TOKEXEC = 's[78:79]'
TOKMASK = ('s_mov_b32 exec_lo, 0x00ff00ff\ns_mov_b32 exec_hi, 0x00ff00ff')


def silu(a, regs, tmp):
    for r, t in zip(regs, tmp):
        a(f'v_mul_f32 v{t}, {NLOG2E}, v{r}')
    for r, t in zip(regs, tmp):
        a(f'v_exp_f32 v{t}, v{t}')
    for r, t in zip(regs, tmp):
        a(f'v_add_f32 v{t}, 1.0, v{t}')
    for r, t in zip(regs, tmp):
        a(f'v_rcp_f32 v{t}, v{t}')
    for r, t in zip(regs, tmp):
        a(f'v_mul_f32 v{r}, v{r}, v{t}')


def ffn_role(a):
    a(f'''
    s_sub_u32 s65, s{S_J}, 20
    s_mul_i32 s64, s{S_X}, 12
    s_add_u32 s64, s64, s65
    v_lshrrev_b32 v8, 1, v1
    v_mul_u32_u24 v8, 3072, v8
    v_and_b32 v9, 1, v1
    v_lshl_add_u32 v8, v9, 4, v8
    s_mul_i32 s40, s3, {160*3072}
    s_lshl_b32 s41, s64, 5
    s_add_u32 s67, s40, s41
    s_mul_i32 s42, s3, 5120
    ''')
    a.srd(28, 46, 640 * 3072)
    a.srd(32, 48, 640 * 3072)
    def dma_ops():
        L = []
        for c in range(5):
            L.append(f's_add_u32 m0, s68, {L_G + 1024*c}\ns_add_u32 s69, s67, {c*32*3072}\nbuffer_load_dwordx4 v8, s[28:31], s69 offen lds')
            L.append(f's_add_u32 m0, s68, {L_U + 1024*c}\ns_nop 0\nbuffer_load_dwordx4 v8, s[32:35], s69 offen lds')
        for nt in range(10):
            L.append(f's_mov_b64 exec, {TOKEXEC}\nbuffer_store_dwordx4 v[36:39], v10, {WS}, s66 offen offset:{128*nt} sc1\ns_mov_b64 exec, -1')
        for c in range(5):
            L.append(f's_add_u32 m0, s68, {L_D + 1024*c}\ns_nop 0\nbuffer_load_dwordx4 v{40+c}, s[36:39], s59 offen lds')
        return L
    if not OPT['late']:
        prefetch(a)
    ln_compute(a, 1, lambda: prefetch(a))
    a.srd(36, 50, 1536 * 1280)
    a(f'''
    v_and_b32 v2, 15, v1
    v_lshrrev_b32 v3, 4, v1
    v_mul_u32_u24 v10, {PTOK}, v2
    v_lshl_add_u32 v10, v3, 4, v10
    s_mov_b32 s78, 0x00ff00ff
    s_mov_b32 s79, 0x00ff00ff
    s_mul_i32 s66, s64, {PF}
    s_mul_i32 s41, s3, 1280
    s_add_u32 s66, s66, s41
    s_add_u32 s66, s66, {WS_P}
    s_lshl_b32 s40, s3, 13
    s_add_u32 s40, s40, {WS_RI}
    s_add_u32 s43, s40, 4096
    v_lshrrev_b32 v4, 2, v1
    v_and_b32 v5, 3, v1
    v_lshlrev_b32 v5, 4, v5
    v_lshl_add_u32 v4, v4, 7, v5
    v_mov_b32 v36, -1
    v_mov_b32 v37, -1
    v_mov_b32 v38, -1
    v_mov_b32 v39, -1
    ''')
    a(f'''
    s_mul_i32 s68, s3, 5120
    s_mul_i32 s59, s64, {16*1280}
    s_mul_i32 s41, s3, 320
    s_add_u32 s59, s59, s41
    s_mov_b32 s41, 0xcccd
    ''')
    for c in range(5):
        a(f'''
        v_add_u32 v{40+c}, {64*c}, v1
        v_mul_u32_u24 v9, s41, v{40+c}
        v_lshrrev_b32 v9, 20, v9
        v_mul_u32_u24 v9, {1280-320}, v9
        v_lshl_add_u32 v{40+c}, v{40+c}, 4, v9
        ''')
    KG = 16
    l = a.spin_begin('FK')
    for i in range(4):
        a(f'buffer_load_dwordx4 v[{KG+4*i}:{KG+4*i+3}], v4, {WS}, s{40+3*(i//2)} offen offset:{2048*(i%2)} sc1')
    a('s_waitcnt vmcnt(0)')
    a.tagcheck(32, [KG + 2 * i + 1 for i in range(8)])
    a.spin_end_exec(l)
    a(';STAMP 0')
    D = dma_ops()
    key = [KG + 2 * i for i in range(8)]
    spare = KG + 1
    for (i, j) in SORT8:
        a(f'v_max_u32 v{spare}, v{key[i]}, v{key[j]}\nv_min_u32 v{key[j]}, v{key[i]}, v{key[j]}')
        key[i], spare = spare, key[i]
        if (i + j) % 3 == 0 and len(D) > 20:
            a(D.pop(0))
    a('v_mov_b32 v34, 0')
    for rd in range(8):
        a(f'v_max_u32_dpp v33, v{key[0]}, v{key[0]} row_ror:8 row_mask:0xf bank_mask:0xf')
        for sh in (4, 2, 1):
            if D:
                a(D.pop(0))
            a(f'v_max_u32_dpp v33, v33, v33 row_ror:{sh} row_mask:0xf bank_mask:0xf')
        a('''
        v_readlane_b32 s40, v33, 0
        v_readlane_b32 s41, v33, 16
        v_readlane_b32 s42, v33, 32
        v_readlane_b32 s43, v33, 48
        s_max_u32 s40, s40, s41
        s_max_u32 s42, s42, s43
        s_max_u32 s40, s40, s42
        ''')
        if rd < 7:
            a(f'v_cmp_eq_u32 vcc, s40, v{key[0]}')
        a(f'v_writelane_b32 v34, s40, {rd}')
        for i in range(7 - rd):
            a(f'v_cndmask_b32 v{key[i]}, v{key[i]}, v{key[i+1]}, vcc')
    assert not D
    a(f'''
    s_lshl_b32 s40, s3, 5
    s_add_u32 s40, s40, {L_CAND}
    v_lshl_add_u32 v35, v1, 2, s40
    s_mov_b64 exec, 0xff
    ds_write_b32 v35, v34
    s_mov_b64 exec, -1
    ''')
    a.ldsync(11, 35, 0)
    sk = a.lab('RB')
    a(f'''
    s_or_b32 s40, s64, s3
    s_cmp_lg_u32 s40, 0
    s_cbranch_scc1 {sk}
    v_mov_b32 v14, {WS_E}
    v_mov_b32 v15, s{S_EP}
    s_mov_b64 exec, 1
    buffer_store_dword v15, v14, {WS}, 0 offen sc1
    s_mov_b64 exec, -1
    ''')
    a.label(sk)
    a(f'''
    v_and_b32 v35, 31, v1
    v_lshlrev_b32 v35, 2, v35
    ds_read_b32 v34, v35 offset:{L_CAND}
    ''')
    CA = 40
    for i in range(8):
        a(f'ds_read_b128 v[{CA+4*i}:{CA+4*i+3}], v11 offset:{L_CAND-L_CNT+16*i}')
    a('v_mov_b32 v36, 0\ns_waitcnt lgkmcnt(0)')
    sp = lambda i: f's[{72+2*(i%4)}:{73+2*(i%4)}]'
    for i in range(32):
        a(f'v_cmp_gt_u32 {sp(i)}, v{CA+i}, v34')
        if i >= 2:
            a(f'v_addc_co_u32 v36, vcc, 0, v36, {sp(i-2)}')
    for i in (30, 31):
        a(f'v_addc_co_u32 v36, vcc, 0, v36, {sp(i)}')
    a(f'''
    s_lshl_b32 s40, s3, 5
    s_add_u32 s40, s40, {L_SLOT}
    v_lshl_add_u32 v35, v36, 2, s40
    v_cmp_gt_u32 vcc, 8, v36
    s_mov_b64 exec, vcc
    ds_write_b32 v35, v34
    s_mov_b64 exec, -1
    v_and_b32 v35, 7, v1
    v_lshl_add_u32 v35, v35, 2, s40
    ds_read_b32 v34, v35
    s_mul_i32 s40, s3, 320
    v_lshl_add_u32 v36, v3, 4, s40
    v_bfe_u32 v37, v1, 3, 1
    v_lshl_add_u32 v36, v37, 6, v36
    s_mov_b32 s41, {WS_RI+64}
    s_waitcnt lgkmcnt(0)
    ;STAMP 1
    v_and_b32 v35, 0x7ff, v34
    v_sub_u32 v35, 2047, v35
    v_mul_u32_u24 v37, 1280, v35
    v_add_u32 v36, v36, v37
    v_and_b32 v37, 0x7f8, v35
    v_add_u32 v37, v37, v35
    v_lshlrev_b32 v37, 3, v37
    ''')
    XP = 40
    for p in range(3):
        a(f'buffer_load_dwordx4 v[{XP+4*p}:{XP+4*p+3}], v36, s[20:23], 0 offen offset:{128*p}')
    l = a.spin_begin('FS')
    a(f'buffer_load_dwordx2 v[38:39], v37, {WS}, s41 offen sc1')
    a('s_waitcnt vmcnt(0)')
    a.tagcheck(32, [39])
    a.spin_end_vcc(l)
    a(f'''
    s_mul_i32 s40, s3, 96
    s_add_u32 s40, s40, s64
    s_lshl_b32 s40, s40, 7
    s_add_u32 s40, s40, {WS_F3}
    v_mov_b32 v4, s40
    v_mov_b32 v5, s{S_EP}
    s_mov_b64 exec, 1
    buffer_store_dword v5, v4, {WS}, 0 offen sc1
    s_mov_b64 exec, -1
    ''')
    WA = 72
    a(f'''
    v_lshrrev_b32 v4, 2, v2
    v_and_b32 v5, 3, v2
    v_lshlrev_b32 v6, 5, v4
    v_lshl_add_u32 v6, v5, 3, v6
    v_lshl_add_u32 v6, v3, 8, v6
    s_mul_i32 s42, s3, 5120
    v_add_u32 v6, s42, v6
    ''')
    for c in range(5):
        for mt, base in enumerate((L_G, L_U)):
            r = WA + 8 * c + 4 * mt
            a(f'ds_read_b64_tr_b16 v[{r}:{r+1}], v6 offset:{base+1024*c}')
            a(f'ds_read_b64_tr_b16 v[{r+2}:{r+3}], v6 offset:{base+1024*c+128}')
    sk = a.lab('FI')
    a(f'''
    s_or_b32 s40, s65, s3
    s_cmp_lg_u32 s40, 0
    s_cbranch_scc1 {sk}
    v_mov_b32 v32, v35
    v_mov_b32 v33, s{S_EP}
    v_lshlrev_b32 v7, 3, v1
    s_lshl_b32 s40, s{S_X}, 7
    s_add_u32 s40, s40, {WS_IDX}
    s_mov_b64 exec, 0xff
    buffer_store_dwordx2 v[32:33], v7, {WS}, s40 offen sc1
    s_mov_b64 exec, -1
    ''')
    a.label(sk)
    XF = 112
    a(f'''
    v_and_b32 v39, 0xffff0000, v38
    v_lshlrev_b32 v38, 16, v38
    v_rcp_f32 v60, v39
    v_rcp_f32 v39, v39
    ''')
    for i in range(12):
        unpack(a, XF + 2 * i, XP + i)
    for i in range(12):
        a(f'v_pk_add_f32 {pr(XF+2*i)}, {pr(XF+2*i)}, {pr(38)} op_sel_hi:[1,0] neg_lo:[0,1] neg_hi:[0,1]')
    for i in range(12):
        a(f'v_cvt_pk_bf16_f32 v{XP+i}, v{XF+2*i}, v{XF+2*i+1}')
    for i in range(12):
        unpack(a, XF + 2 * i, XP + i)
    for i in range(12):
        a(f'v_pk_mul_f32 {pr(XF+2*i)}, {pr(XF+2*i)}, {pr(60)} op_sel_hi:[1,0]')
    for i in range(12):
        a(f'v_cvt_pk_bf16_f32 v{XP+i}, v{XF+2*i}, v{XF+2*i+1}')
    XO = 52
    for i in range(8):
        a(f'v_mov_b32_dpp v{XO+i}, v{XP+i} row_ror:8 row_mask:0xf bank_mask:0xf')
    a('s_waitcnt lgkmcnt(0)')
    for c in (0, 2, 4, 1, 3):
        xr = XP + 4 * (c // 2) if c % 2 == 0 else XO + 4 * (c // 2)
        for mt in range(2):
            acc = 60 + 4 * mt
            r = WA + 8 * c + 4 * mt
            cc = '0' if c == 0 else f'v[{acc}:{acc+3}]'
            a(f'v_mfma_f32_16x16x32_bf16 v[{acc}:{acc+3}], v[{r}:{r+3}], v[{xr}:{xr+3}], {cc}')
    WDN = 72
    a(f'''
    v_lshl_add_u32 v6, v3, 2, v4
    v_mul_u32_u24 v6, 320, v6
    v_lshl_add_u32 v6, v5, 3, v6
    v_add_u32 v6, s42, v6
    v_lshl_add_u32 v7, v1, 4, s42
    ''')
    a(f'ds_write_b128 v7, v[60:63] offset:{L_G}\nds_write_b128 v7, v[64:67] offset:{L_G+1024}')
    for nt in range(10):
        a(f'ds_read_b64_tr_b16 v[{WDN+2*nt}:{WDN+2*nt+1}], v6 offset:{L_D+32*nt}')
    a.ldsync(11, 32, 1)
    R = 96
    a('v_lshlrev_b32 v7, 4, v1')
    for w in range(4):
        for mt in range(2):
            a(f'ds_read_b128 v[{R+8*w+4*mt}:{R+8*w+4*mt+3}], v7 offset:{L_G+5120*w+1024*mt}')
    a('s_waitcnt lgkmcnt(0)')
    for i in range(4):
        a(f'v_pk_add_f32 {pr(R+2*i)}, {pr(R+2*i)}, {pr(R+8+2*i)}')
        a(f'v_pk_add_f32 {pr(R+16+2*i)}, {pr(R+16+2*i)}, {pr(R+24+2*i)}')
    for i in range(4):
        a(f'v_pk_add_f32 {pr(R+2*i)}, {pr(R+2*i)}, {pr(R+16+2*i)}')
    for i in range(4):
        a(f'v_cvt_pk_bf16_f32 v{R+8+i}, v{R+2*i}, v{R+2*i+1}')
    for i in range(4):
        unpack(a, R + 2 * i, R + 8 + i)
    silu(a, range(R, R + 4), range(R + 8, R + 12))
    for i in range(2):
        a(f'v_cvt_pk_bf16_f32 v{R+8+i}, v{R+2*i}, v{R+2*i+1}')
    for i in range(2):
        unpack(a, R + 2 * i, R + 8 + i)
    for i in range(2):
        a(f'v_pk_mul_f32 {pr(R+2*i)}, {pr(R+2*i)}, {pr(R+4+2*i)}')
    for i in range(2):
        a(f'v_cvt_pk_bf16_f32 v{60+i}, v{R+2*i}, v{R+2*i+1}')
    O = 96
    for nt in range(10):
        a(f'v_mfma_f32_16x16x16_bf16 v[{O+4*nt}:{O+4*nt+3}], v[{WDN+2*nt}:{WDN+2*nt+1}], v[60:61], 0')
    a(TOKMASK)
    for nt in range(10):
        a(f'buffer_store_dwordx4 v[{O+4*nt}:{O+4*nt+3}], v10, {WS}, s66 offen offset:{128*nt} sc1')
    a(f'''
    s_mov_b64 exec, -1
    ;STAMP 2
    s_cmp_ge_u32 s65, 8
    s_cbranch_scc1 K_END
    ''')
    a(f'''
    v_readlane_b32 s44, v35, s65
    v_readlane_b32 s45, v34, s65
    s_mov_b32 s41, 0xcccd
    v_mul_u32_u24 v4, s41, v0
    v_lshrrev_b32 v4, 20, v4
    v_mul_u32_u24 v5, 20, v4
    v_sub_u32 v5, v0, v5
    v_lshrrev_b32 v6, 2, v5
    v_and_b32 v5, 3, v5
    v_lshlrev_b32 v5, 4, v5
    v_lshl_add_u32 v5, v6, 7, v5
    v_mul_u32_u24 v4, {PF}, v4
    s_mul_i32 s40, s65, {PTOK}
    s_mul_i32 s41, s{S_X}, 640
    s_add_u32 s40, s40, s41
    s_add_u32 s40, s40, {WS_P}
    v_add3_u32 v5, s40, v5, v4
    v_lshlrev_b32 v6, 7, v1
    v_and_b32 v7, 31, v1
    v_lshlrev_b32 v7, 7, v7
    v_and_b32 v4, 15, v1
    v_lshlrev_b32 v4, 7, v4
    s_lshr_b32 s40, s{S_X}, 1
    s_mul_i32 s40, s40, {96*128}
    s_add_u32 s40, s40, {WS_F3}
    s_add_u32 s46, s40, 8192
    s_mul_i32 s41, s{S_X}, {80*128}
    s_add_u32 s41, s41, {WS_F2}
    s_add_u32 s47, s41, 8192
    s_mul_i32 s42, s{S_X}, 80
    v_min_u32 v8, 79, v0
    v_add_u32 v8, s42, v8
    s_mul_i32 s42, s44, 1280
    v_lshl_add_u32 v9, v8, 1, s42
    s_lshl_b32 s42, s44, 1
    s_and_b32 s42, s42, 0xfffffffc
    s_add_u32 s42, s42, {WS_Y2}
    v_mul_u32_u24 v8, {RS}, v8
    v_add_u32 v8, s42, v8
    buffer_load_ushort v12, v9, s[20:23], 0 offen
    ''')
    a.srd(24, 52, NB)
    l = a.spin_begin('RF')
    a(f'''
    buffer_load_dword v14, v6, {WS}, s40 offen sc1
    buffer_load_dword v15, v7, {WS}, s46 offen sc1
    buffer_load_dword v16, v6, {WS}, s41 offen sc1
    buffer_load_dword v17, v4, {WS}, s47 offen sc1
    s_waitcnt vmcnt(0)
    ''')
    a.tagcheck(18, [14, 15, 16, 17])
    a.spin_end_vcc(l)
    PR = 40
    for i in range(8):
        a(f's_mov_b32 s{72+i}, {i*12*PF}')
    a('v_cmp_gt_u32 vcc, 240, v0\ns_mov_b64 s[46:47], vcc\ns_mov_b64 exec, vcc')
    l = a.spin_begin('RP')
    for i in range(8):
        a(f'buffer_load_dwordx4 v[{PR+4*i}:{PR+4*i+3}], v5, {WS}, s{72+i} offen sc1')
    a('s_waitcnt vmcnt(0)')
    a.maxtree(18, range(PR, PR + 32))
    a('v_cmp_eq_u32 vcc, -1, v18')
    a.spin_end_exec(l, 's[46:47]')
    a(';STAMP 3')
    for st in (16, 8, 4):
        for i in range(0, st, 2):
            a(f'v_pk_add_f32 {pr(PR+i)}, {pr(PR+i)}, {pr(PR+st+i)}')
    a(f'''
    v_lshlrev_b32 v14, 4, v0
    ds_write_b128 v14, v[{PR}:{PR+3}] offset:{L_U}
    s_mov_b64 exec, -1
    ''')
    a.ldsync(11, 32, 2)
    a(f'''
    s_cmp_ge_u32 s3, 2
    s_cbranch_scc1 K_END
    v_min_u32 v14, 79, v0
    v_lshlrev_b32 v14, 2, v14
    ''')
    for i in range(12):
        a(f'ds_read_b32 v{PR+i}, v14 offset:{L_U+320*i}')
    l = a.spin_begin('RY')
    a(f'buffer_load_dword v13, v8, {WS}, 0 offen sc1')
    a(f'''
    s_ashr_i32 s40, s45, 31
    s_not_b32 s40, s40
    s_or_b32 s40, s40, 0x80000000
    s_xor_b32 s40, s40, s45
    s_and_b32 s40, s40, 0xffff0000
    v_mov_b32 v20, s40
    v_mul_f32 v20, {NLOG2E}, v20
    v_exp_f32 v20, v20
    v_readlane_b32 s48, v38, s65
    v_readlane_b32 s49, v39, s65
    v_add_f32 v20, 1.0, v20
    v_rcp_f32 v20, v20
    v_lshlrev_b32 v21, 16, v12
    v_subrev_f32 v22, s48, v21
    ''')
    rnd(a, 20, 20)
    rnd(a, 22, 22)
    a('v_mul_f32 v22, s49, v22')
    rnd(a, 22, 22)
    a('s_waitcnt vmcnt(0) lgkmcnt(0)\nv_cmp_eq_u32 vcc, -1, v13')
    a.spin_end_vcc(l)
    for i in range(6):
        a(f'v_add_f32 v{PR+i}, v{PR+i}, v{PR+6+i}')
    for i in range(3):
        a(f'v_add_f32 v{PR+i}, v{PR+i}, v{PR+3+i}')
    a(f'v_add_f32 v{PR}, v{PR}, v{PR+1}\nv_add_f32 v{PR}, v{PR}, v{PR+2}')
    rnd(a, PR, PR)
    a(f'v_mul_f32 v{PR}, v{PR}, v20')
    rnd(a, PR, PR)
    a(f'v_add_f32 v{PR}, v{PR}, v22')
    rnd(a, PR, PR)
    silu(a, [PR], [PR + 1])
    a(f'''
    s_and_b32 s40, s44, 1
    s_xor_b32 s40, s40, 1
    s_lshl_b32 s40, s40, 4
    v_lshlrev_b32 v13, s40, v13
    v_and_b32 v13, 0xffff0000, v13
    v_mul_f32 v22, v22, v13
    v_fma_f32 v22, v22, v{PR}, v21
    v_cvt_pk_bf16_f32 v22, v22, v22
    v_cmp_gt_u32 vcc, 80, v0
    s_mov_b64 exec, vcc
    buffer_store_short v22, v9, s[24:27], 0 offen
    s_endpgm
    ''')


def kernel():
    a = K()
    a.label('K_FIRST')
    a(f'''
    s_cmp_ge_u32 s2, 256
    s_cbranch_scc1 K_END
    s_load_dwordx8 s[4:11], s[0:1], 0
    s_load_dwordx4 s[12:15], s[0:1], 32
    s_load_dwordx8 s[44:51], s[0:1], 56
    s_load_dwordx2 s[52:53], s[0:1], 88
    s_load_dwordx2 s[54:55], s[0:1], 104
    v_lshrrev_b32 v1, 6, v0
    s_and_b32 s{S_X}, s2, 7
    v_readfirstlane_b32 s3, v1
    s_lshr_b32 s{S_J}, s2, 3
    s_cmp_ge_u32 s3, 4
    s_cbranch_scc1 K_TILE
    ''')
    ln_loads(a)
    a(f's_cmp_ge_u32 s{S_J}, 20\ns_cbranch_scc1 K_FFN')
    conv_role(a)
    a.label('K_FFN')
    ffn_role(a)
    a.label('K_TILE')
    tile_role(a)
    a.label('K_END')
    a('s_endpgm')
    return a


def single_module(body):
    s = HDR + f'; @launch grid=(256,1,1) block=(576,1,1) lds={LDS_BYTES}\n'
    s += f'.amdgcn_target "amdgcn-amd-amdhsa--gfx950"\n.text\n.globl {KNAME}\n.p2align 8\n.type {KNAME},@function\n{KNAME}:\n{body}'
    nv, ns, na = max_regs(body)
    s += '.section .rodata,"a"\n' + KD.format(name=KNAME, vgpr=nv, sgpr=ns, acc=(nv + 3) // 4 * 4)
    return s


if __name__ == '__main__':
    out = sys.argv[1]
    rep = []
    for o in sys.argv[2:]:
        if '=' in o:
            OPT[o.split('=')[0]] = int(o.split('=')[1])
    k = kernel()
    if 'diag' in sys.argv[2:]:
        import diag
        diag.instrument(k, 0)
    body = k.text(rep)
    assert not re.search(r'op_sel:\[[01,]*1', body), 'crossed low-half op_sel is unsafe beside MFMA'
    open(out, 'w').write(single_module(body))
    print('wrote', out, 'regs', max_regs(body), 'nops', len(rep), sum(n for n, _ in rep), 'lines', body.count('\n'))
```

```python
from asmlib import *
WS_STAMP = 32 << 20
CYC = False

def instrument(asm, kidx, sel=None):
    out = []
    out += ['s_memrealtime s[90:91]', 's_memtime s[100:101]', 's_load_dwordx2 s[88:89], s[0:1], 104', 's_mov_b32 s93, s2',
            'v_lshrrev_b32 v1, 6, v0', 's_nop 1', 'v_readfirstlane_b32 s92, v1']
    n = 0
    for l in asm.lines:
        if l.startswith(';STAMP'):
            nm = l.split()[1]
            j = (int(nm) if nm.isdigit() else None) if sel is None else sel.get(nm)
            if j is not None:
                out += [f's_memtime s[{80+2*j}:{81+2*j}]' if CYC else f's_memrealtime s[{80+2*j}:{81+2*j}]']
            continue
        if l.strip() == 's_endpgm' and not (out and out[-1].endswith('K_H0')):
            n += 1
            out += ['s_waitcnt vmcnt(0) lgkmcnt(0)', 's_memrealtime s[94:95]', 's_memtime s[96:97]', 's_waitcnt lgkmcnt(0)', 's_sub_u32 s100, s96, s100', 's_mov_b64 exec, 1',
                    f's_add_u32 s96, s88, {WS_STAMP + kidx*(1<<18)}', 's_addc_u32 s97, s89, 0', f's_mov_b32 s98, {1<<18}', 's_mov_b32 s99, 0x20000',
                    's_lshl_b32 s93, s93, 4', 's_add_u32 s93, s93, s92', 's_lshl_b32 s93, s93, 5', 'v_mov_b32 v0, s93',
                    's_waitcnt lgkmcnt(0)', 'v_mov_b32 v2, s90', 'v_mov_b32 v3, s94', 'v_mov_b32 v4, s80', 'v_mov_b32 v5, s82',
                    'v_mov_b32 v6, s84', 'v_mov_b32 v7, s86', 'v_mov_b32 v8, s100', 's_getreg_b32 s101, hwreg(HW_REG_XCC_ID)', 's_getreg_b32 s100, hwreg(HW_REG_HW_ID)', 's_lshl_b32 s101, s101, 24', 's_and_b32 s100, s100, 0xffffff', 's_or_b32 s101, s101, s100', 'v_mov_b32 v9, s101',
                    'buffer_store_dwordx4 v[2:5], v0, s[96:99], 0 offen', 'buffer_store_dwordx4 v[6:9], v0, s[96:99], 0 offen offset:16']
        out.append(l)
    asm.lines = out

def encoder(shapes, expr, base_ticks=6000, mult=10):
    a = Asm()
    a('s_cmp_ge_u32 s2, 1\ns_cbranch_scc1 ENC_END\ns_load_dwordx2 s[4:5], s[0:1], 104\ns_waitcnt lgkmcnt(0)')
    def reduce(kind, k, sdst, tag):
        nwg, nw = shapes[k]
        mx = kind.startswith('max'); off = 4 if kind.endswith('end') else 0
        op = 'max' if mx else 'min'
        a.srd(8, 4, 1 << 18, WS_STAMP + k*(1 << 18))
        a(f'v_mov_b32 v10, {0 if mx else -1}\ns_mov_b32 s20, 0')
        a.label(f'ENC_L{tag}')
        a(f'''
        v_add_u32 v1, s20, v0
        v_lshlrev_b32 v2, 9, v1
        v_cmp_gt_u32 vcc, {nwg}, v1
        s_and_saveexec_b64 s[22:23], vcc
        s_cbranch_execz ENC_S{tag}
        ''')
        for w in range(nw):
            a(f'buffer_load_dword v{20+w}, v2, s[8:11], 0 offen offset:{32*w+off}')
        a('s_waitcnt vmcnt(0)')
        for w in range(nw):
            a(f'v_{op}_u32 v10, v10, v{20+w}')
        a.label(f'ENC_S{tag}')
        a(f'''
        s_mov_b64 exec, -1
        s_add_u32 s20, s20, 64
        s_cmp_lt_u32 s20, {nwg}
        s_cbranch_scc1 ENC_L{tag}
        s_nop 4
        v_readlane_b32 s{sdst}, v10, 0
        ''')
        for l in range(1, 64):
            a(f'v_readlane_b32 s21, v10, {l}\ns_nop 0\ns_{op}_u32 s{sdst}, s{sdst}, s21')
    reduce('min_start', 0, 30, 'z')
    if expr is None:
        a('s_mov_b32 s31, 0')
    else:
        reduce(expr[0], expr[1], 31, 'a'); reduce(expr[2], expr[3], 32, 'b')
        a(f's_sub_u32 s31, s31, s32\ns_min_u32 s31, s31, 5000\ns_mul_i32 s31, s31, {mult}')
    a(f's_add_u32 s31, s31, {base_ticks}')
    a.label('ENC_W')
    a('''
    s_memrealtime s[34:35]
    s_waitcnt lgkmcnt(0)
    s_sub_u32 s34, s34, s30
    s_cmp_lt_u32 s34, s31
    s_cbranch_scc1 ENC_W
    ''')
    a.label('ENC_END')
    a('s_endpgm')
    return a
```

```python
import sys, re
from asmlib import *

KNAME = 'recurrent_scan__ssm_conv_h3__moe_arch_mod__prompt_kernel'
HDR = open('recurrent_scan__ssm_conv_h3__moe_arch_mod__prompt.s.ref').read().split('; Override launch')[0]

NB = 2048 * 1280
RS = 4224
WS_E = 0
WS_IDX = 4096
WS_RI = 64 << 10
WS_F2 = 128 << 10
WS_F3 = 256 << 10
WS_F1 = 512 << 10
WS_UR = 1 << 20
WS_Y2 = 7 << 20
WS_P = 10 << 20
WS_SIZE = 16 << 20
NLOG2E = 0xbfb8aa3b
INV640 = 0x3acccccd
EPS = 0x3727c5ac
SPIN = 100000

H0_OFF, H1_OFF, U_OFF, CW_LDS = 0, 4160, 8288, 12864
L_G, L_U, L_D, L_MISC = 0, 20480, 40960, 61440
L_CNT, L_CAND, L_SLOT = L_MISC, L_MISC + 64, L_MISC + 192
C_CLR = 3
L_RI = L_MISC + 320
L_TP = L_MISC + 512
LDS_BYTES = L_MISC + 512 + 5 * 2304

OPT = dict(hint=1, rpsl=10, tysl=1, lssl=0, tsl=0, nt=0, pflag=0, gate=0, pfat=0, gdb=1, urpad=0, ppad=0, urperm=1, ho1=0, ysleep=24, prio=1, late=2, span=16384, codepf=True, dma_late=False, sleep=1, nodma=False)


def setup():
    global RSU, UPS, UPL, PPS, PTOK, PF
    UPL = 7 if OPT['urpad'] else 6
    UPS = 1 << UPL
    RSU = 64 * UPS + 128
    PPS = 128 if OPT['ppad'] else 64
    PTOK = 40 * PPS
    PF = 8 * PTOK


S_WAVE, S_X, S_J, S_EP, S_CNT = 3, 16, 17, 56, 57
S_G, S_TT = 74, 75
PFV = 71
WS = 's[60:63]'
ONES, C_NL2E, C_ONE = 58, 70, 72


class K(Asm):
    def __init__(self):
        super().__init__()
        self.n = 0

    def lab(self, p):
        self.n += 1
        return f'{p}_{self.n}'

    def spin_begin(self, p):
        l = self.lab(p)
        self(f's_mov_b32 s{S_CNT}, 0')
        self.label(l)
        return l

    def spin_end_vcc(self, l):
        e = l + '_x'
        self(f'''
        s_cbranch_vccz {e}
        {self.slp(l)}
        s_add_u32 s{S_CNT}, s{S_CNT}, 1
        s_cmp_lt_u32 s{S_CNT}, {SPIN}
        s_cbranch_scc1 {l}
        ''')
        self.label(e)

    def spin_end_exec(self, l, restore='-1'):
        e = l + '_x'
        self(f'''
        s_and_b64 exec, exec, vcc
        s_cbranch_execz {e}
        {self.slp(l)}
        s_add_u32 s{S_CNT}, s{S_CNT}, 1
        s_cmp_lt_u32 s{S_CNT}, {SPIN}
        s_cbranch_scc1 {l}
        ''')
        self.label(e)
        self(f's_mov_b64 exec, {restore}')

    def slp(self, l):
        n = OPT['sleep']
        if l.startswith('TY'):
            n = OPT['tysl']
        if l.startswith('LT'):
            return 's_sleep 2'
        if l.startswith('LS'):
            return 's_sleep 1' if OPT['lssl'] else ''
        return f's_sleep {n}' if n else ''

    def maxtree(self, d, regs):
        regs = list(regs)
        self(f'v_max3_u32 v{d}, v{regs[0]}, v{regs[1]}, v{regs[2]}')
        regs = regs[3:]
        while len(regs) >= 2:
            self(f'v_max3_u32 v{d}, v{d}, v{regs[0]}, v{regs[1]}')
            regs = regs[2:]
        if regs:
            self(f'v_max_u32 v{d}, v{d}, v{regs[0]}')

    def tagcheck(self, d, regs):
        regs = list(regs)
        if len(regs) == 1:
            self(f'v_cmp_ne_u32 vcc, s{S_EP}, v{regs[0]}')
            return
        self(f'v_xor_b32 v{d}, v{regs[0]}, v{regs[1]}')
        for r in regs[2:]:
            self(f'v_xor_b32 v{d+1}, v{regs[0]}, v{r}\nv_or_b32 v{d}, v{d}, v{d+1}')
        self(f'v_xor_b32 v{d+1}, s{S_EP}, v{regs[0]}\nv_or_b32 v{d}, v{d}, v{d+1}\nv_cmp_ne_u32 vcc, 0, v{d}')

    def ldsync(self, vaddr, vtmp, slot):
        self(f'''
        v_mov_b32 v{vtmp}, 1
        s_mov_b64 exec, 1
        ds_add_u32 v{vaddr}, v{vtmp} offset:{4*slot}
        s_mov_b64 exec, -1
        ''')
        l = self.spin_begin('LS')
        self(f'''
        ds_read_b32 v{vtmp}, v{vaddr} offset:{4*slot}
        s_waitcnt lgkmcnt(0)
        v_cmp_gt_u32 vcc, 4, v{vtmp}
        ''')
        self.spin_end_vcc(l)


def NT(bit):
    return ' nt' if OPT['nt'] & bit else ''


def rnd(a, d, s):
    a(f'v_cvt_pk_bf16_f32 v{d}, v{s}, v{s}')
    a(f'v_and_b32 v{d}, 0xffff0000, v{d}')


def unpack(a, d, s):
    a(f'v_lshlrev_b32 v{d}, 16, v{s}\nv_and_b32 v{d+1}, 0xffff0000, v{s}')


def pr(r):
    return f'v[{r}:{r+1}]'


def reduce32(a, v, t):
    for sh in (8, 4, 2, 1):
        a(f'v_add_f32_dpp v{v}, v{v}, v{v} row_ror:{sh} row_mask:0xf bank_mask:0xf')
    a(f'v_mov_b32 v{t}, v{v}\nv_permlane16_swap_b32 v{v}, v{t}\nv_add_f32 v{v}, v{v}, v{t}')


def tile_role(a):
    a(f'''
    s_sub_u32 s3, s3, 4
    s_mul_i32 s18, s{S_G}, 160
    s_lshl_b32 s19, s3, 5
    s_add_u32 s64, s18, s19
    s_lshl_b32 s19, s{S_TT}, 5
    v_and_b32 v0, 63, v0
    v_and_b32 v1, 15, v0
    v_lshrrev_b32 v2, 4, v0
    v_lshl_add_u32 v1, v1, 1, s64
    v_lshl_add_u32 v2, v2, 3, s19
    v_mul_u32_u24 v3, 1280, v2
    v_lshl_add_u32 v3, v1, 1, v3
    v_subrev_u32 v4, 3840, v3
    v_cmp_eq_u32 vcc, 0, v2
    v_mov_b32 v5, 0x80000000
    v_cndmask_b32 v4, v4, v5, vcc
    v_lshlrev_b32 v5, 3, v1
    s_mov_b32 s18, 5120
    s_mov_b32 s19, {RS}
    s_lshl_b32 s40, s{S_TT}, {UPL}
    s_mul_i32 s65, s64, {RSU}
    s_sub_u32 s65, s65, s40
    s_add_u32 s65, s65, {WS_UR + 63*UPS}
    s_add_u32 s66, s65, {16*RSU}
    v_lshrrev_b32 v6, 2, v0
    v_and_b32 v90, 3, v0
    v_lshlrev_b32 v90, 4, v90
    v_mul_u32_u24 v7, {RS}, v6
    v_add_u32 v7, v7, v90
    v_mul_u32_u24 v6, {RSU}, v6
    v_add_u32 v6, v6, v90
    v_mov_b32 v84, -1
    v_mov_b32 v85, -1
    v_mov_b32 v86, -1
    v_mov_b32 v87, -1
    s_waitcnt lgkmcnt(0)
    ''')
    a.srd(60, 54, WS_SIZE)
    if OPT['ho1']:
        a(f'''
        buffer_store_dwordx4 v[84:87], v6, {WS}, s65 offen sc1
        buffer_store_dwordx4 v[84:87], v6, {WS}, s66 offen sc1
        ''')
    a.srd(20, 6, NB)
    KK, VV, W, WF, KF, S, P = 8, 20, 28, 32, 40, 64, 80
    for i in range(8):
        so = '0' if i < 4 else 's18'
        a(f'buffer_load_dword v{KK+3+i}, v3, s[20:23], {so} offen offset:{1280*(i%4)}' + NT(1))
    for i in range(3):
        a(f'buffer_load_dword v{KK+i}, v4, s[20:23], 0 offen offset:{1280*i}' + NT(1))
    a.srd(28, 10, 640 * 8)
    a(f'buffer_load_dwordx4 v[{W}:{W+3}], v5, s[28:31], 0 offen')
    a.srd(24, 8, NB)
    for i in range(8):
        so = '0' if i < 4 else 's18'
        a(f'buffer_load_dword v{VV+i}, v3, s[24:27], {so} offen offset:{1280*(i%4)}' + NT(1))
    a(';STAMP Tiss\ns_barrier\n;STAMP Tbar')
    a.srd(32, 4, NB)
    a.srd(36, 52, NB)
    a(f'''
    s_mul_i32 s67, s64, {RS}
    s_lshl_b32 s40, s{S_TT}, 6
    s_add_u32 s67, s67, s40
    s_add_u32 s67, s67, {WS_Y2}
    s_add_u32 s68, s67, {16*RS}
    s_mul_i32 s40, s3, 2304
    s_add_u32 s40, s40, {L_TP}
    v_lshrrev_b32 v91, 3, v0
    v_add_u32 v91, v91, v0
    v_lshl_add_u32 v91, v91, 4, s40
    v_and_b32 v90, 15, v0
    v_mul_u32_u24 v90, 144, v90
    v_lshrrev_b32 v93, 4, v0
    v_lshl_add_u32 v94, v93, 4, v90
    v_add_u32 v94, s40, v94
    v_sub_u32 v93, 3, v93
    v_lshl_add_u32 v90, v93, 4, v90
    v_add_u32 v90, s40, v90
    v_mov_b32 v92, {L_CNT}
    s_mov_b32 s{C_NL2E}, {NLOG2E}
    s_mov_b32 s{C_NL2E+1}, {NLOG2E}
    s_mov_b32 s{C_ONE}, 1.0
    s_mov_b32 s{C_ONE+1}, 1.0
    v_mov_b32 v93, 1
    ''')
    if OPT['ho1']:
        a('s_waitcnt vmcnt(20)\ns_mov_b64 exec, 1\nds_add_u32 v92, v93 offset:28\ns_mov_b64 exec, -1')
    a(f'''
    s_waitcnt vmcnt(8)
    ;STAMP T0
    ''')
    for j in range(4):
        for hf in range(2):
            src = W + 2 * hf + j // 2
            if j % 2 == 0:
                a(f'v_lshlrev_b32 v{WF+2*j+hf}, 16, v{src}')
            else:
                a(f'v_and_b32 v{WF+2*j+hf}, 0xffff0000, v{src}')
    for i in range(11):
        unpack(a, KF + 2 * i, KK + i)
    for t in range(8):
        a(f'v_pk_mul_f32 {pr(S+2*t)}, {pr(KF+2*t)}, {pr(WF+6)}')
    for j in (2, 1, 0):
        for t in range(8):
            a(f'v_pk_fma_f32 {pr(S+2*t)}, {pr(KF+2*(t+3-j))}, {pr(WF+2*j)}, {pr(S+2*t)}')
    def lwait():
        l = a.spin_begin('LS')
        a(f'ds_read_b64 v[88:89], v92 offset:{4*C_CLR-4}\ns_waitcnt lgkmcnt(0)\nv_cmp_gt_u32 vcc, 4, v89')
        a.spin_end_vcc(l)
        a('ds_read_b32 v88, v92 offset:16')
    a(';STAMP Tlw\ns_waitcnt vmcnt(0)\n;STAMP Tv')
    for t in range(8):
        unpack(a, KF + 2 * t, VV + t)
    for t in range(8):
        a(f'v_pk_mul_f32 {pr(S+2*t)}, {pr(S+2*t)}, {pr(KF+2*t)}')
    for hf in range(2):
        for m in range(4):
            a(f'v_cvt_pk_bf16_f32 v{P+4*hf+m}, v{S+2*(7-2*m)+hf}, v{S+2*(6-2*m)+hf}')
        a(f'ds_write_b128 v90, v[{P+4*hf}:{P+4*hf+3}] offset:{64*hf}')
    if True:
        a(f'ds_read_b128 v[{S}:{S+3}], v91\nds_read_b128 v[{S+4}:{S+7}], v91 offset:1152')
        for hf in range(2):
            a(f's_waitcnt lgkmcnt({1-hf})\nbuffer_store_dwordx4 v[{S+4*hf}:{S+4*hf+3}], v6, {WS}, s{65+hf} offen sc1')
    a('s_mov_b64 exec, 1\nds_add_u32 v92, v93 offset:24\ns_mov_b64 exec, -1\n;STAMP T1')
    Q, ST, X, F, T = 8, 16, 32, 48, 64
    for i in range(8):
        so = '0' if i < 4 else 's18'
        a(f'buffer_load_dword v{Q+i}, v3, s[32:35], {so} offen offset:{1280*(i%4)}')
    a(f'v_lshlrev_b32 v5, 4, v2\nv_add_u32 v5, {WS_RI+64}, v5')

    def stl():
        for i in range(4):
            a(f'buffer_load_dwordx4 v[{ST+4*i}:{ST+4*i+3}], v5, {WS}, 0 offen offset:{16*i} sc1')
    stl()
    lwait()
    if not OPT['ho1']:
        a(f'''
        s_lshr_b32 s40, s64, 5
        s_lshl_b32 s40, s40, 6
        s_add_u32 s40, s40, s{S_TT}
        s_lshl_b32 s40, s40, 7
        s_add_u32 s40, s40, {WS_F1}
        v_mov_b32 v89, s40
        s_waitcnt vmcnt(12) lgkmcnt(0)
        s_mov_b64 exec, 1
        buffer_store_dword v88, v89, {WS}, 0 offen sc1
        ds_add_u32 v92, v93 offset:32
        s_mov_b64 exec, -1
        ''')
    a(f's_waitcnt lgkmcnt(0)\nv_readfirstlane_b32 s{S_EP}, v88')

    def tpf():
        e = a.lab('TP')
        a(f's_cmp_ge_u32 s3, 3\ns_cbranch_scc1 {e}\nv_mov_b32 v1, v0')
        prefetch(a, 95, 76)
        a.label(e)
    e = a.lab('TS0')
    a(f's_waitcnt vmcnt({0 if OPT["ho1"] else 1})')
    a.tagcheck(T + 8, [ST + 2 * i + 1 for i in range(8)])
    a(f's_cbranch_vccz {e}\ns_mov_b64 exec, vcc')
    l = a.spin_begin('TS')
    stl()
    a('s_waitcnt vmcnt(0)')
    a.tagcheck(T + 8, [ST + 2 * i + 1 for i in range(8)])
    a.spin_end_exec(l)
    a.label(e)
    if OPT['pfat'] == 0:
        tpf()
    for t in range(8):
        a(f'v_and_b32 v{T+2*t}, 0xffff0000, v{ST+2*t}')
        a(f'v_lshlrev_b32 v{ST+2*t}, 16, v{ST+2*t}')
        a(f'v_rcp_f32 v{T+2*t}, v{T+2*t}')
    for t in range(8):
        unpack(a, X + 2 * t, Q + t)
    for t in range(8):
        a(f'v_pk_add_f32 {pr(F+2*t)}, {pr(X+2*t)}, {pr(ST+2*t)} op_sel_hi:[1,0] neg_lo:[0,1] neg_hi:[0,1]')

    def round_pairs(base):
        for t in range(8):
            a(f'v_cvt_pk_bf16_f32 v{Q+t}, v{base+2*t}, v{base+2*t+1}')
        for t in range(8):
            unpack(a, base + 2 * t, Q + t)
    round_pairs(F)
    for t in range(8):
        a(f'v_pk_mul_f32 {pr(F+2*t)}, {pr(F+2*t)}, {pr(T+2*t)} op_sel_hi:[1,0]')
    round_pairs(F)
    for t in range(8):
        a(f'v_pk_mul_f32 {pr(T+2*t)}, {pr(F+2*t)}, s[{C_NL2E}:{C_NL2E+1}]')
    for i in range(16):
        a(f'v_exp_f32 v{T+i}, v{T+i}')
    for t in range(8):
        a(f'v_pk_mul_f32 {pr(F+2*t)}, {pr(F+2*t)}, {pr(F+2*t)}')
        a(f'v_pk_add_f32 {pr(T+2*t)}, {pr(T+2*t)}, s[{C_ONE}:{C_ONE+1}]')
    for i in range(16):
        a(f'v_rcp_f32 v{T+i}, v{T+i}')
    for t in range(8):
        a(f'v_pk_mul_f32 {pr(F+2*t)}, {pr(F+2*t)}, {pr(T+2*t)}')
    a(';STAMP T2')
    if OPT['pfat'] == 1:
        tpf()
    e = a.lab('TC')
    a(f'''
    s_cmp_lg_u32 s3, 4
    s_cbranch_scc1 {e}
    s_cmp_ge_u32 s{S_J}, 20
    s_cbranch_scc1 {e}
    s_mul_i32 s40, s{S_X}, 20
    s_add_u32 s40, s40, s{S_J}
    s_mul_i32 s41, s40, {4*RS}
    s_add_u32 s41, s41, {WS_Y2}
    s_lshl_b32 s40, s40, 7
    s_add_u32 s40, s40, {WS_F2}
    v_mov_b32 v8, s40
    v_mov_b32 v9, s{S_EP}
    v_lshlrev_b32 v10, 4, v0
    v_mov_b32 v12, -1
    v_mov_b32 v13, -1
    v_mov_b32 v14, -1
    v_mov_b32 v15, -1
    ''')
    l = a.spin_begin('LS')
    a('ds_read_b32 v11, v92 offset:40\ns_waitcnt lgkmcnt(0)\nv_cmp_gt_u32 vcc, 1, v11')
    a.spin_end_vcc(l)
    for c in range(4):
        for m in range(4):
            a(f'buffer_store_dwordx4 v[12:15], v10, {WS}, s41 offen offset:{1024*m} sc1')
        if c < 3:
            a(f's_add_u32 s41, s41, {RS}')
    a(f'''
    s_waitcnt vmcnt(0)
    s_mov_b64 exec, 1
    buffer_store_dword v9, v8, {WS}, 0 offen sc1
    ds_write_b32 v92, v93 offset:44
    s_mov_b64 exec, -1
    ''')
    a.label(e)
    a(f'''
    v_and_b32 v8, 7, v0
    v_lshlrev_b32 v8, 3, v8
    s_lshl_b32 s40, s{S_X}, 7
    s_add_u32 s40, s40, {WS_IDX}
    v_lshlrev_b32 v9, 7, v0
    s_lshl_b32 s41, s64, 5
    s_add_u32 s41, s41, {WS_F2}
    ''')
    o, e = a.lab('TO'), a.lab('TE')
    a(f's_cmp_ge_u32 s{S_J}, 20\ns_cbranch_scc1 {o}')
    l = a.spin_begin('TI')
    a(f'buffer_load_dwordx2 v[10:11], v8, {WS}, s40 offen sc1\ns_waitcnt vmcnt(0)')
    a.tagcheck(14, [11])
    a.spin_end_vcc(l)
    l = a.spin_begin('LT')
    a('ds_read_b32 v11, v92 offset:44\ns_waitcnt lgkmcnt(0)\nv_cmp_gt_u32 vcc, 1, v11')
    a.spin_end_vcc(l)
    a(f's_branch {e}')
    a.label(o)
    l = a.spin_begin('LT')
    a('ds_read_b32 v11, v92 offset:48\ns_waitcnt lgkmcnt(0)\nv_cmp_gt_u32 vcc, 1, v11')
    a.spin_end_vcc(l)
    a(f'''
    v_lshrrev_b32 v8, 1, v8
    ds_read_b32 v10, v8 offset:{L_SLOT}
    s_waitcnt lgkmcnt(0)
    v_and_b32 v10, 0x7ff, v10
    v_sub_u32 v10, 2047, v10
    ''')
    a.label(e)
    a('s_mov_b64 exec, 0xff')
    l = a.spin_begin('TF')
    a(f'buffer_load_dword v12, v9, {WS}, s41 offen sc1\ns_waitcnt vmcnt(0)')
    a.tagcheck(14, [12])
    a.spin_end_exec(l)
    Y = 80
    a('v_mov_b32 v6, 0')
    for k in range(8):
        a(f'v_readlane_b32 s{44+k}, v10, {k}')
    for k in range(8):
        a(f'''
        v_sub_u32 v8, s{44+k}, v2
        v_cmp_gt_u32 vcc, 8, v8
        v_lshlrev_b32 v8, v8, 1
        v_cndmask_b32 v8, 0, v8, vcc
        v_or_b32 v6, v6, v8
        ''')
    AD = 16
    for t in range(8):
        a(f'v_bfe_i32 v{AD+t}, v6, {t}, 1\nv_and_b32 v{AD+t}, 0x80000000, v{AD+t}\nv_or_b32 v{AD+t}, v{AD+t}, v3')
    a(f's_lshl_b32 s40, s64, 2\ns_add_u32 s40, s40, {WS_F3}\nv_mov_b32 v8, 0')
    l = a.spin_begin('TH')
    a(f'buffer_load_dword v9, v8, {WS}, s40 offen sc1\ns_waitcnt vmcnt(0)')
    a.tagcheck(14, [9])
    a.spin_end_vcc(l)
    l = a.spin_begin('TY')
    a(f'buffer_load_dwordx4 v[{Y}:{Y+3}], v7, {WS}, s67 offen sc1')
    a(f'buffer_load_dwordx4 v[{Y+4}:{Y+7}], v7, {WS}, s68 offen sc1')
    a('s_waitcnt vmcnt(0)')
    a.maxtree(8, range(Y, Y + 8))
    a('v_cmp_eq_u32 vcc, -1, v8')
    a.spin_end_exec(l)
    a(f''';STAMP T3
    ds_write_b128 v91, v[{Y}:{Y+3}]
    ds_write_b128 v91, v[{Y+4}:{Y+7}] offset:1152
    ds_read_b128 v[{Y}:{Y+3}], v94
    ds_read_b128 v[{Y+4}:{Y+7}], v94 offset:64
    s_waitcnt lgkmcnt(0)
    ''')
    for t in range(8):
        for hf in range(2):
            src = Y + 4 * hf + t // 2
            if t % 2 == 0:
                a(f'v_lshlrev_b32 v{T+2*t+hf}, 16, v{src}')
            else:
                a(f'v_and_b32 v{T+2*t+hf}, 0xffff0000, v{src}')
        a(f'v_pk_fma_f32 {pr(T+2*t)}, {pr(T+2*t)}, {pr(F+2*t)}, {pr(X+2*t)}')
        a(f'v_cvt_pk_bf16_f32 v{Q+t}, v{T+2*t}, v{T+2*t+1}')
        so = '0' if t < 4 else 's18'
        a(f'buffer_store_dword v{Q+t}, v{AD+t}, s[36:39], {so} offen offset:{1280*(t%4)}')
    a('s_endpgm')


LX, LW, LF = 72, 84, 96
HD, HX = 40, 56


def ln_loads(a):
    a(f'''
    s_lshl_b32 s76, s{S_TT}, 2
    s_add_u32 s76, s76, s{S_G}
    s_lshl_b32 s18, s76, 3
    s_lshl_b32 s19, s3, 1
    s_add_u32 s18, s18, s19
    v_and_b32 v1, 63, v0
    v_lshrrev_b32 v2, 5, v1
    v_add_u32 v2, s18, v2
    v_and_b32 v3, 31, v1
    v_lshlrev_b32 v4, 4, v3
    v_lshlrev_b32 v5, 3, v3
    v_mul_u32_u24 v6, 1280, v2
    v_add_u32 v7, v6, v5
    v_add_u32 v6, v6, v4
    s_waitcnt lgkmcnt(0)
    ''')
    a.srd(20, 4, NB)
    a(f'''
    buffer_load_dwordx4 v[{LX}:{LX+3}], v6, s[20:23], 0 offen
    buffer_load_dwordx4 v[{LX+4}:{LX+7}], v6, s[20:23], 0 offen offset:512
    buffer_load_dwordx2 v[{LX+8}:{LX+9}], v7, s[20:23], 0 offen offset:1024
    ''')
    a.srd(24, 44, 1280)
    a(f'''
    buffer_load_dwordx4 v[{LW}:{LW+3}], v4, s[24:27], 0 offen
    buffer_load_dwordx4 v[{LW+4}:{LW+7}], v4, s[24:27], 0 offen offset:512
    buffer_load_dwordx2 v[{LW+8}:{LW+9}], v5, s[24:27], 0 offen offset:1024
    ''')
    a.srd(60, 54, WS_SIZE)
    a(f'''
    v_mov_b32 v12, 0
    v_mov_b32 v13, 0
    v_mov_b32 v14, 0
    v_mov_b32 v15, 0
    v_mov_b32 v11, {L_CNT}
    ds_write_b128 v11, v[12:15]
    ds_write_b32 v11, v12 offset:20
    ds_write_b64 v11, v[12:13] offset:24
    ds_write_b128 v11, v[12:15] offset:32
    ds_write_b128 v11, v[12:15] offset:48
    s_waitcnt lgkmcnt(0)
    s_barrier
    s_load_dword s{S_EP}, s[54:55], {WS_E}
    ''')


def prefetch(a, vb=16, sb=36):
    e, d, c = a.lab('PF'), a.lab('PF'), a.lab('PF')
    a(f'''
    s_mul_i32 s40, s{S_J}, 60
    v_min_u32 v{vb}, 59, v1
    v_add_u32 v{vb}, s40, v{vb}
    s_cmp_eq_u32 s3, 2
    s_cbranch_scc1 {d}
    s_mov_b32 s40, 0x5556
    v_mul_u32_u24 v{vb+1}, s40, v{vb}
    v_lshrrev_b32 v{vb+1}, 16, v{vb+1}
    v_mul_u32_u24 v{vb+1}, {3072-384}, v{vb+1}
    v_lshl_add_u32 v{vb}, v{vb}, 7, v{vb+1}
    s_mul_i32 s40, s{S_X}, 384
    s_cmp_eq_u32 s3, 0
    s_cselect_b32 s{sb}, s46, s48
    s_cselect_b32 s{sb+1}, s47, s49
    s_mov_b32 s{sb+2}, {640*3072}
    s_mov_b32 s{sb+3}, 0x20000
    buffer_load_dword v{vb+2}, v{vb}, s[{sb}:{sb+3}], s40 offen
    s_branch {e}
    ''')
    a.label(d)
    a(f'v_lshlrev_b32 v{vb}, 7, v{vb}\ns_mul_i32 s40, s{S_X}, {192*1280}')
    a.srd(sb, 50, 1536 * 1280)
    a(f'buffer_load_dword v{vb+2}, v{vb}, s[{sb}:{sb+3}], s40 offen')
    a.label(e)


def ln_compute(a, later, extra):
    if OPT['pfat'] == 2:
        e = a.lab('LP')
        a(f's_cmp_ge_u32 s3, 3\ns_cbranch_scc1 {e}')
        prefetch(a, 68, 36)
        a.label(e)
        a('s_waitcnt vmcnt(0)')
    A = 120
    a(f'''
    v_mov_b32 v18, 1
    s_mov_b32 s{ONES}, 0x3f803f80
    s_mov_b32 s41, {INV640}
    s_waitcnt vmcnt({3 + (0 if OPT['late'] else later)})
    ''')
    if OPT['late'] == 1:
        extra()
    a(f'''
    s_mov_b32 s41, {INV640}
    v_dot2_f32_bf16 v{A}, v{LX}, s{ONES}, 0
    ''')
    for i in range(1, 10):
        a(f'v_dot2_f32_bf16 v{A}, v{LX+i}, s{ONES}, v{A}')
    for i in range(3):
        unpack(a, LF + 2 * i, LX + i)
    for n, sh in enumerate((8, 4, 2, 1)):
        a(f'v_add_f32_dpp v{A}, v{A}, v{A} row_ror:{sh} row_mask:0xf bank_mask:0xf')
        unpack(a, LF + 2 * (3 + n), LX + 3 + n)
    a(f'v_mov_b32 v{A+1}, v{A}')
    unpack(a, LF + 14, LX + 7)
    a(f'v_permlane16_swap_b32 v{A}, v{A+1}')
    unpack(a, LF + 16, LX + 8)
    a(f'v_add_f32 v{A}, v{A}, v{A+1}')
    unpack(a, LF + 18, LX + 9)
    a(f'v_mul_f32 v{A}, s41, v{A}')
    rnd(a, A + 2, A)
    a(f'v_sub_f32 v{A}, v{A}, v{A+2}')
    for i in range(10):
        a(f'v_pk_add_f32 {pr(LF+2*i)}, {pr(LF+2*i)}, {pr(A+2)} op_sel_hi:[1,0] neg_lo:[0,1] neg_hi:[0,1]')
    a(f'v_pk_mul_f32 {pr(A+4)}, {pr(LF)}, {pr(LF)}')
    for i in range(1, 10):
        a(f'v_pk_fma_f32 {pr(A+4)}, {pr(LF+2*i)}, {pr(LF+2*i)}, {pr(A+4)}')
    a(f'v_add_f32 v{A+4}, v{A+4}, v{A+5}')
    cv = [f'v_cvt_pk_bf16_f32 v{LX+i}, v{LF+2*i}, v{LF+2*i+1}' for i in range(10)]
    a(cv.pop(0) + '\n' + cv.pop(0))
    for sh in (8, 4, 2, 1):
        a(f'v_add_f32_dpp v{A+4}, v{A+4}, v{A+4} row_ror:{sh} row_mask:0xf bank_mask:0xf')
        a(cv.pop(0) + '\n' + cv.pop(0))
    a(f'v_mov_b32 v{A+1}, v{A+4}')
    unpack(a, LF, LX)
    a(f'v_permlane16_swap_b32 v{A+4}, v{A+1}')
    a(f'''
    v_add_f32 v{A+4}, v{A+4}, v{A+1}
    v_mul_f32 v{A+4}, s41, v{A+4}
    v_fma_f32 v{A+4}, -v{A}, v{A}, v{A+4}
    v_max_f32 v{A+4}, 0, v{A+4}
    ''')
    rnd(a, A + 4, A + 4)
    a(f'v_add_f32 v{A+4}, {EPS}, v{A+4}')
    rnd(a, A + 4, A + 4)
    a(f'v_sqrt_f32 v{A+4}, v{A+4}')
    unpack(a, LF + 2, LX + 1)
    rnd(a, A + 4, A + 4)
    a(f'v_rcp_f32 v{A+6}, v{A+4}')
    for i in range(2, 10):
        unpack(a, LF + 2 * i, LX + i)
    for i in range(10):
        a(f'v_pk_mul_f32 {pr(LF+2*i)}, {pr(LF+2*i)}, {pr(A+6)} op_sel_hi:[1,0]')
    for i in range(10):
        a(f'v_cvt_pk_bf16_f32 v{LX+i}, v{LF+2*i}, v{LF+2*i+1}')
    a(f'''
    s_waitcnt vmcnt({0 if OPT['late'] == 2 else later}) lgkmcnt(0)
    s_add_u32 s{S_EP}, s{S_EP}, 1
    v_mov_b32 v17, s{S_EP}
    s_mov_b64 exec, 1
    ds_write_b32 v11, v17 offset:16
    ds_add_u32 v11, v18 offset:{4*C_CLR}
    s_mov_b64 exec, -1
    ''')
    a(f'v_dot2_f32_bf16 v{A+6}, v{LX}, v{LW}, 0')
    for i in range(1, 10):
        a(f'v_dot2_f32_bf16 v{A+6}, v{LX+i}, v{LW+i}, v{A+6}')
    a(f'''
    v_lshrrev_b32 v{A+2}, 16, v{A+2}
    v_or_b32 v{LF}, v{A+2}, v{A+4}
    v_and_b32 v{LF+4}, 7, v2
    v_lshlrev_b32 v{LF+4}, 3, v{LF+4}
    v_mov_b32 v{LF+1}, s{S_EP}
    v_mov_b32 v{LF+3}, s{S_EP}
    v_mov_b32 v{LF+7}, 1
    v_lshlrev_b32 v{LF+6}, 4, v1
    ''')
    reduce32(a, A + 6, A + 1)
    a(f'''
    v_add_f32 v{A+6}, 0, v{A+6}
    v_cvt_pk_bf16_f32 v{A+6}, v{A+6}, v{A+6}
    v_ashrrev_i32 v{A+7}, 31, v{A+6}
    v_or_b32 v{A+7}, 0x80000000, v{A+7}
    v_xor_b32 v{A+6}, v{A+6}, v{A+7}
    v_and_b32 v{A+6}, 0xffff0000, v{A+6}
    v_sub_u32 v{A+7}, 2047, v2
    v_or_b32 v{LF+2}, v{A+6}, v{A+7}
    ''')
    if OPT['ho1']:
        l = a.spin_begin('LS')
        a(f'ds_read_b32 v{LF+8}, v11 offset:28\ns_waitcnt lgkmcnt(0)\nv_cmp_gt_u32 vcc, 5, v{LF+8}')
        a.spin_end_vcc(l)
    a(f'''
    s_mov_b32 exec_lo, 1
    s_mov_b32 exec_hi, 1
    ds_write_b64 v{LF+4}, v[{LF+2}:{LF+3}] offset:{L_RI}
    ds_write_b64 v{LF+4}, v[{LF}:{LF+1}] offset:{L_RI+64}
    s_mov_b32 exec_hi, 0
    ds_add_rtn_u32 v{LF+7}, v11, v{LF+7} offset:20
    s_mov_b64 exec, 0xff
    ds_read_b128 v[{LF+12}:{LF+15}], v{LF+6} offset:{L_RI}
    s_lshl_b32 s40, s76, 7
    s_add_u32 s40, s40, {WS_RI}
    s_waitcnt lgkmcnt(0)
    v_readfirstlane_b32 s41, v{LF+7}
    s_cmp_eq_u32 s41, 3
    s_cselect_b32 s40, s40, 0x80000000
    buffer_store_dwordx4 v[{LF+12}:{LF+15}], v{LF+6}, {WS}, s40 offen sc1
    s_mov_b64 exec, -1
    ''')
    if OPT['late'] == 2:
        extra()


def lds_schedule(a, ops):
    issued, pos, done = 0, {}, 0
    for o in ops:
        if o[0] == 'ld':
            a(o[1])
            issued += 1
            pos[o[2]] = issued
        elif o[0] == 'raw':
            a(o[1])
        else:
            needp = max(pos[k] for k in o[2])
            if needp > done:
                n = issued - needp
                n = min(n, 15)
                a(f's_waitcnt lgkmcnt({n})')
                done = issued - n
            a(o[1])


def conv_role(a):
    a(f'''
    s_mul_i32 s18, s{S_X}, 80
    s_lshl_b32 s19, s{S_J}, 2
    s_add_u32 s19, s19, s3
    s_add_u32 s64, s18, s19
    s_lshl_b32 s65, s64, 12
    s_mul_i32 s66, s64, {RS}
    s_mul_i32 s59, s64, {RSU}
    s_mul_i32 s67, s3, {CW_LDS}
    v_lshlrev_b32 v8, 4, v1
    ''')
    a.srd(28, 12, NB)

    def extra():
        if OPT['gate']:
            l = a.spin_begin('LS')
            a('ds_read_b32 v16, v11 offset:24\ns_waitcnt lgkmcnt(0)\nv_cmp_gt_u32 vcc, 5, v16')
            a.spin_end_vcc(l)
        for m in range(4):
            a(f'buffer_load_dwordx4 v[{HD+4*m}:{HD+4*m+3}], v8, s[28:31], s65 offen offset:{1024*m}' + NT(2))
    if not OPT['late']:
        extra()
    a(f'''
    s_lshl_b32 s40, s64, 1
    s_and_b32 s40, s40, 0xfffffffc
    s_add_u32 s14, s14, s40
    s_addc_u32 s15, s15, 0
    s_load_dword s68, s[14:15], 0
    v_add_u32 v9, s67, v8
    v_mov_b32 v12, 0
    v_mov_b32 v13, 0
    v_mov_b32 v14, 0
    v_mov_b32 v15, 0
    s_mov_b64 exec, 0x3fffffff
    ds_write_b128 v9, v[12:15] offset:{U_OFF+4096}
    s_mov_b64 exec, 3
    ds_write_b128 v9, v[12:15] offset:{H0_OFF}
    ds_write_b128 v9, v[12:15] offset:{H1_OFF}
    s_mov_b64 exec, -1
    ''')
    ln_compute(a, 4, extra)
    a(';STAMP C0')
    AA, GA = 136, 140
    a(f'''
    v_and_b32 v10, 15, v1
    v_lshrrev_b32 v11, 4, v1
    v_and_b32 v16, 1, v10
    v_add_u32 v{AA}, v10, v16
    v_lshlrev_b32 v{AA}, 1, v{AA}
    v_lshl_add_u32 v{AA}, v11, 4, v{AA}
    v_xor_b32 v16, 1, v16
    v_mul_u32_u24 v16, {H1_OFF}, v16
    v_add3_u32 v{AA}, v{AA}, v16, s67
    v_add_u32 v{AA+1}, 1024, v{AA}
    v_add_u32 v{AA+2}, 2048, v{AA}
    v_add_u32 v{AA+3}, 3072, v{AA}
    v_lshlrev_b32 v{GA}, 5, v10
    v_sub_u32 v{GA}, {U_OFF+480}, v{GA}
    v_lshl_add_u32 v{GA}, v11, 4, v{GA}
    v_add_u32 v{GA}, s67, v{GA}
    v_lshlrev_b32 v{GA+1}, 5, v10
    v_lshl_add_u32 v{GA+1}, v11, 3, v{GA+1}
    v_sub_u32 v{GA+2}, {U_OFF+2*2044-3584}, v{GA+1}
    v_add_u32 v{GA+2}, s67, v{GA+2}
    v_lshlrev_b32 v{GA+1}, 5, v10
    v_and_b32 v16, 1, v11
    v_lshl_add_u32 v{GA+1}, v16, 9, v{GA+1}
    v_lshrrev_b32 v16, 1, v11
    v_lshl_add_u32 v{GA+1}, v16, 4, v{GA+1}
    s_waitcnt vmcnt({0 if OPT['late'] == 2 else 1})
    ''')
    for m in range(4):
        a(f'v_mov_b32_dpp v{HX+m}, v{HD+4*m} wave_shl:1 row_mask:0xf bank_mask:0xf')
    for m in range(3):
        a(f'v_readlane_b32 s{40+m}, v{HD+4*m+4}, 0')
    for m in range(3):
        a(f'v_writelane_b32 v{HX+m}, s{40+m}, 63')
    for m in range(4):
        a(f'ds_write_b128 v9, v[{HD+4*m}:{HD+4*m+3}] offset:{H0_OFF+32+1024*m}')
        T = 20 + 4 * m
        for d in range(4):
            hi = HD + 4 * m + d + 1 if d < 3 else HX + m
            a(f'v_alignbyte_b32 v{T+d}, v{hi}, v{HD+4*m+d}, 2')
        a(f'ds_write_b128 v9, v[{T}:{T+3}] offset:{H1_OFF+32+1024*m}')
    a(f'''
    v_lshlrev_b32 v16, 16, v{HD}
    s_mov_b64 exec, 1
    ds_write_b32 v9, v16 offset:{H1_OFF+28}
    s_mov_b64 exec, -1
    ''')
    if OPT['ho1']:
        a(f's_lshr_b32 s40, s{S_X}, 1\ns_lshl_b32 s40, s40, 7\ns_add_u32 s40, s40, {WS_RI+4}\nv_lshlrev_b32 v16, 9, v1')
    else:
        a(f's_lshr_b32 s40, s64, 5\ns_lshl_b32 s40, s40, 13\ns_add_u32 s40, s40, {WS_F1}\nv_lshlrev_b32 v16, 7, v1')
    UD = 72
    ACC, AF, GF = 8, 40, 72

    def ldA(g, rho):
        o = 128 * (g & 1) + 16 * rho
        r = AF + 4 * g
        return [('ld', f'ds_read2_b32 v[{r}:{r+1}], v{AA+g//2} offset0:{o} offset1:{o+1}', ('A0', g, rho)),
                ('ld', f'ds_read2_b32 v[{r+2}:{r+3}], v{AA+g//2} offset0:{o+2} offset1:{o+3}', ('A', g, rho))]
    for g in range(7, -1, -1):
        for o in ldA(g, 0):
            a(o[1])
    a(f'v_mov_b32 v19, {L_CNT}')
    l = a.spin_begin('LS')
    a(f'ds_read_b32 v17, v19 offset:{24 if OPT["ho1"] else 32}\ns_waitcnt lgkmcnt(0)\nv_cmp_gt_u32 vcc, 5, v17')
    a.spin_end_vcc(l)
    if OPT['ho1']:
        l = a.spin_begin('CF')
        a(f'buffer_load_dword v17, v16, {WS}, s40 offen sc1\ns_waitcnt vmcnt(0)')
        a.tagcheck(18, [17])
        a.spin_end_exec(l)
    else:
        o, e = a.lab('CO'), a.lab('CE')
        a(f's_cmp_lg_u32 s3, 0\ns_cbranch_scc1 {o}')
        l = a.spin_begin('CF')
        a(f'buffer_load_dword v17, v16, {WS}, s40 offen sc1\ns_waitcnt vmcnt(0)')
        a.tagcheck(18, [17])
        a.spin_end_exec(l)
        a(f'v_mov_b32 v17, 1\nds_write_b32 v19, v17 offset:36\ns_branch {e}')
        a.label(o)
        l = a.spin_begin('LS')
        a('ds_read_b32 v17, v19 offset:36\ns_waitcnt lgkmcnt(0)\nv_cmp_gt_u32 vcc, 1, v17')
        a.spin_end_vcc(l)
        a.label(e)
    a(f'''
    v_mov_b32 v{GA+3}, {L_CNT}
    v_mov_b32 v12, 1
    s_add_u32 s40, s59, {WS_UR}
    s_add_u32 s42, s59, {WS_UR+32*UPS}
    s_add_u32 s41, s66, {WS_Y2}
    v_lshrrev_b32 v16, 2, v1
    v_and_b32 v17, 3, v1
    v_lshlrev_b32 v17, 4, v17
    v_lshl_add_u32 v16, v16, {UPL}, v17
    ''')

    def greg(d, rho):
        return GF + 4 * d if ((d >= 2 and not OPT['gdb']) or rho % 2 == 0) else GF + 32 + 4 * d

    def ldG(d, rho):
        r = greg(d, rho)
        return [('ld', f'ds_read_b128 v[{r}:{r+3}], v{GA} offset:{512*(7-d)+64*rho}', ('G', d, rho))]
    if OPT['ho1']:
        l = a.spin_begin('CU')
    for m in range(4):
        a(f'buffer_load_dwordx4 v[{UD+4*m}:{UD+4*m+3}], v16, {WS}, s{40+2*(m//2)} offen offset:{16*UPS*(m%2)} sc1')
    if OPT['ho1']:
        a('s_waitcnt vmcnt(0)')
        a.maxtree(18, range(UD, UD + 16))
        a('v_cmp_eq_u32 vcc, -1, v18')
        a.spin_end_exec(l)
    if OPT['prio']:
        a('s_setprio 3')
    for m in range(4):
        if not OPT['ho1']:
            a(f's_waitcnt vmcnt({3-m})')
        a(f'ds_write_b128 v9, v[{UD+4*m}:{UD+4*m+3}] offset:{U_OFF+1024*m}')
    a(';STAMP C1')
    a(f's_mov_b64 exec, 1\nds_write_b32 v{GA+3}, v12 offset:40\ns_mov_b64 exec, -1')
    a('s_waitcnt lgkmcnt(0)')
    ops = []
    for d in range(8):
        ops += ldG(d, 0)
    first = set()
    pend = []
    for rho in range(8):
        nxt = rho + 1 < 8
        for g in range(7, -1, -1):
            for d in range(8 - g):
                i = g + d
                c = f'v[{ACC+4*i}:{ACC+4*i+3}]' if i in first else '0'
                first.add(i)
                keys = [('G', d, rho)] + ([('A', g, rho)] if rho else [])
                r = greg(d, rho)
                ops.append(('mfma', f'v_mfma_f32_16x16x32_bf16 v[{ACC+4*i}:{ACC+4*i+3}], v[{AF+4*g}:{AF+4*g+3}], v[{r}:{r+3}], {c}', keys))
                if pend:
                    ops.append(pend.pop(0))
                slot = {(4, 3): 0, (3, 3): 1, (2, 3): 2, (2, 5): 3, (1, 3): 4, (1, 5): 5, (0, 3): 6, (0, 5): 7}.get((g, d))
                if nxt and slot is not None:
                    ops += ldG(slot, rho + 1)
            if nxt:
                pend += ldA(g, rho + 1)
    lds_schedule(a, ops)
    UU, T = 40, 72
    for i in range(8):
        a(f'ds_read_b64 v[{UU+2*i}:{UU+2*i+1}], v{GA+2} offset:{512*(7-i)}')
    a(f'''
    s_and_b32 s41, s64, 1
    s_lshl_b32 s41, s41, 4
    s_lshr_b32 s68, s68, s41
    s_and_b32 s68, s68, 0xffff
    s_lshl_b32 s69, s68, 16
    s_add_u32 s40, s66, {WS_Y2}
    ''')
    l = a.spin_begin('LS')
    a(f'ds_read_b32 v{GA+4}, v{GA+3} offset:44\ns_waitcnt lgkmcnt(0)\nv_cmp_gt_u32 vcc, 1, v{GA+4}')
    a.spin_end_vcc(l)
    a(';STAMP C2')
    hint = f'''
    s_mov_b64 exec, 1
    buffer_store_dword v{GA+4}, v{GA+3}, {WS}, s41 offen sc1
    s_mov_b64 exec, -1
    '''
    a(f'''
    s_lshr_b32 s41, s64, 5
    s_lshl_b32 s41, s41, 7
    s_add_u32 s41, s41, {WS_F3}
    s_and_b32 s42, s64, 31
    s_cmp_eq_u32 s42, 31
    s_cselect_b32 s41, s41, 0x80000000
    v_mov_b32 v{GA+3}, 0
    v_mov_b32 v{GA+4}, s{S_EP}
    ''')
    if OPT['hint'] == 0:
        a(hint)
    OUT = 104

    def dots(i):
        for r in range(4):
            src = UU + 2 * i + (1 if r < 2 else 0)
            sel = 's69' if r % 2 == 0 else 's68'
            a(f'v_dot2_f32_bf16 v{T+4*i+r}, v{src}, {sel}, v{ACC+4*i+r}')

    def cvts(i):
        a(f'v_cvt_pk_bf16_f32 v{OUT+2*i}, v{T+4*i}, v{T+4*i+1}')
        a(f'v_cvt_pk_bf16_f32 v{OUT+2*i+1}, v{T+4*i+2}, v{T+4*i+3}')

    def put(p):
        a(f'v_permlane16_swap_b32 v{OUT+4*p}, v{OUT+4*p+2}')
        a(f'v_permlane16_swap_b32 v{OUT+4*p+1}, v{OUT+4*p+3}')
        a(f'buffer_store_dwordx4 v[{OUT+4*p}:{OUT+4*p+3}], v{GA+1}, {WS}, s40 offen offset:{1024*p} sc1')
    dots(0)
    dots(1)
    for p in range(4):
        if p < 3:
            dots(2 * p + 2)
        cvts(2 * p)
        cvts(2 * p + 1)
        if p < 3:
            dots(2 * p + 3)
        put(p)
    if OPT['hint'] == 2:
        a('s_waitcnt vmcnt(0)')
    if OPT['hint']:
        a(hint)
    a('s_endpgm')


SORT8 = [(0, 1), (2, 3), (4, 5), (6, 7), (0, 2), (1, 3), (4, 6), (5, 7), (1, 2), (5, 6), (0, 4), (3, 7), (1, 5), (2, 6), (1, 4), (3, 6), (2, 4), (3, 5), (3, 4)]
TOKEXEC = 's[78:79]'
TOKMASK = ('s_mov_b32 exec_lo, 0x00ff00ff\ns_mov_b32 exec_hi, 0x00ff00ff')


def silu(a, regs, tmp):
    for r, t in zip(regs, tmp):
        a(f'v_mul_f32 v{t}, {NLOG2E}, v{r}')
    for r, t in zip(regs, tmp):
        a(f'v_exp_f32 v{t}, v{t}')
    for r, t in zip(regs, tmp):
        a(f'v_add_f32 v{t}, 1.0, v{t}')
    for r, t in zip(regs, tmp):
        a(f'v_rcp_f32 v{t}, v{t}')
    for r, t in zip(regs, tmp):
        a(f'v_mul_f32 v{r}, v{r}, v{t}')


def ffn_role(a):
    a(f'''
    s_sub_u32 s65, s{S_J}, 20
    s_mul_i32 s64, s{S_X}, 12
    s_add_u32 s64, s64, s65
    v_lshrrev_b32 v8, 1, v1
    v_mul_u32_u24 v8, 3072, v8
    v_and_b32 v9, 1, v1
    v_lshl_add_u32 v8, v9, 4, v8
    s_mul_i32 s40, s3, {160*3072}
    s_lshl_b32 s41, s64, 5
    s_add_u32 s67, s40, s41
    s_mul_i32 s42, s3, 5120
    ''')
    a.srd(28, 46, 640 * 3072)
    a.srd(32, 48, 640 * 3072)
    def dma_ops():
        L = []
        for c in range(5):
            L.append(f's_add_u32 m0, s68, {L_G + 1024*c}\ns_add_u32 s69, s67, {c*32*3072}\nbuffer_load_dwordx4 v8, s[28:31], s69 offen lds')
            L.append(f's_add_u32 m0, s68, {L_U + 1024*c}\ns_nop 0\nbuffer_load_dwordx4 v8, s[32:35], s69 offen lds')
        for c in range(5):
            L.append(f's_add_u32 m0, s68, {L_D + 1024*c}\ns_nop 0\nbuffer_load_dwordx4 v{104+c}, s[36:39], s59 offen lds')
        kill = OPT.get('kill', 0)
        L = [('s_nop 1' if ((kill & 1 and ' lds' in o and 's[36:39]' not in o) or (kill & 2 and 'store' in o) or (kill & 4 and 's[36:39]' in o)) else o) for o in L]
        return L
    ln_compute(a, 0, lambda: None)
    a(f'''
    v_and_b32 v2, 15, v1
    v_lshrrev_b32 v3, 4, v1
    v_mul_u32_u24 v10, {PTOK}, v2
    v_lshl_add_u32 v10, v3, 4, v10
    s_mov_b32 s78, 0x00ff00ff
    s_mov_b32 s79, 0x00ff00ff
    s_mul_i32 s66, s64, {PF}
    s_mul_i32 s41, s3, {10*PPS}
    s_add_u32 s66, s66, s41
    s_add_u32 s66, s66, {WS_P}
    s_lshl_b32 s40, s3, 13
    s_add_u32 s40, s40, {WS_RI}
    s_add_u32 s43, s40, 4096
    v_lshrrev_b32 v4, 2, v1
    v_and_b32 v5, 3, v1
    v_lshlrev_b32 v5, 4, v5
    v_lshl_add_u32 v4, v4, 7, v5
    ''')
    a(f'''
    s_mul_i32 s68, s3, 5120
    s_mul_i32 s59, s64, {16*1280}
    s_mul_i32 s41, s3, 320
    s_add_u32 s59, s59, s41
    s_mov_b32 s41, 0xcccd
    ''')
    for c in range(5):
        a(f'''
        v_add_u32 v{104+c}, {64*c}, v1
        v_mul_u32_u24 v9, s41, v{104+c}
        v_lshrrev_b32 v9, 20, v9
        v_mul_u32_u24 v9, {1280-320}, v9
        v_lshl_add_u32 v{104+c}, v{104+c}, 4, v9
        ''')
    l = a.spin_begin('LS')
    a('ds_read_b32 v9, v11 offset:24\ns_waitcnt lgkmcnt(0)\nv_cmp_gt_u32 vcc, 5, v9')
    a.spin_end_vcc(l)
    a.srd(36, 50, 1536 * 1280)
    D = dma_ops()
    DM = [o for o in D if ' lds' in o or 's_nop 1' == o]
    D = []
    KG = 16
    if OPT.get('kill', 0) & 16:
        a('s_sleep 40')
    l = a.spin_begin('FK')
    for i in range(4):
        a(f'buffer_load_dwordx4 v[{KG+4*i}:{KG+4*i+3}], v4, {WS}, s{40+3*(i//2)} offen offset:{2048*(i%2)} sc1')
    a('s_waitcnt vmcnt(0)')
    a.tagcheck(32, [KG + 2 * i + 1 for i in range(8)])
    a.spin_end_exec(l)
    a(';STAMP F0')
    key = [KG + 2 * i for i in range(8)]
    spare = KG + 1
    for (i, j) in SORT8:
        a(f'v_max_u32 v{spare}, v{key[i]}, v{key[j]}\nv_min_u32 v{key[j]}, v{key[i]}, v{key[j]}')
        key[i], spare = spare, key[i]
    a('v_mov_b32 v34, 0')
    for rd in range(8):
        a(f'v_max_u32_dpp v33, v{key[0]}, v{key[0]} row_ror:8 row_mask:0xf bank_mask:0xf')
        for sh in (4, 2, 1):
            if D:
                a(D.pop(0))
            a(f'v_max_u32_dpp v33, v33, v33 row_ror:{sh} row_mask:0xf bank_mask:0xf')
        a('''
        v_readlane_b32 s40, v33, 0
        v_readlane_b32 s41, v33, 16
        v_readlane_b32 s42, v33, 32
        v_readlane_b32 s43, v33, 48
        s_max_u32 s40, s40, s41
        s_max_u32 s42, s42, s43
        s_max_u32 s40, s40, s42
        ''')
        if rd < 7:
            a(f'v_cmp_eq_u32 vcc, s40, v{key[0]}')
        a(f'v_writelane_b32 v34, s40, {rd}')
        for i in range(7 - rd):
            a(f'v_cndmask_b32 v{key[i]}, v{key[i]}, v{key[i+1]}, vcc')
    assert not D
    a(f'''
    s_lshl_b32 s40, s3, 5
    s_add_u32 s40, s40, {L_CAND}
    v_lshl_add_u32 v35, v1, 2, s40
    s_mov_b64 exec, 0xff
    ds_write_b32 v35, v34
    s_mov_b64 exec, -1
    ''')
    a.ldsync(11, 35, 0)
    sk = a.lab('RB')
    a(f'''
    s_or_b32 s40, s64, s3
    s_cmp_lg_u32 s40, 0
    s_cbranch_scc1 {sk}
    v_mov_b32 v14, {WS_E}
    v_mov_b32 v15, s{S_EP}
    s_mov_b64 exec, 1
    buffer_store_dword v15, v14, {WS}, 0 offen sc1
    s_mov_b64 exec, -1
    ''')
    a.label(sk)
    a(f'''
    v_and_b32 v35, 31, v1
    v_lshlrev_b32 v35, 2, v35
    ds_read_b32 v34, v35 offset:{L_CAND}
    ''')
    CA = 40
    for i in range(8):
        a(f'ds_read_b128 v[{CA+4*i}:{CA+4*i+3}], v11 offset:{L_CAND-L_CNT+16*i}')
    a('v_mov_b32 v36, 0\ns_waitcnt lgkmcnt(0)')
    sp = lambda i: f's[{72+2*(i%4)}:{73+2*(i%4)}]'
    for i in range(32):
        a(f'v_cmp_gt_u32 {sp(i)}, v{CA+i}, v34')
        if i >= 2:
            a(f'v_addc_co_u32 v36, vcc, 0, v36, {sp(i-2)}')
    for i in (30, 31):
        a(f'v_addc_co_u32 v36, vcc, 0, v36, {sp(i)}')
    a(f'''
    s_lshl_b32 s40, s3, 5
    s_add_u32 s40, s40, {L_SLOT}
    v_lshl_add_u32 v35, v36, 2, s40
    v_cmp_gt_u32 vcc, 8, v36
    s_mov_b64 exec, vcc
    ds_write_b32 v35, v34
    s_mov_b64 exec, -1
    v_and_b32 v35, 7, v1
    v_lshl_add_u32 v35, v35, 2, s40
    ds_read_b32 v34, v35
    s_mul_i32 s40, s3, 320
    v_lshl_add_u32 v36, v3, 4, s40
    v_bfe_u32 v37, v1, 3, 1
    v_lshl_add_u32 v36, v37, 6, v36
    s_mov_b32 s41, {WS_RI+64}
    s_waitcnt lgkmcnt(0)
    ;STAMP F1
    v_and_b32 v35, 0x7ff, v34
    v_sub_u32 v35, 2047, v35
    v_mul_u32_u24 v37, 1280, v35
    v_add_u32 v36, v36, v37
    v_and_b32 v37, 0x7f8, v35
    v_add_u32 v37, v37, v35
    v_lshlrev_b32 v37, 3, v37
    ''')
    sk = a.lab('FI')
    a(f'''
    s_or_b32 s40, s65, s3
    s_cmp_lg_u32 s40, 0
    s_cbranch_scc1 {sk}
    v_mov_b32_dpp v52, v35 quad_perm:[0,2,0,2] row_mask:0xf bank_mask:0xf
    v_mov_b32_dpp v54, v35 quad_perm:[1,3,1,3] row_mask:0xf bank_mask:0xf
    v_mov_b32 v53, s{S_EP}
    v_mov_b32 v55, s{S_EP}
    v_lshrrev_b32 v7, 2, v1
    v_lshlrev_b32 v7, 5, v7
    v_and_b32 v32, 1, v1
    v_lshl_add_u32 v7, v32, 4, v7
    s_lshl_b32 s40, s{S_X}, 7
    s_add_u32 s40, s40, {WS_IDX}
    s_mov_b64 exec, 0x33
    buffer_store_dwordx4 v[52:55], v7, {WS}, s40 offen sc1
    s_mov_b64 exec, -1
    ''')
    a.label(sk)
    XP = 40
    for p in range(3):
        a(f'buffer_load_dwordx4 v[{XP+4*p}:{XP+4*p+3}], v36, s[20:23], 0 offen offset:{128*p}')
    a(f'buffer_load_dwordx2 v[38:39], v37, {WS}, s41 offen sc1')
    for o in DM:
        a(o)
    e = a.lab('FS0')
    a('s_waitcnt vmcnt(15)')
    a.tagcheck(32, [39])
    a(f's_cbranch_vccz {e}')
    l = a.spin_begin('FS')
    a(f'buffer_load_dwordx2 v[38:39], v37, {WS}, s41 offen sc1')
    a('s_waitcnt vmcnt(0)')
    a.tagcheck(32, [39])
    a.spin_end_vcc(l)
    a.label(e)
    WA = 72
    a(f'''
    v_lshrrev_b32 v4, 2, v2
    v_and_b32 v5, 3, v2
    v_lshlrev_b32 v6, 5, v4
    v_lshl_add_u32 v6, v5, 3, v6
    v_lshl_add_u32 v6, v3, 8, v6
    s_mul_i32 s42, s3, 5120
    v_add_u32 v6, s42, v6
    ''')
    XF = 112
    a(f'''
    v_and_b32 v39, 0xffff0000, v38
    v_lshlrev_b32 v38, 16, v38
    v_rcp_f32 v60, v39
    v_rcp_f32 v39, v39
    ''')
    for i in range(12):
        unpack(a, XF + 2 * i, XP + i)
    for i in range(12):
        a(f'v_pk_add_f32 {pr(XF+2*i)}, {pr(XF+2*i)}, {pr(38)} op_sel_hi:[1,0] neg_lo:[0,1] neg_hi:[0,1]')
    for i in range(12):
        a(f'v_cvt_pk_bf16_f32 v{XP+i}, v{XF+2*i}, v{XF+2*i+1}')
    for i in range(12):
        unpack(a, XF + 2 * i, XP + i)
    for i in range(12):
        a(f'v_pk_mul_f32 {pr(XF+2*i)}, {pr(XF+2*i)}, {pr(60)} op_sel_hi:[1,0]')
    for i in range(12):
        a(f'v_cvt_pk_bf16_f32 v{XP+i}, v{XF+2*i}, v{XF+2*i+1}')
    a('s_waitcnt vmcnt(0)\ns_cmp_eq_u32 s3, 0\ns_cselect_b32 s40, 1, 0\nv_mov_b32 v32, s40\ns_mov_b64 exec, 1\nds_max_u32 v11, v32 offset:48\ns_mov_b64 exec, -1')
    for c in range(5):
        for mt, base in enumerate((L_G, L_U)):
            r = WA + 8 * c + 4 * mt
            a(f'ds_read_b64_tr_b16 v[{r}:{r+1}], v6 offset:{base+1024*c}')
            a(f'ds_read_b64_tr_b16 v[{r+2}:{r+3}], v6 offset:{base+1024*c+128}')
    XO = 52
    for i in range(8):
        a(f'v_mov_b32_dpp v{XO+i}, v{XP+i} row_ror:8 row_mask:0xf bank_mask:0xf')
    a('s_waitcnt lgkmcnt(0)')
    for c in (0, 2, 4, 1, 3):
        xr = XP + 4 * (c // 2) if c % 2 == 0 else XO + 4 * (c // 2)
        for mt in range(2):
            acc = 60 + 4 * mt
            r = WA + 8 * c + 4 * mt
            cc = '0' if c == 0 else f'v[{acc}:{acc+3}]'
            a(f'v_mfma_f32_16x16x32_bf16 v[{acc}:{acc+3}], v[{r}:{r+3}], v[{xr}:{xr+3}], {cc}')
    WDN = 72
    a(f'''
    v_lshl_add_u32 v6, v3, 2, v4
    v_mul_u32_u24 v6, 320, v6
    v_lshl_add_u32 v6, v5, 3, v6
    v_add_u32 v6, s42, v6
    v_lshl_add_u32 v7, v1, 4, s42
    ''')
    a(f'ds_write_b128 v7, v[60:63] offset:{L_G}\nds_write_b128 v7, v[64:67] offset:{L_G+1024}')
    for nt in range(10):
        a(f'ds_read_b64_tr_b16 v[{WDN+2*nt}:{WDN+2*nt+1}], v6 offset:{L_D+32*nt}')
    a.ldsync(11, 32, 1)
    R = 96
    a('v_lshlrev_b32 v7, 4, v1')
    for w in range(4):
        for mt in range(2):
            a(f'ds_read_b128 v[{R+8*w+4*mt}:{R+8*w+4*mt+3}], v7 offset:{L_G+5120*w+1024*mt}')
    a('s_waitcnt lgkmcnt(0)')
    for i in range(4):
        a(f'v_pk_add_f32 {pr(R+2*i)}, {pr(R+2*i)}, {pr(R+8+2*i)}')
        a(f'v_pk_add_f32 {pr(R+16+2*i)}, {pr(R+16+2*i)}, {pr(R+24+2*i)}')
    for i in range(4):
        a(f'v_pk_add_f32 {pr(R+2*i)}, {pr(R+2*i)}, {pr(R+16+2*i)}')
    for i in range(4):
        a(f'v_cvt_pk_bf16_f32 v{R+8+i}, v{R+2*i}, v{R+2*i+1}')
    for i in range(4):
        unpack(a, R + 2 * i, R + 8 + i)
    silu(a, range(R, R + 4), range(R + 8, R + 12))
    for i in range(2):
        a(f'v_cvt_pk_bf16_f32 v{R+8+i}, v{R+2*i}, v{R+2*i+1}')
    for i in range(2):
        unpack(a, R + 2 * i, R + 8 + i)
    for i in range(2):
        a(f'v_pk_mul_f32 {pr(R+2*i)}, {pr(R+2*i)}, {pr(R+4+2*i)}')
    for i in range(2):
        a(f'v_cvt_pk_bf16_f32 v{60+i}, v{R+2*i}, v{R+2*i+1}')
    O = 96
    for nt in range(10):
        a(f'v_mfma_f32_16x16x16_bf16 v[{O+4*nt}:{O+4*nt+3}], v[{WDN+2*nt}:{WDN+2*nt+1}], v[60:61], 0')
    a('s_mov_b32 s40, 0x07060503\ns_mov_b32 s41, 0x07060502\ns_mov_b32 s43, 0x07060501')
    a(TOKMASK)
    for nt in range(10):
        for d, sr in enumerate((40, 41, 43)):
            a(f'v_perm_b32 v{O+4*nt+d}, v{O+4*nt+d}, v{O+4*nt+3}, s{sr}')
        a(f'v_mov_b32 v{O+4*nt+3}, s{S_EP}')
        a(f'buffer_store_dwordx4 v[{O+4*nt}:{O+4*nt+3}], v10, {WS}, s66 offen offset:{PPS*nt} sc1')
    a(f'''
    s_mov_b64 exec, -1
    ;STAMP F2
    s_cmp_ge_u32 s65, 8
    s_cbranch_scc1 K_END
    ''')
    a(f'''
    v_readlane_b32 s44, v35, s65
    v_readlane_b32 s45, v34, s65
    s_mov_b32 s41, 0xcccd
    v_mul_u32_u24 v4, s41, v0
    v_lshrrev_b32 v4, 20, v4
    v_mul_u32_u24 v5, 20, v4
    v_sub_u32 v5, v0, v5
    v_lshrrev_b32 v6, 2, v5
    v_and_b32 v5, 3, v5
    v_lshlrev_b32 v5, 4, v5
    v_lshl_add_u32 v5, v6, {7 if OPT['ppad'] else 6}, v5
    v_mul_u32_u24 v4, {PF}, v4
    s_mul_i32 s40, s65, {PTOK}
    s_mul_i32 s41, s{S_X}, {5*PPS}
    s_add_u32 s40, s40, s41
    s_add_u32 s40, s40, {WS_P}
    v_add3_u32 v5, s40, v5, v4
    v_lshlrev_b32 v6, 7, v1
    v_and_b32 v7, 31, v1
    v_lshlrev_b32 v7, 7, v7
    v_and_b32 v4, 15, v1
    v_lshlrev_b32 v4, 7, v4
    s_lshr_b32 s40, s{S_X}, 1
    s_mul_i32 s40, s40, {96*128}
    s_add_u32 s40, s40, {WS_F3}
    s_add_u32 s46, s40, 8192
    s_mul_i32 s50, s{S_X}, {20*128}
    s_add_u32 s50, s50, {WS_F2}
    s_mul_i32 s42, s{S_X}, 80
    v_min_u32 v8, 79, v0
    v_add_u32 v8, s42, v8
    s_mul_i32 s42, s44, 1280
    v_lshl_add_u32 v9, v8, 1, s42
    s_lshl_b32 s42, s44, 1
    s_and_b32 s42, s42, 0xfffffffc
    s_add_u32 s42, s42, {WS_Y2}
    v_mul_u32_u24 v8, {RS}, v8
    v_add_u32 v8, s42, v8
    buffer_load_ushort v12, v9, s[20:23], 0 offen
    ''')
    a.srd(24, 52, NB)
    PR = 40
    for i in range(8):
        a(f's_mov_b32 s{72+i}, {i*12*PF}')
    a('v_cmp_gt_u32 vcc, 240, v0\ns_mov_b64 s[46:47], vcc\ns_mov_b64 exec, vcc')
    if OPT['rpsl']:
        a(f's_sleep {OPT["rpsl"]}')
    l = a.spin_begin('RP')
    for i in range(8):
        a(f'buffer_load_dwordx4 v[{PR+4*i}:{PR+4*i+3}], v5, {WS}, s{72+i} offen sc1')
    a('s_waitcnt vmcnt(0)')
    a.tagcheck(18, [PR + 4 * i + 3 for i in range(8)])
    a.spin_end_exec(l, 's[46:47]')
    a(';STAMP F3\ns_mov_b32 s40, 0x04000c0c\ns_mov_b32 s41, 0x0706000c')
    for i in range(8):
        a(f'v_perm_b32 v{PR+4*i+3}, v{PR+4*i}, v{PR+4*i+1}, s40')
    for i in range(8):
        a(f'v_perm_b32 v{PR+4*i+3}, v{PR+4*i+3}, v{PR+4*i+2}, s41')
    for st in (16, 8, 4):
        for i in range(0, st, 2):
            a(f'v_pk_add_f32 {pr(PR+i)}, {pr(PR+i)}, {pr(PR+st+i)}')
    a(f'''
    v_lshlrev_b32 v14, 4, v0
    ds_write_b128 v14, v[{PR}:{PR+3}] offset:{L_U}
    s_mov_b64 exec, -1
    ''')
    a.ldsync(11, 32, 2)
    a(f'''
    s_cmp_ge_u32 s3, 2
    s_cbranch_scc1 K_END
    v_min_u32 v14, 79, v0
    v_lshlrev_b32 v14, 2, v14
    ''')
    for i in range(12):
        a(f'ds_read_b32 v{PR+i}, v14 offset:{L_U+320*i}')
    a('s_mov_b64 exec, 0xfffff')
    l = a.spin_begin('RG')
    a(f'buffer_load_dword v16, v6, {WS}, s50 offen sc1\ns_waitcnt vmcnt(0)')
    a.tagcheck(18, [16])
    a.spin_end_exec(l)
    l = a.spin_begin('RY')
    a(f'buffer_load_dword v13, v8, {WS}, 0 offen sc1')
    a(f'''
    s_ashr_i32 s40, s45, 31
    s_not_b32 s40, s40
    s_or_b32 s40, s40, 0x80000000
    s_xor_b32 s40, s40, s45
    s_and_b32 s40, s40, 0xffff0000
    v_mov_b32 v20, s40
    v_mul_f32 v20, {NLOG2E}, v20
    v_exp_f32 v20, v20
    v_readlane_b32 s48, v38, s65
    v_readlane_b32 s49, v39, s65
    v_add_f32 v20, 1.0, v20
    v_rcp_f32 v20, v20
    v_lshlrev_b32 v21, 16, v12
    v_subrev_f32 v22, s48, v21
    ''')
    rnd(a, 20, 20)
    rnd(a, 22, 22)
    a('v_mul_f32 v22, s49, v22')
    rnd(a, 22, 22)
    a('s_waitcnt vmcnt(0) lgkmcnt(0)\nv_cmp_eq_u32 vcc, -1, v13')
    a.spin_end_vcc(l)
    for i in range(6):
        a(f'v_add_f32 v{PR+i}, v{PR+i}, v{PR+6+i}')
    for i in range(3):
        a(f'v_add_f32 v{PR+i}, v{PR+i}, v{PR+3+i}')
    a(f'v_add_f32 v{PR}, v{PR}, v{PR+1}\nv_add_f32 v{PR}, v{PR}, v{PR+2}')
    rnd(a, PR, PR)
    a(f'v_mul_f32 v{PR}, v{PR}, v20')
    rnd(a, PR, PR)
    a(f'v_add_f32 v{PR}, v{PR}, v22')
    rnd(a, PR, PR)
    silu(a, [PR], [PR + 1])
    a(f'''
    s_and_b32 s40, s44, 1
    s_xor_b32 s40, s40, 1
    s_lshl_b32 s40, s40, 4
    v_lshlrev_b32 v13, s40, v13
    v_and_b32 v13, 0xffff0000, v13
    v_mul_f32 v22, v22, v13
    v_fma_f32 v22, v22, v{PR}, v21
    v_cvt_pk_bf16_f32 v22, v22, v22
    v_cmp_gt_u32 vcc, 80, v0
    s_mov_b64 exec, vcc
    buffer_store_short v22, v9, s[24:27], 0 offen
    s_endpgm
    ''')


def kernel():
    setup()
    a = K()
    a.label('K_FIRST')
    a(f'''
    s_cmp_ge_u32 s2, 256
    s_cbranch_scc1 K_END
    s_load_dwordx8 s[4:11], s[0:1], 0
    s_load_dwordx4 s[12:15], s[0:1], 32
    s_load_dwordx8 s[44:51], s[0:1], 56
    s_load_dwordx2 s[52:53], s[0:1], 88
    s_load_dwordx2 s[54:55], s[0:1], 104
    v_cmp_gt_u32 vcc, 8, v0
    s_and_saveexec_b64 s[18:19], vcc
    s_cbranch_execz K_NOPF
    s_getpc_b64 s[20:21]
    K_PC:
    s_sub_u32 s20, s20, K_PC-K_FIRST
    s_subb_u32 s21, s21, 0
    s_mov_b32 s22, K_END-K_FIRST
    s_mov_b32 s23, 0x20000
    s_lshr_b32 s24, s2, 3
    s_lshl_b32 s24, s24, 10
    v_lshlrev_b32 v1, 7, v0
    buffer_load_dword v{PFV}, v1, s[20:23], s24 offen
    K_NOPF:
    s_mov_b64 exec, -1
    v_lshrrev_b32 v1, 6, v0
    s_and_b32 s{S_X}, s2, 7
    v_readfirstlane_b32 s3, v1
    s_lshr_b32 s{S_J}, s2, 3
    s_and_b32 s{S_G}, s{S_J}, 3
    s_lshr_b32 s{S_TT}, s{S_J}, 3
    s_lshl_b32 s{S_TT}, s{S_TT}, 3
    s_add_u32 s{S_TT}, s{S_TT}, s{S_X}
    s_lshl_b32 s{S_TT}, s{S_TT}, 1
    s_bfe_u32 s18, s{S_J}, 0x10002
    s_add_u32 s{S_TT}, s{S_TT}, s18
    s_cmp_ge_u32 s3, 4
    s_cbranch_scc1 K_TILE
    ''')
    ln_loads(a)
    a(f's_cmp_ge_u32 s{S_J}, 20\ns_cbranch_scc1 K_FFN')
    conv_role(a)
    a.label('K_FFN')
    ffn_role(a)
    a.label('K_TILE')
    tile_role(a)
    a.label('K_END')
    a('s_endpgm')
    return a


def single_module(body):
    s = HDR + f'; @launch grid=(256,1,1) block=(576,1,1) lds={LDS_BYTES}\n'
    s += f'.amdgcn_target "amdgcn-amd-amdhsa--gfx950"\n.text\n.globl {KNAME}\n.p2align 8\n.type {KNAME},@function\n{KNAME}:\n{body}'
    nv, ns, na = max_regs(body)
    s += '.section .rodata,"a"\n' + KD.format(name=KNAME, vgpr=nv, sgpr=ns, acc=(nv + 3) // 4 * 4)
    return s


if __name__ == '__main__':
    out = sys.argv[1]
    rep = []
    for o in sys.argv[2:]:
        if '=' in o:
            OPT[o.split('=')[0]] = int(o.split('=')[1])
    k = kernel()
    if 'diag' in sys.argv[2:]:
        import diag
        diag.CYC = 'cyc' in sys.argv
        sel = [o for o in sys.argv[2:] if o.startswith('@')]
        diag.instrument(k, 0, {n: i for g in sel for i, n in enumerate(g[1:].split(','))} if sel else {r + str(i): i for r in 'TCF' for i in range(4)})
    body = k.text(rep)
    assert not re.search(r'op_sel:\[[01,]*1', body), 'crossed low-half op_sel is unsafe beside MFMA'
    open(out, 'w').write(single_module(body))
    print('wrote', out, 'regs', max_regs(body), 'nops', len(rep), sum(n for n, _ in rep), 'lines', body.count('\n'))
```

```python
import sys, re
from asmlib import *

KNAME = 'recurrent_scan__ssm_conv_h3__moe_arch_mod__prompt_kernel'
HDR = open('recurrent_scan__ssm_conv_h3__moe_arch_mod__prompt.s.ref').read().split('; Override launch')[0]

NB = 2048 * 1280
RS = 4224
WS_E = 0
WS_IDX = 4096
WS_RI = 64 << 10
WS_F2 = 128 << 10
WS_F1 = 512 << 10
WS_UR = 1 << 20
WS_Y2 = 4 << 20
WS_P = 8 << 20
WS_SIZE = 16 << 20
PTOK = 2560
PF = 8 * PTOK
NLOG2E = 0xbfb8aa3b
INV640 = 0x3acccccd
EPS = 0x3727c5ac
SPIN = 100000

H0_OFF, H1_OFF, U_OFF, CW_LDS = 0, 4160, 8288, 12864
L_G, L_U, L_D, L_MISC = 0, 20480, 40960, 61440
L_CNT, L_CAND, L_SLOT, L_RI, L_TP = L_MISC, L_MISC + 64, L_MISC + 192, L_MISC + 320, L_MISC + 512
LDS_BYTES = L_TP + 5 * 2304
W_S0, W_S1, W_EPN, W_EP, W_RI, W_TST, W_TFL, W_CF, W_U, W_YC, W_DMA = 0, 4, 12, 16, 20, 24, 32, 36, 40, 44, 48

OPT = dict(sleep=1, rpsl=8, prio=1, out='', pfat=0, hgate=1, qgate=2, fgate=1, yclr=2, dmas=0, ddn=0)

S_X, S_J, S_EP, S_CNT, ONES = 16, 17, 56, 57, 58
S_G, S_TT, S_RI = 74, 75, 76
C_NL2E, C_ONE = 70, 72
WS = 's[60:63]'
PFV = 71


class K(Asm):
    def __init__(self):
        super().__init__()
        self.n = 0

    def lab(self, p):
        self.n += 1
        return f'{p}_{self.n}'

    def spin_begin(self, p):
        l = self.lab(p)
        self(f's_mov_b32 s{S_CNT}, 0')
        self.label(l)
        return l

    def _tail(self, l, slp):
        self(f'''
        {f's_sleep {slp}' if slp else ''}
        s_add_u32 s{S_CNT}, s{S_CNT}, 1
        s_cmp_lt_u32 s{S_CNT}, {SPIN}
        s_cbranch_scc1 {l}
        ''')
        self.label(l + '_x')

    def spin_end_vcc(self, l, slp=None):
        self(f's_cbranch_vccz {l}_x')
        self._tail(l, OPT['sleep'] if slp is None else slp)

    def spin_end_exec(self, l, restore='-1', slp=None):
        self(f's_and_b64 exec, exec, vcc\ns_cbranch_execz {l}_x')
        self._tail(l, OPT['sleep'] if slp is None else slp)
        self(f's_mov_b64 exec, {restore}')

    def lds_wait(self, vaddr, vtmp, word, count, slp=0):
        l = self.spin_begin('LW')
        self(f'ds_read_b32 v{vtmp}, v{vaddr} offset:{word}\ns_waitcnt lgkmcnt(0)\nv_cmp_gt_u32 vcc, {count}, v{vtmp}')
        self.spin_end_vcc(l, slp)

    def lds_add(self, vaddr, vone, word):
        self(f's_mov_b64 exec, 1\nds_add_u32 v{vaddr}, v{vone} offset:{word}\ns_mov_b64 exec, -1')

    def maxtree(self, d, regs):
        regs = list(regs)
        self(f'v_max3_u32 v{d}, v{regs[0]}, v{regs[1]}, v{regs[2]}')
        regs = regs[3:]
        while len(regs) >= 2:
            self(f'v_max3_u32 v{d}, v{d}, v{regs[0]}, v{regs[1]}')
            regs = regs[2:]
        if regs:
            self(f'v_max_u32 v{d}, v{d}, v{regs[0]}')

    def tagcheck(self, d, regs):
        regs = list(regs)
        if len(regs) == 1:
            self(f'v_cmp_ne_u32 vcc, s{S_EP}, v{regs[0]}')
            return
        self.maxtree(d, regs)
        r = regs
        self(f'v_min3_u32 v{d+1}, v{r[0]}, v{r[1]}, v{r[2]}')
        r = r[3:]
        while len(r) >= 2:
            self(f'v_min3_u32 v{d+1}, v{d+1}, v{r[0]}, v{r[1]}')
            r = r[2:]
        if r:
            self(f'v_min_u32 v{d+1}, v{d+1}, v{r[0]}')
        self(f'v_xor_b32 v{d}, s{S_EP}, v{d}\nv_xor_b32 v{d+1}, s{S_EP}, v{d+1}\nv_or_b32 v{d}, v{d}, v{d+1}\nv_cmp_ne_u32 vcc, 0, v{d}')


def rnd(a, d, s):
    a(f'v_cvt_pk_bf16_f32 v{d}, v{s}, v{s}\nv_and_b32 v{d}, 0xffff0000, v{d}')


def unpack(a, d, s):
    a(f'v_lshlrev_b32 v{d}, 16, v{s}\nv_and_b32 v{d+1}, 0xffff0000, v{s}')


def pr(r):
    return f'v[{r}:{r+1}]'


DPP = 'row_mask:0xf bank_mask:0xf'
BC = 'op_sel_hi:[1,0]'
NEG = 'neg_lo:[0,1] neg_hi:[0,1]'


def rows8(a, op, reg0, vaddr, srd, mods=''):
    for i in range(8):
        so = '0' if i < 4 else 's18'
        a(f'{op} v{reg0+i}, v{vaddr}, {srd}, {so} offen offset:{1280*(i%4)} {mods}')


def weight_prefetch(a, vb, sb):
    a(f'''
    s_mul_i32 s40, s{S_J}, 60
    v_min_u32 v{vb}, 59, v0
    v_add_u32 v{vb}, s40, v{vb}
    s_mov_b32 s40, 0x5556
    v_mul_u32_u24 v{vb+1}, s40, v{vb}
    v_lshrrev_b32 v{vb+1}, 16, v{vb+1}
    s_cmp_eq_u32 s3, 0
    s_cselect_b32 s{sb}, s46, s48
    s_cselect_b32 s{sb+1}, s47, s49
    s_cmp_eq_u32 s3, 2
    s_cselect_b32 s{sb}, s50, s{sb}
    s_cselect_b32 s{sb+1}, s51, s{sb+1}
    s_cselect_b32 s40, 0, {3072-384}
    s_cselect_b32 s41, 640, 1
    s_mul_i32 s41, s41, s{S_X}
    s_mul_i32 s41, s41, 384
    s_cmp_ge_u32 s3, 3
    s_cselect_b32 s{sb+2}, 0, {640*3072}
    s_mov_b32 s{sb+3}, 0x20000
    v_mul_u32_u24 v{vb+1}, s40, v{vb+1}
    v_lshl_add_u32 v{vb}, v{vb}, 7, v{vb+1}
    buffer_load_dword v{vb+2}, v{vb}, s[{sb}:{sb+3}], s41 offen
    ''')


def tile_role(a):
    KK, VV, W, WF, KF, S, P = 8, 20, 28, 32, 40, 64, 80
    a(f'''
    s_sub_u32 s3, s3, 4
    s_mul_i32 s18, s{S_G}, 160
    s_lshl_b32 s19, s3, 5
    s_add_u32 s64, s18, s19
    s_lshl_b32 s19, s{S_TT}, 5
    v_and_b32 v0, 63, v0
    v_and_b32 v1, 15, v0
    v_lshrrev_b32 v2, 4, v0
    v_lshl_add_u32 v1, v1, 1, s64
    v_lshl_add_u32 v2, v2, 3, s19
    v_mul_u32_u24 v3, 1280, v2
    v_lshl_add_u32 v3, v1, 1, v3
    v_subrev_u32 v4, 3840, v3
    v_cmp_eq_u32 vcc, 0, v2
    v_mov_b32 v5, 0x80000000
    v_cndmask_b32 v4, v4, v5, vcc
    v_lshlrev_b32 v5, 3, v1
    s_mov_b32 s18, 5120
    s_mov_b32 s22, {NB}
    s_mov_b32 s23, 0x20000
    s_mov_b32 s26, {NB}
    s_mov_b32 s27, 0x20000
    s_mov_b32 s30, {640*8}
    s_mov_b32 s31, 0x20000
    s_waitcnt lgkmcnt(0)
    ;STAMP Targ
    s_mov_b64 s[20:21], s[6:7]
    ''')
    rows8(a, 'buffer_load_dword', KK + 3, 3, 's[20:23]')
    for i in range(3):
        a(f'buffer_load_dword v{KK+i}, v4, s[20:23], 0 offen offset:{1280*i}')
    a(f's_mov_b64 s[28:29], s[10:11]\ns_mov_b64 s[24:25], s[8:9]\nbuffer_load_dwordx4 v[{W}:{W+3}], v5, s[28:31], 0 offen')
    rows8(a, 'buffer_load_dword', VV, 3, 's[24:27]')
    a(';STAMP Tiss\ns_barrier')
    E = 1 if OPT['pfat'] == 2 else 0
    if E:
        weight_prefetch(a, 95, 76)
    a.srd(32, 4, NB)
    a.srd(36, 52, NB)
    a.srd(60, 54, WS_SIZE)
    a(f'''
    s_mul_i32 s67, s64, {RS}
    s_lshl_b32 s40, s{S_TT}, 6
    s_sub_u32 s65, s67, s40
    s_add_u32 s65, s65, {WS_UR + 63*64}
    s_add_u32 s66, s65, {16*RS}
    s_add_u32 s67, s67, s40
    s_add_u32 s67, s67, {WS_Y2}
    s_add_u32 s68, s67, {16*RS}
    v_lshrrev_b32 v6, 2, v0
    v_and_b32 v90, 3, v0
    v_mul_u32_u24 v6, {RS}, v6
    v_lshl_add_u32 v6, v90, 4, v6
    s_mul_i32 s40, s3, 2304
    s_add_u32 s40, s40, {L_TP}
    v_lshrrev_b32 v91, 3, v0
    v_add_u32 v91, v91, v0
    v_lshl_add_u32 v91, v91, 4, s40
    v_and_b32 v90, 15, v0
    v_mul_u32_u24 v90, 144, v90
    v_lshrrev_b32 v93, 4, v0
    v_lshl_add_u32 v94, v93, 4, v90
    v_add_u32 v94, s40, v94
    v_sub_u32 v93, 3, v93
    v_lshl_add_u32 v90, v93, 4, v90
    v_add_u32 v90, s40, v90
    v_mov_b32 v92, {L_CNT}
    v_mov_b32 v93, 1
    v_lshlrev_b32 v5, 4, v2
    v_add_u32 v5, {WS_RI+64}, v5
    s_lshl_b32 s40, s64, 1
    s_add_u32 s40, s40, s{S_TT}
    s_lshl_b32 s40, s40, 7
    s_add_u32 s40, s40, {WS_F1}
    v_mov_b32 v89, s40
    s_mov_b32 s{C_NL2E}, {NLOG2E}
    s_mov_b32 s{C_NL2E+1}, {NLOG2E}
    s_mov_b32 s{C_ONE}, 1.0
    s_mov_b32 s{C_ONE+1}, 1.0
    s_waitcnt vmcnt({8+E})
    ;STAMP Tk
    ''')
    for j in range(4):
        for hf in range(2):
            src = W + 2 * hf + j // 2
            a(f'v_lshlrev_b32 v{WF+2*j+hf}, 16, v{src}' if j % 2 == 0 else f'v_and_b32 v{WF+2*j+hf}, 0xffff0000, v{src}')
    for i in range(11):
        unpack(a, KF + 2 * i, KK + i)
    for t in range(8):
        a(f'v_pk_mul_f32 {pr(S+2*t)}, {pr(KF+2*t)}, {pr(WF+6)}')
    for j in (2, 1, 0):
        for t in range(8):
            a(f'v_pk_fma_f32 {pr(S+2*t)}, {pr(KF+2*(t+3-j))}, {pr(WF+2*j)}, {pr(S+2*t)}')
    a(f's_waitcnt vmcnt({E})\n;STAMP Tv')
    for t in range(8):
        unpack(a, KF + 2 * t, VV + t)
    for t in range(8):
        a(f'v_pk_mul_f32 {pr(S+2*t)}, {pr(S+2*t)}, {pr(KF+2*t)}')
    for hf in range(2):
        for m in range(4):
            a(f'v_cvt_pk_bf16_f32 v{P+4*hf+m}, v{S+2*(7-2*m)+hf}, v{S+2*(6-2*m)+hf}')
        a(f'ds_write_b128 v90, v[{P+4*hf}:{P+4*hf+3}] offset:{64*hf}')
    a(f'ds_read_b128 v[{S}:{S+3}], v91\nds_read_b128 v[{S+4}:{S+7}], v91 offset:1152')
    for hf in range(2):
        a(f's_waitcnt lgkmcnt({1-hf})\nbuffer_store_dwordx4 v[{S+4*hf}:{S+4*hf+3}], v6, {WS}, s{65+hf} offen sc1')
    a(';STAMP T1')
    Q, ST, X, F, T = 8, 16, 32, 48, 64

    def stl():
        for i in range(4):
            a(f'buffer_load_dwordx4 v[{ST+4*i}:{ST+4*i+3}], v5, {WS}, 0 offen offset:{16*i} sc1')
    a.lds_add(92, 93, W_TST)
    a.lds_wait(92, 88, W_EPN, 1)
    a(f'''
    ds_read_b32 v88, v92 offset:{W_EP}
    s_waitcnt vmcnt(0) lgkmcnt(0)
    ;STAMP Tack
    s_mov_b64 exec, 1
    buffer_store_dword v88, v89, {WS}, 0 offen sc1
    ds_add_u32 v92, v93 offset:{W_TFL}
    s_mov_b64 exec, -1
    v_readfirstlane_b32 s{S_EP}, v88
    ''')
    a.lds_wait(92, 88, W_TST if OPT['qgate'] == 1 else W_TFL, 5)

    def yclear():
        nc = a.lab('TC')
        a(f'''
        s_cmp_ge_u32 s{S_J}, 20
        s_cbranch_scc1 {nc}
        s_cmp_lg_u32 s3, 4
        s_cbranch_scc1 {nc}
        s_mul_i32 s40, s{S_X}, 20
        s_add_u32 s40, s40, s{S_J}
        s_mul_i32 s41, s40, {4*RS}
        s_add_u32 s41, s41, {WS_Y2}
        s_lshl_b32 s40, s40, 7
        s_add_u32 s40, s40, {WS_F2}
        v_mov_b32 v80, s40
        v_mov_b32 v81, s{S_EP}
        v_lshlrev_b32 v82, 4, v0
        v_mov_b32 v84, -1
        v_mov_b32 v85, -1
        v_mov_b32 v86, -1
        v_mov_b32 v87, -1
        ''')
        if OPT['yclr'] != 0:
            a.lds_wait(92, 83, W_U, 1, 1)
        for c in range(4):
            for m in range(4):
                a(f'buffer_store_dwordx4 v[84:87], v82, {WS}, s41 offen offset:{1024*m} sc1')
            if c < 3:
                a(f's_add_u32 s41, s41, {RS}')
        a(f'''
        s_waitcnt vmcnt(0)
        s_mov_b64 exec, 1
        buffer_store_dword v81, v80, {WS}, 0 offen sc1
        ds_write_b32 v92, v93 offset:{W_YC}
        s_mov_b64 exec, -1
        ''')
        a.label(nc)
    stl()
    rows8(a, 'buffer_load_dword', Q, 3, 's[32:35]')
    if OPT['yclr'] in (0, 2):
        yclear()
    a('s_waitcnt vmcnt(0)')
    e = a.lab('TS0')
    a.tagcheck(T + 8, [ST + 2 * i + 1 for i in range(8)])
    a(f's_cbranch_vccz {e}\ns_mov_b64 exec, vcc')
    l = a.spin_begin('TS')
    stl()
    a('s_waitcnt vmcnt(0)')
    a.tagcheck(T + 8, [ST + 2 * i + 1 for i in range(8)])
    a.spin_end_exec(l)
    a.label(e)
    a(';STAMP Tst')
    if OPT['pfat'] == 0:
        weight_prefetch(a, 95, 76)
    for t in range(8):
        a(f'v_and_b32 v{T+2*t}, 0xffff0000, v{ST+2*t}\nv_lshlrev_b32 v{ST+2*t}, 16, v{ST+2*t}\nv_rcp_f32 v{T+2*t}, v{T+2*t}')
    for t in range(8):
        unpack(a, X + 2 * t, Q + t)
    for t in range(8):
        a(f'v_pk_add_f32 {pr(F+2*t)}, {pr(X+2*t)}, {pr(ST+2*t)} {BC} {NEG}')

    def round_pairs(base):
        for t in range(8):
            a(f'v_cvt_pk_bf16_f32 v{Q+t}, v{base+2*t}, v{base+2*t+1}')
        for t in range(8):
            unpack(a, base + 2 * t, Q + t)
    round_pairs(F)
    for t in range(8):
        a(f'v_pk_mul_f32 {pr(F+2*t)}, {pr(F+2*t)}, {pr(T+2*t)} {BC}')
    round_pairs(F)
    for t in range(8):
        a(f'v_pk_mul_f32 {pr(T+2*t)}, {pr(F+2*t)}, s[{C_NL2E}:{C_NL2E+1}]')
    for i in range(16):
        a(f'v_exp_f32 v{T+i}, v{T+i}')
    for t in range(8):
        a(f'v_pk_mul_f32 {pr(F+2*t)}, {pr(F+2*t)}, {pr(F+2*t)}')
        a(f'v_pk_add_f32 {pr(T+2*t)}, {pr(T+2*t)}, s[{C_ONE}:{C_ONE+1}]')
    for i in range(16):
        a(f'v_rcp_f32 v{T+i}, v{T+i}')
    for t in range(8):
        a(f'v_pk_mul_f32 {pr(F+2*t)}, {pr(F+2*t)}, {pr(T+2*t)}')
    a(';STAMP T2')
    if OPT['pfat'] == 1:
        weight_prefetch(a, 95, 76)
    if OPT['yclr'] == 1:
        yclear()
    o, e = a.lab('TO'), a.lab('TE')
    a(f'v_and_b32 v8, 7, v0\ns_cmp_ge_u32 s{S_J}, 20\ns_cbranch_scc1 {o}')
    a(f'v_lshlrev_b32 v8, 3, v8\ns_lshl_b32 s40, s{S_X}, 7\ns_add_u32 s40, s40, {WS_IDX}')
    l = a.spin_begin('TI')
    a(f'buffer_load_dwordx2 v[10:11], v8, {WS}, s40 offen sc1\ns_waitcnt vmcnt(0)')
    a.tagcheck(14, [11])
    a.spin_end_vcc(l, 2)
    a.lds_wait(92, 11, W_YC, 1, 2)
    a(f's_branch {e}')
    a.label(o)
    a.lds_wait(92, 11, W_DMA, 1, 2)
    a(f'v_lshlrev_b32 v8, 2, v8\nds_read_b32 v10, v8 offset:{L_SLOT}\ns_waitcnt lgkmcnt(0)')
    a.label(e)
    a(f'''
    v_and_b32 v10, 0x7ff, v10
    v_sub_u32 v10, 2047, v10
    v_lshlrev_b32 v9, 7, v0
    s_lshl_b32 s41, s64, 5
    s_add_u32 s41, s41, {WS_F2}
    s_mov_b64 exec, 0xff
    ''')
    l = a.spin_begin('TF')
    a(f'buffer_load_dword v12, v9, {WS}, s41 offen sc1\ns_waitcnt vmcnt(0)')
    a.tagcheck(14, [12])
    a.spin_end_exec(l, slp=2)
    a(';STAMP Tix\nv_mov_b32 v7, 0')
    for k in range(8):
        a(f'v_readlane_b32 s{44+k}, v10, {k}')
    for k in range(8):
        a(f'''
        v_sub_u32 v8, s{44+k}, v2
        v_cmp_gt_u32 vcc, 8, v8
        v_lshlrev_b32 v8, v8, 1
        v_cndmask_b32 v8, 0, v8, vcc
        v_or_b32 v7, v7, v8
        ''')
    AD, Y = 16, 80
    for t in range(8):
        a(f'v_bfe_i32 v{AD+t}, v7, {t}, 1\nv_and_b32 v{AD+t}, 0x80000000, v{AD+t}\nv_or_b32 v{AD+t}, v{AD+t}, v3')
    a('s_mov_b32 exec_lo, 0\ns_mov_b32 exec_hi, 0x80000000')
    l = a.spin_begin('TH')
    a(f'buffer_load_dword v9, v6, {WS}, s68 offen offset:12 sc1\ns_waitcnt vmcnt(0)\nv_cmp_eq_u32 vcc, -1, v9')
    a.spin_end_exec(l)
    a(';STAMP Th')
    l = a.spin_begin('TY')
    a(f'buffer_load_dwordx4 v[{Y}:{Y+3}], v6, {WS}, s67 offen sc1')
    a(f'buffer_load_dwordx4 v[{Y+4}:{Y+7}], v6, {WS}, s68 offen sc1')
    a('s_waitcnt vmcnt(0)')
    a.maxtree(8, range(Y, Y + 8))
    a('v_cmp_eq_u32 vcc, -1, v8')
    a.spin_end_exec(l)
    a(f''';STAMP T3
    ds_write_b128 v91, v[{Y}:{Y+3}]
    ds_write_b128 v91, v[{Y+4}:{Y+7}] offset:1152
    ds_read_b128 v[{Y}:{Y+3}], v94
    ds_read_b128 v[{Y+4}:{Y+7}], v94 offset:64
    s_waitcnt lgkmcnt(0)
    ''')
    for t in range(8):
        for hf in range(2):
            src = Y + 4 * hf + t // 2
            a(f'v_lshlrev_b32 v{T+2*t+hf}, 16, v{src}' if t % 2 == 0 else f'v_and_b32 v{T+2*t+hf}, 0xffff0000, v{src}')
        a(f'v_pk_fma_f32 {pr(T+2*t)}, {pr(T+2*t)}, {pr(F+2*t)}, {pr(X+2*t)}')
        a(f'v_cvt_pk_bf16_f32 v{Q+t}, v{T+2*t}, v{T+2*t+1}')
        so = '0' if t < 4 else 's18'
        a(f'buffer_store_dword v{Q+t}, v{AD+t}, s[36:39], {so} offen offset:{1280*(t%4)} {OPT["out"]}')
    a('s_endpgm')


LX, LW, LF, LA = 72, 84, 96, 120
HD, HX = 40, 56


def ln_role(a):
    A = LA
    a(f'''
    s_lshl_b32 s{S_RI}, s{S_TT}, 2
    s_add_u32 s{S_RI}, s{S_RI}, s{S_G}
    s_lshl_b32 s18, s{S_RI}, 3
    s_lshl_b32 s19, s3, 1
    s_add_u32 s18, s18, s19
    v_and_b32 v1, 63, v0
    v_lshrrev_b32 v2, 5, v1
    v_add_u32 v2, s18, v2
    v_and_b32 v3, 31, v1
    v_lshlrev_b32 v4, 4, v3
    v_lshlrev_b32 v5, 3, v3
    v_mul_u32_u24 v6, 1280, v2
    v_add_u32 v7, v6, v5
    v_add_u32 v6, v6, v4
    v_mov_b32 v12, 0
    v_mov_b32 v13, 0
    v_mov_b32 v14, 0
    v_mov_b32 v15, 0
    v_mov_b32 v11, {L_CNT}
    s_waitcnt lgkmcnt(0)
    ''')
    a.srd(20, 4, NB)
    a(f'''
    buffer_load_dwordx4 v[{LX}:{LX+3}], v6, s[20:23], 0 offen
    buffer_load_dwordx4 v[{LX+4}:{LX+7}], v6, s[20:23], 0 offen offset:512
    buffer_load_dwordx2 v[{LX+8}:{LX+9}], v7, s[20:23], 0 offen offset:1024
    ''')
    a.srd(24, 44, 1280)
    a(f'''
    ds_write_b128 v11, v[12:15]
    ds_write_b128 v11, v[12:15] offset:16
    ds_write_b128 v11, v[12:15] offset:32
    ds_write_b128 v11, v[12:15] offset:48
    ''')
    a.srd(60, 54, WS_SIZE)
    a(f'''
    s_waitcnt lgkmcnt(0)
    s_barrier
    s_load_dword s{S_EP}, s[54:55], {WS_E}
    buffer_load_dwordx4 v[{LW}:{LW+3}], v4, s[24:27], 0 offen
    buffer_load_dwordx4 v[{LW+4}:{LW+7}], v4, s[24:27], 0 offen offset:512
    buffer_load_dwordx2 v[{LW+8}:{LW+9}], v5, s[24:27], 0 offen offset:1024
    v_mov_b32 v18, 1
    s_mov_b32 s{ONES}, 0x3f803f80
    s_mov_b32 s41, {INV640}
    s_waitcnt vmcnt(3)
    ;STAMP Lq
    v_dot2_f32_bf16 v{A}, v{LX}, s{ONES}, 0
    ''')
    for i in range(1, 10):
        a(f'v_dot2_f32_bf16 v{A}, v{LX+i}, s{ONES}, v{A}')
    for i in range(3):
        unpack(a, LF + 2 * i, LX + i)
    for n, sh in enumerate((8, 4, 2, 1)):
        a(f'v_add_f32_dpp v{A}, v{A}, v{A} row_ror:{sh} {DPP}')
        unpack(a, LF + 2 * (3 + n), LX + 3 + n)
    a(f'v_mov_b32 v{A+1}, v{A}')
    unpack(a, LF + 14, LX + 7)
    a(f'v_permlane16_swap_b32 v{A}, v{A+1}')
    unpack(a, LF + 16, LX + 8)
    a(f'v_add_f32 v{A}, v{A}, v{A+1}')
    unpack(a, LF + 18, LX + 9)
    a(f'v_mul_f32 v{A}, s41, v{A}')
    rnd(a, A + 2, A)
    a(f'v_sub_f32 v{A}, v{A}, v{A+2}')
    for i in range(10):
        a(f'v_pk_add_f32 {pr(LF+2*i)}, {pr(LF+2*i)}, {pr(A+2)} {BC} {NEG}')
    a(f'v_pk_mul_f32 {pr(A+4)}, {pr(LF)}, {pr(LF)}')
    for i in range(1, 10):
        a(f'v_pk_fma_f32 {pr(A+4)}, {pr(LF+2*i)}, {pr(LF+2*i)}, {pr(A+4)}')
    a(f'v_add_f32 v{A+4}, v{A+4}, v{A+5}')
    cv = [f'v_cvt_pk_bf16_f32 v{LX+i}, v{LF+2*i}, v{LF+2*i+1}' for i in range(10)]
    a(cv.pop(0) + '\n' + cv.pop(0))
    for sh in (8, 4, 2, 1):
        a(f'v_add_f32_dpp v{A+4}, v{A+4}, v{A+4} row_ror:{sh} {DPP}')
        a(cv.pop(0) + '\n' + cv.pop(0))
    a(f'v_mov_b32 v{A+1}, v{A+4}')
    unpack(a, LF, LX)
    a(f'''
    v_permlane16_swap_b32 v{A+4}, v{A+1}
    v_add_f32 v{A+4}, v{A+4}, v{A+1}
    v_mul_f32 v{A+4}, s41, v{A+4}
    v_fma_f32 v{A+4}, -v{A}, v{A}, v{A+4}
    v_max_f32 v{A+4}, 0, v{A+4}
    ''')
    rnd(a, A + 4, A + 4)
    a(f'v_add_f32 v{A+4}, {EPS}, v{A+4}')
    rnd(a, A + 4, A + 4)
    a(f'v_sqrt_f32 v{A+4}, v{A+4}')
    unpack(a, LF + 2, LX + 1)
    rnd(a, A + 4, A + 4)
    a(f'v_rcp_f32 v{A+6}, v{A+4}')
    for i in range(2, 10):
        unpack(a, LF + 2 * i, LX + i)
    for i in range(10):
        a(f'v_pk_mul_f32 {pr(LF+2*i)}, {pr(LF+2*i)}, {pr(A+6)} {BC}')
    for i in range(10):
        a(f'v_cvt_pk_bf16_f32 v{LX+i}, v{LF+2*i}, v{LF+2*i+1}')
    a(f'''
    s_waitcnt vmcnt(0) lgkmcnt(0)
    s_add_u32 s{S_EP}, s{S_EP}, 1
    v_mov_b32 v17, s{S_EP}
    s_mov_b64 exec, 1
    ds_write_b32 v11, v17 offset:{W_EP}
    ds_write_b32 v11, v18 offset:{W_EPN}
    s_mov_b64 exec, -1
    v_dot2_f32_bf16 v{A+6}, v{LX}, v{LW}, 0
    ''')
    for i in range(1, 10):
        a(f'v_dot2_f32_bf16 v{A+6}, v{LX+i}, v{LW+i}, v{A+6}')
    fill = [f'v_lshrrev_b32 v{A+2}, 16, v{A+2}', f'v_or_b32 v{LF}, v{A+2}, v{A+4}', f'v_and_b32 v{LF+4}, 7, v2',
            f'v_lshlrev_b32 v{LF+4}, 3, v{LF+4}', f'v_mov_b32 v{LF+1}, s{S_EP}', f'v_mov_b32 v{LF+3}, s{S_EP}',
            f'v_lshlrev_b32 v{LF+6}, 4, v1', f'v_sub_u32 v{A+7}, 2047, v2', f's_lshl_b32 s40, s{S_RI}, 7', f's_add_u32 s40, s40, {WS_RI}',
            's_nop 0']
    a('\n'.join(fill[:3]))
    fill = fill[3:]
    for sh in (8, 4, 2, 1):
        a(f'v_add_f32_dpp v{A+6}, v{A+6}, v{A+6} row_ror:{sh} {DPP}')
        a(fill.pop(0) + '\n' + fill.pop(0))
    a(f'''
    v_mov_b32 v{A+1}, v{A+6}
    v_permlane16_swap_b32 v{A+6}, v{A+1}
    v_add_f32 v{A+6}, v{A+6}, v{A+1}
    v_add_f32 v{A+6}, 0, v{A+6}
    v_cvt_pk_bf16_f32 v{A+6}, v{A+6}, v{A+6}
    v_ashrrev_i32 v{A+1}, 31, v{A+6}
    v_or_b32 v{A+1}, 0x80000000, v{A+1}
    v_xor_b32 v{A+6}, v{A+6}, v{A+1}
    v_and_b32 v{A+6}, 0xffff0000, v{A+6}
    v_or_b32 v{LF+2}, v{A+6}, v{A+7}
    s_mov_b32 exec_lo, 1
    s_mov_b32 exec_hi, 1
    ds_write_b64 v{LF+4}, v[{LF+2}:{LF+3}] offset:{L_RI}
    ds_write_b64 v{LF+4}, v[{LF}:{LF+1}] offset:{L_RI+64}
    s_mov_b32 exec_hi, 0
    ds_add_rtn_u32 v18, v11, v18 offset:{W_RI}
    s_mov_b64 exec, 0xff
    ds_read_b128 v[{LF+12}:{LF+15}], v{LF+6} offset:{L_RI}
    s_waitcnt lgkmcnt(0)
    v_readfirstlane_b32 s41, v18
    s_cmp_eq_u32 s41, 3
    s_cselect_b32 s40, s40, 0x80000000
    buffer_store_dwordx4 v[{LF+12}:{LF+15}], v{LF+6}, {WS}, s40 offen sc1
    ;STAMP Lri
    s_mov_b64 exec, -1
    ''')


def lds_schedule(a, ops):
    issued, pos, done = 0, {}, 0
    for o in ops:
        if o[0] == 'ld':
            a(o[1])
            issued += 1
            pos[o[2]] = issued
        else:
            needp = max(pos[k] for k in o[2])
            if needp > done:
                n = min(issued - needp, 15)
                a(f's_waitcnt lgkmcnt({n})')
                done = issued - n
            a(o[1])


def conv_role(a):
    AA, GA = 136, 140
    ACC, AF, GF = 8, 40, 72
    a(f'''
    s_mul_i32 s18, s{S_X}, 80
    s_lshl_b32 s19, s{S_J}, 2
    s_add_u32 s19, s19, s3
    s_add_u32 s64, s18, s19
    s_lshl_b32 s65, s64, 12
    v_lshlrev_b32 v8, 4, v1
    ''')
    a.srd(28, 12, NB)
    if OPT['hgate']:
        a.lds_wait(11, 16, W_TST if OPT['hgate'] == 1 else W_TFL, 5)
    for m in range(4):
        a(f'buffer_load_dwordx4 v[{HD+4*m}:{HD+4*m+3}], v8, s[28:31], s65 offen offset:{1024*m}')
    a(f'''
    s_mul_i32 s66, s64, {RS}
    s_mul_i32 s67, s3, {CW_LDS}
    s_lshl_b32 s40, s64, 1
    s_and_b32 s40, s40, 0xfffffffc
    s_add_u32 s14, s14, s40
    s_addc_u32 s15, s15, 0
    s_load_dword s68, s[14:15], 0
    v_add_u32 v9, s67, v8
    s_mov_b64 exec, 0x3fffffff
    ds_write_b128 v9, v[12:15] offset:{U_OFF+4096}
    s_mov_b64 exec, 3
    ds_write_b128 v9, v[12:15] offset:{H0_OFF}
    ds_write_b128 v9, v[12:15] offset:{H1_OFF}
    s_mov_b64 exec, -1
    v_mov_b32 v{GA+3}, {L_CNT}
    v_and_b32 v10, 15, v1
    v_lshrrev_b32 v11, 4, v1
    v_and_b32 v16, 1, v10
    v_add_u32 v{AA}, v10, v16
    v_lshlrev_b32 v{AA}, 1, v{AA}
    v_lshl_add_u32 v{AA}, v11, 4, v{AA}
    v_xor_b32 v16, 1, v16
    v_mul_u32_u24 v16, {H1_OFF}, v16
    v_add3_u32 v{AA}, v{AA}, v16, s67
    v_add_u32 v{AA+1}, 1024, v{AA}
    v_add_u32 v{AA+2}, 2048, v{AA}
    v_add_u32 v{AA+3}, 3072, v{AA}
    v_lshlrev_b32 v{GA}, 5, v10
    v_sub_u32 v{GA}, {U_OFF+480}, v{GA}
    v_lshl_add_u32 v{GA}, v11, 4, v{GA}
    v_add_u32 v{GA}, s67, v{GA}
    v_lshlrev_b32 v{GA+1}, 5, v10
    v_lshl_add_u32 v{GA+2}, v11, 3, v{GA+1}
    v_sub_u32 v{GA+2}, {U_OFF+2*2044-3584}, v{GA+2}
    v_add_u32 v{GA+2}, s67, v{GA+2}
    v_and_b32 v16, 1, v11
    v_lshl_add_u32 v{GA+1}, v16, 9, v{GA+1}
    v_lshrrev_b32 v16, 1, v11
    v_lshl_add_u32 v{GA+1}, v16, 4, v{GA+1}
    v_mov_b32 v12, 1
    s_lshr_b32 s43, s64, 5
    s_lshl_b32 s43, s43, 13
    s_add_u32 s43, s43, {WS_F1}
    v_lshlrev_b32 v19, 7, v1
    s_waitcnt vmcnt(0)
    ;STAMP Ch
    ''')
    for m in range(4):
        a(f'v_mov_b32_dpp v{HX+m}, v{HD+4*m} wave_shl:1 {DPP}')
    for m in range(3):
        a(f'v_readlane_b32 s{40+m}, v{HD+4*m+4}, 0')
    for m in range(3):
        a(f'v_writelane_b32 v{HX+m}, s{40+m}, 63')
    for m in range(4):
        a(f'ds_write_b128 v9, v[{HD+4*m}:{HD+4*m+3}] offset:{H0_OFF+32+1024*m}')
        T = 20 + 4 * m
        for d in range(4):
            hi = HD + 4 * m + d + 1 if d < 3 else HX + m
            a(f'v_alignbyte_b32 v{T+d}, v{hi}, v{HD+4*m+d}, 2')
        a(f'ds_write_b128 v9, v[{T}:{T+3}] offset:{H1_OFF+32+1024*m}')
    a(f'''
    v_lshlrev_b32 v16, 16, v{HD}
    s_mov_b64 exec, 1
    ds_write_b32 v9, v16 offset:{H1_OFF+28}
    s_mov_b64 exec, -1
    ''')

    def ldA(g, rho):
        o = 128 * (g & 1) + 16 * rho
        r = AF + 4 * g
        return [('ld', f'ds_read2_b32 v[{r}:{r+1}], v{AA+g//2} offset0:{o} offset1:{o+1}', ('A0', g, rho)),
                ('ld', f'ds_read2_b32 v[{r+2}:{r+3}], v{AA+g//2} offset0:{o+2} offset1:{o+3}', ('A', g, rho))]

    def greg(d, rho):
        return GF + 4 * d + 32 * (rho & 1)

    def ldG(d, rho):
        r = greg(d, rho)
        return [('ld', f'ds_read_b128 v[{r}:{r+3}], v{GA} offset:{512*(7-d)+64*rho}', ('G', d, rho))]
    for g in range(7, -1, -1):
        for o in ldA(g, 0):
            a(o[1])
    a(f's_add_u32 s40, s66, {WS_UR}\ns_add_u32 m0, s67, {U_OFF}')
    o, e = a.lab('CO'), a.lab('CE')
    a(f's_cmp_lg_u32 s3, 0\ns_cbranch_scc1 {o}')
    a.lds_wait(GA + 3, 17, W_TFL, 5)
    l = a.spin_begin('CF')
    a(f'buffer_load_dword v17, v19, {WS}, s43 offen sc1\ns_waitcnt vmcnt(0)')
    a.tagcheck(18, [17])
    a.spin_end_exec(l)
    a(f'ds_write_b32 v{GA+3}, v12 offset:{W_CF}\ns_branch {e}')
    a.label(o)
    a.lds_wait(GA + 3, 17, W_CF, 1)
    a.label(e)
    a(';STAMP Cfl')
    for m in (3, 2, 1, 0):
        a(f'buffer_load_dwordx4 v8, {WS}, s40 offen offset:{1024*m} sc1 lds')
    if OPT['prio']:
        a('s_setprio 3')
    a(f'''
    s_and_b32 s41, s64, 1
    s_lshl_b32 s41, s41, 4
    s_waitcnt lgkmcnt(0)
    s_lshr_b32 s68, s68, s41
    s_and_b32 s68, s68, 0xffff
    s_lshl_b32 s69, s68, 16
    s_add_u32 s40, s66, {WS_Y2}
    s_waitcnt vmcnt(0)
    ;STAMP C1
    ''')
    ops = []
    for d in range(8):
        ops += ldG(d, 0)
    ops.append(('ld', f'ds_write_b32 v{GA+3}, v12 offset:{W_U}', 'sig'))
    first, pend = set(), []
    for rho in range(8):
        nxt = rho + 1 < 8
        for g in range(7, -1, -1):
            for d in range(8 - g):
                i = g + d
                c = f'v[{ACC+4*i}:{ACC+4*i+3}]' if i in first else '0'
                first.add(i)
                keys = [('G', d, rho)] + ([('A', g, rho)] if rho else [])
                r = greg(d, rho)
                ops.append(('mfma', f'v_mfma_f32_16x16x32_bf16 v[{ACC+4*i}:{ACC+4*i+3}], v[{AF+4*g}:{AF+4*g+3}], v[{r}:{r+3}], {c}', keys))
                if pend:
                    ops.append(pend.pop(0))
                slot = {(4, 3): 0, (3, 3): 1, (2, 3): 2, (2, 5): 3, (1, 3): 4, (1, 5): 5, (0, 3): 6, (0, 5): 7}.get((g, d))
                if nxt and slot is not None:
                    ops += ldG(slot, rho + 1)
                if not nxt and g <= 2 and d < 4 and not (g == 2 and d > 0):
                    n = 8 if g == 2 else (1 - g) * 4 + d
                    if n < 8:
                        ops.append(('ld', f'ds_read_b64 v[{72+2*n}:{73+2*n}], v{GA+2} offset:{512*(7-n)}', ('U', n)))
                    else:
                        ops.append(('ld', f'ds_read_b32 v{GA+4}, v{GA+3} offset:{W_YC}', 'yc'))
            if nxt:
                pend += ldA(g, rho + 1)
    lds_schedule(a, ops)
    UU, T, OUT = 72, 40, 88
    e = a.lab('CY')
    a(f's_waitcnt lgkmcnt(0)\nv_cmp_gt_u32 vcc, 1, v{GA+4}\ns_cbranch_vccz {e}')
    a.lds_wait(GA + 3, GA + 4, W_YC, 1)
    a.label(e)
    a(';STAMP C2')

    def dots(i):
        for r in range(4):
            src = UU + 2 * i + (1 if r < 2 else 0)
            sel = 's69' if r % 2 == 0 else 's68'
            a(f'v_dot2_f32_bf16 v{T+4*i+r}, v{src}, {sel}, v{ACC+4*i+r}')

    def cvts(i):
        a(f'v_cvt_pk_bf16_f32 v{OUT+2*i}, v{T+4*i}, v{T+4*i+1}')
        a(f'v_cvt_pk_bf16_f32 v{OUT+2*i+1}, v{T+4*i+2}, v{T+4*i+3}')

    def put(p):
        a(f'v_permlane16_swap_b32 v{OUT+4*p}, v{OUT+4*p+2}')
        a(f'v_permlane16_swap_b32 v{OUT+4*p+1}, v{OUT+4*p+3}')
        a(f'buffer_store_dwordx4 v[{OUT+4*p}:{OUT+4*p+3}], v{GA+1}, {WS}, s40 offen offset:{1024*p} sc1')
    dots(0)
    dots(1)
    for p in range(4):
        if p < 3:
            dots(2 * p + 2)
        cvts(2 * p)
        cvts(2 * p + 1)
        if p < 3:
            dots(2 * p + 3)
        put(p)
    a('s_endpgm')


SORT8 = [(0, 1), (2, 3), (4, 5), (6, 7), (0, 2), (1, 3), (4, 6), (5, 7), (1, 2), (5, 6), (0, 4), (3, 7), (1, 5), (2, 6), (1, 4), (3, 6), (2, 4), (3, 5), (3, 4)]
M_ODD16, M_HI32, M_B1, M_B0 = 40, 42, 72, 74


def silu(a, regs, tmp):
    for op in (f'v_mul_f32 v{{t}}, {NLOG2E}, v{{r}}', 'v_exp_f32 v{t}, v{t}', 'v_add_f32 v{t}, 1.0, v{t}', 'v_rcp_f32 v{t}, v{t}', 'v_mul_f32 v{r}, v{r}, v{t}'):
        for r, t in zip(regs, tmp):
            a(op.format(r=r, t=t))


def clean8(a, v, t):
    a(f'''
    v_max_u32_dpp v{t}, v{v}, v{v} row_shl:4 row_mask:0xf bank_mask:0x5
    v_min_u32_dpp v{t}, v{v}, v{v} row_shr:4 row_mask:0xf bank_mask:0xa
    v_max_u32_dpp v{v}, v{t}, v{t} quad_perm:[2,3,0,1] {DPP}
    v_min_u32_dpp v{t}, v{t}, v{t} quad_perm:[2,3,0,1] {DPP}
    v_cndmask_b32 v{v}, v{v}, v{t}, s[{M_B1}:{M_B1+1}]
    v_max_u32_dpp v{t}, v{v}, v{v} quad_perm:[1,0,3,2] {DPP}
    v_min_u32_dpp v{v}, v{v}, v{v} quad_perm:[1,0,3,2] {DPP}
    v_cndmask_b32 v{v}, v{t}, v{v}, s[{M_B0}:{M_B0+1}]
    ''')


def merge_rows(a, v, t):
    for swap, mask in (('v_permlane16_swap_b32', M_ODD16), ('v_permlane32_swap_b32', M_HI32)):
        a(f'''
        v_mov_b32_dpp v{t}, v{v} row_half_mirror {DPP}
        v_mov_b32_dpp v{t+1}, v{v} row_half_mirror {DPP}
        {swap} v{t}, v{t+1}
        v_cndmask_b32 v{t}, v{t+1}, v{t}, s[{mask}:{mask+1}]
        v_max_u32 v{v}, v{v}, v{t}
        ''')
        clean8(a, v, t)


def ffn_role(a):
    a(f'''
    s_sub_u32 s65, s{S_J}, 20
    s_mul_i32 s64, s{S_X}, 12
    s_add_u32 s64, s64, s65
    v_lshrrev_b32 v8, 1, v1
    v_mul_u32_u24 v8, 3072, v8
    v_and_b32 v9, 1, v1
    v_lshl_add_u32 v8, v9, 4, v8
    s_mul_i32 s40, s3, {160*3072}
    s_lshl_b32 s41, s64, 5
    s_add_u32 s67, s40, s41
    s_mul_i32 s68, s3, 5120
    s_mul_i32 s59, s64, {16*1280}
    s_mul_i32 s41, s3, 320
    s_add_u32 s59, s59, s41
    v_and_b32 v2, 15, v1
    v_lshrrev_b32 v3, 4, v1
    v_lshlrev_b32 v10, 4, v2
    v_lshl_add_u32 v10, v3, 7, v10
    s_mul_i32 s66, s64, {PF}
    s_mul_i32 s41, s3, 5120
    s_add_u32 s66, s66, s41
    s_add_u32 s66, s66, {WS_P}
    s_lshl_b32 s18, s3, 13
    s_add_u32 s18, s18, {WS_RI}
    s_add_u32 s19, s18, 4096
    v_lshrrev_b32 v4, 2, v1
    v_and_b32 v5, 3, v1
    v_lshlrev_b32 v5, 4, v5
    v_lshl_add_u32 v4, v4, 7, v5
    s_mov_b32 s41, 0xcccd
    ''')
    a.srd(28, 46, 640 * 3072)
    a.srd(32, 48, 640 * 3072)
    a.srd(36, 50, 1536 * 1280)
    DA = 104
    for c in range(5):
        a(f'''
        v_add_u32 v{DA+c}, {64*c}, v1
        v_mul_u32_u24 v9, s41, v{DA+c}
        v_lshrrev_b32 v9, 20, v9
        v_mul_u32_u24 v9, {1280-320}, v9
        v_lshl_add_u32 v{DA+c}, v{DA+c}, 4, v9
        ''')
    a(f'''
    s_mov_b32 s{M_ODD16}, 0xffff0000
    s_mov_b32 s{M_ODD16+1}, 0xffff0000
    s_mov_b32 s{M_HI32}, 0
    s_mov_b32 s{M_HI32+1}, -1
    s_mov_b32 s{M_B1}, 0xcccccccc
    s_mov_b32 s{M_B1+1}, 0xcccccccc
    s_mov_b32 s{M_B0}, 0xaaaaaaaa
    s_mov_b32 s{M_B0+1}, 0xaaaaaaaa
    s_mov_b32 s76, 0x00010001
    s_mov_b32 s77, 0x00010001
    v_mov_b32 v34, 0
    v_mov_b32 v12, 1
    ''')
    D = []
    for c in range(5):
        D.append(f's_add_u32 m0, s68, {L_G + 1024*c}\ns_add_u32 s69, s67, {c*32*3072}\nbuffer_load_dwordx4 v8, s[28:31], s69 offen lds')
        D.append(f's_add_u32 m0, s68, {L_U + 1024*c}\ns_nop 0\nbuffer_load_dwordx4 v8, s[32:35], s69 offen lds')
    DN = [f's_add_u32 m0, s68, {L_D + 1024*c}\ns_nop 0\nbuffer_load_dwordx4 v{DA+c}, s[36:39], s59 offen lds' for c in range(5)]
    if OPT['ddn']:
        D, DN = D + DN, []
    a.lds_wait(11, 9, W_TFL if OPT['fgate'] else W_TST, 5)
    for _ in range(OPT['dmas']):
        a(D.pop(0))
    KG = 16
    l = a.spin_begin('FK')
    for i in range(4):
        a(f'buffer_load_dwordx4 v[{KG+4*i}:{KG+4*i+3}], v4, {WS}, s{18+i//2} offen offset:{2048*(i%2)} sc1')
    a('s_waitcnt vmcnt(0)')
    a.tagcheck(32, [KG + 2 * i + 1 for i in range(8)])
    a.spin_end_exec(l)
    a(';STAMP F0')
    key = [KG + 2 * i for i in range(8)]
    spare = KG + 1
    for n, (i, j) in enumerate(SORT8):
        a(f'v_max_u32 v{spare}, v{key[i]}, v{key[j]}\nv_min_u32 v{key[j]}, v{key[i]}, v{key[j]}')
        key[i], spare = spare, key[i]
        if n % 2 == 1 and len(D) > 8:
            a(D.pop(0))
    for rd in range(8):
        a(f'v_max_u32_dpp v33, v{key[0]}, v{key[0]} row_ror:8 {DPP}')
        if D:
            a(D.pop(0))
        for sh in (4, 2, 1):
            a(f'v_max_u32_dpp v33, v33, v33 row_ror:{sh} {DPP}')
        if rd < 7:
            a(f'v_cmp_eq_u32 vcc, v33, v{key[0]}')
        a('v_cndmask_b32 v34, v34, v33, s[76:77]\ns_lshl_b64 s[76:77], s[76:77], 1')
        for i in range(7 - rd):
            a(f'v_cndmask_b32 v{key[i]}, v{key[i]}, v{key[i+1]}, vcc')
    assert not D
    merge_rows(a, 34, 32)
    a(f'''
    s_lshl_b32 s76, s3, 5
    s_add_u32 s76, s76, {L_CAND}
    v_lshl_add_u32 v35, v1, 2, s76
    v_and_b32 v36, 7, v1
    v_lshlrev_b32 v36, 2, v36
    v_lshl_add_u32 v36, v3, 5, v36
    s_mov_b64 exec, 0xff
    ds_write_b32 v35, v34
    s_mov_b64 exec, 1
    ds_add_u32 v11, v12 offset:{W_S0}
    s_mov_b64 exec, -1
    ;STAMP Fex
    ''')
    a.lds_wait(11, 35, W_S0, 4)
    a(f'''
    ds_read_b32 v34, v36 offset:{L_CAND}
    s_mul_i32 s76, s3, 320
    v_lshl_add_u32 v36, v3, 4, s76
    v_bfe_u32 v37, v1, 3, 1
    v_lshl_add_u32 v36, v37, 6, v36
    s_mov_b32 s77, {WS_RI+64}
    s_waitcnt lgkmcnt(0)
    ''')
    merge_rows(a, 34, 32)
    XP = 40
    a(f'''
    ;STAMP F1
    v_and_b32 v35, 0x7ff, v34
    v_sub_u32 v35, 2047, v35
    v_mul_u32_u24 v37, 1280, v35
    v_add_u32 v36, v36, v37
    buffer_load_dwordx4 v[{XP}:{XP+3}], v36, s[20:23], 0 offen
    buffer_load_dwordx4 v[{XP+4}:{XP+7}], v36, s[20:23], 0 offen offset:128
    buffer_load_dwordx4 v[{XP+8}:{XP+11}], v36, s[20:23], 0 offen offset:256
    v_and_b32 v37, 0x7f8, v35
    v_add_u32 v37, v37, v35
    v_lshlrev_b32 v37, 3, v37
    buffer_load_dwordx2 v[38:39], v37, {WS}, s77 offen sc1
    ''')
    for o in DN:
        a(o)
    WA = 72
    a(f'''
    v_lshrrev_b32 v4, 2, v2
    v_and_b32 v5, 3, v2
    v_lshlrev_b32 v6, 5, v4
    v_lshl_add_u32 v6, v5, 3, v6
    v_lshl_add_u32 v6, v3, 8, v6
    v_add_u32 v6, s68, v6
    v_lshl_add_u32 v13, v3, 2, v4
    v_mul_u32_u24 v13, 320, v13
    v_lshl_add_u32 v13, v5, 3, v13
    v_add_u32 v13, s68, v13
    v_lshlrev_b32 v14, 4, v1
    v_add_u32 v7, s68, v14
    s_waitcnt vmcnt({len(DN)})
    ''')
    e = a.lab('FS0')
    a.tagcheck(32, [39])
    a(f's_cbranch_vccz {e}')
    l = a.spin_begin('FS')
    a(f'buffer_load_dwordx2 v[38:39], v37, {WS}, s77 offen sc1\ns_waitcnt vmcnt(0)')
    a.tagcheck(32, [39])
    a.spin_end_vcc(l)
    a.label(e)
    a(';STAMP Fx')
    sk = a.lab('FI')
    a(f'''
    s_cmp_lg_u32 s3, 0
    s_cbranch_scc1 {sk}
    v_lshlrev_b32 v15, 2, v1
    v_mov_b32_dpp v52, v34 quad_perm:[0,2,0,2] {DPP}
    v_mov_b32_dpp v54, v34 quad_perm:[1,3,1,3] {DPP}
    v_mov_b32 v53, s{S_EP}
    v_mov_b32 v55, s{S_EP}
    s_mov_b64 exec, 0xff
    ds_write_b32 v15, v34 offset:{L_SLOT}
    v_lshrrev_b32 v15, 2, v1
    v_lshlrev_b32 v15, 5, v15
    v_and_b32 v32, 1, v1
    v_lshl_add_u32 v15, v32, 4, v15
    s_lshl_b32 s76, s{S_X}, 7
    s_add_u32 s76, s76, {WS_IDX}
    s_cmp_eq_u32 s65, 0
    s_cselect_b32 s76, s76, 0x80000000
    s_mov_b64 exec, 0x33
    buffer_store_dwordx4 v[52:55], v15, {WS}, s76 offen sc1
    s_cmp_eq_u32 s64, 0
    s_cselect_b32 s76, {WS_E}, 0x80000000
    s_mov_b64 exec, 1
    buffer_store_dword v53, v15, {WS}, s76 offen sc1
    s_mov_b64 exec, -1
    ''')
    a.label(sk)
    frag = []
    for c in (0, 2, 4, 1, 3):
        for mt, base in enumerate((L_G, L_U)):
            r = WA + 8 * c + 4 * mt
            frag.append(f'ds_read_b64_tr_b16 v[{r}:{r+1}], v6 offset:{base+1024*c}')
            frag.append(f'ds_read_b64_tr_b16 v[{r+2}:{r+3}], v6 offset:{base+1024*c+128}')
    XF = 112
    a('v_and_b32 v39, 0xffff0000, v38\nv_lshlrev_b32 v38, 16, v38\nv_rcp_f32 v60, v39')
    for i in range(12):
        unpack(a, XF + 2 * i, XP + i)
        a(frag.pop(0))
    for i in range(12):
        a(f'v_pk_add_f32 {pr(XF+2*i)}, {pr(XF+2*i)}, {pr(38)} {BC} {NEG}')
        if frag:
            a(frag.pop(0))
    for i in range(12):
        a(f'v_cvt_pk_bf16_f32 v{XP+i}, v{XF+2*i}, v{XF+2*i+1}')
    for i in range(12):
        unpack(a, XF + 2 * i, XP + i)
    for i in range(12):
        a(f'v_pk_mul_f32 {pr(XF+2*i)}, {pr(XF+2*i)}, {pr(60)} {BC}')
    for i in range(12):
        a(f'v_cvt_pk_bf16_f32 v{XP+i}, v{XF+2*i}, v{XF+2*i+1}')
    a(';STAMP Fxn\nv_mov_b32 v39, v60')
    XO = 52
    for i in range(8):
        a(f'v_mov_b32_dpp v{XO+i}, v{XP+i} row_ror:8 {DPP}')
    a('s_waitcnt lgkmcnt(0)')
    for c in (0, 2, 4, 1, 3):
        xr = XP + 4 * (c // 2) if c % 2 == 0 else XO + 4 * (c // 2)
        for mt in range(2):
            acc = 60 + 4 * mt
            r = WA + 8 * c + 4 * mt
            cc = '0' if c == 0 else f'v[{acc}:{acc+3}]'
            a(f'v_mfma_f32_16x16x32_bf16 v[{acc}:{acc+3}], v[{r}:{r+3}], v[{xr}:{xr+3}], {cc}')
    WDN, R, O = 112, 72, 72
    a(f'''
    s_mov_b32 s40, 0x07060503
    s_mov_b32 s41, 0x07060502
    s_mov_b32 s43, 0x07060501
    ds_write_b128 v7, v[60:63] offset:{L_G}
    ds_write_b128 v7, v[64:67] offset:{L_G+1024}
    s_mov_b64 exec, 1
    ds_add_u32 v11, v12 offset:{W_S1}
    s_mov_b64 exec, -1
    ;STAMP Fm1
    s_waitcnt vmcnt(0)
    ;STAMP Fdma
    ''')
    for nt in range(10):
        a(f'ds_read_b64_tr_b16 v[{WDN+2*nt}:{WDN+2*nt+1}], v13 offset:{L_D+32*nt}')
    a.lds_wait(11, 32, W_S1, 4)
    a(';STAMP Fs1')
    for w in range(4):
        for mt in range(2):
            a(f'ds_read_b128 v[{R+8*w+4*mt}:{R+8*w+4*mt+3}], v14 offset:{L_G+5120*w+1024*mt}')
    a(f's_mov_b64 exec, 1\nds_write_b32 v11, v12 offset:{W_DMA}\ns_mov_b64 exec, -1\ns_waitcnt lgkmcnt(1)')
    for i in range(4):
        a(f'v_pk_add_f32 {pr(R+2*i)}, {pr(R+2*i)}, {pr(R+8+2*i)}')
        a(f'v_pk_add_f32 {pr(R+16+2*i)}, {pr(R+16+2*i)}, {pr(R+24+2*i)}')
    for i in range(4):
        a(f'v_pk_add_f32 {pr(R+2*i)}, {pr(R+2*i)}, {pr(R+16+2*i)}')
    for i in range(4):
        a(f'v_cvt_pk_bf16_f32 v{R+8+i}, v{R+2*i}, v{R+2*i+1}')
    for i in range(4):
        unpack(a, R + 2 * i, R + 8 + i)
    silu(a, range(R, R + 4), range(R + 8, R + 12))
    for i in range(2):
        a(f'v_cvt_pk_bf16_f32 v{R+8+i}, v{R+2*i}, v{R+2*i+1}')
    for i in range(2):
        unpack(a, R + 2 * i, R + 8 + i)
    for i in range(2):
        a(f'v_pk_mul_f32 {pr(R+2*i)}, {pr(R+2*i)}, {pr(R+4+2*i)}')
    for i in range(2):
        a(f'v_cvt_pk_bf16_f32 v{60+i}, v{R+2*i}, v{R+2*i+1}')
    a(';STAMP Fgu')
    for nt in range(10):
        a(f'v_mfma_f32_16x16x16_bf16 v[{O+4*nt}:{O+4*nt+3}], v[{WDN+2*nt}:{WDN+2*nt+1}], v[60:61], 0')
    a('s_mov_b32 exec_lo, 0x00ff00ff\ns_mov_b32 exec_hi, 0x00ff00ff')
    for nt in range(10):
        for d, sr in enumerate((40, 41, 43)):
            a(f'v_perm_b32 v{O+4*nt+d}, v{O+4*nt+d}, v{O+4*nt+3}, s{sr}')
        a(f'v_mov_b32 v{O+4*nt+3}, s{S_EP}')
        if nt == 8:
            a('s_add_u32 s66, s66, 4096')
        a(f'buffer_store_dwordx4 v[{O+4*nt}:{O+4*nt+3}], v10, {WS}, s66 offen offset:{512*(nt%8)} sc1')
    a(f'''
    s_mov_b64 exec, -1
    ;STAMP F2
    s_cmp_ge_u32 s64, 80
    s_cbranch_scc1 K_END
    s_cmp_ge_u32 s3, 2
    s_cbranch_scc1 K_END
    ''')
    PR = 40
    a(f'''
    s_lshl_b32 s42, s64, 1
    s_add_u32 s42, s42, s3
    s_lshl_b32 s50, s42, 7
    v_mov_b32 v6, {WS_F2}
    buffer_load_dword v16, v6, {WS}, s50 offen sc1
    v_lshrrev_b32 v4, 3, v1
    v_and_b32 v15, 7, v1
    v_mul_u32_u24 v5, {PF}, v4
    v_lshl_add_u32 v5, v15, 4, v5
    s_add_u32 s40, s50, {WS_P}
    v_add_u32 v5, s40, v5
    v_and_b32 v4, 3, v4
    s_lshl_b32 s42, s42, 2
    v_add_u32 v8, s42, v4
    v_mul_u32_u24 v9, 1280, v35
    v_lshl_add_u32 v9, v8, 1, v9
    buffer_load_ushort v12, v9, s[20:23], 0 offen
    v_lshlrev_b32 v13, 1, v35
    v_and_b32 v13, 0xfffffffc, v13
    v_mul_u32_u24 v8, {RS}, v8
    v_add3_u32 v8, v8, v13, s47
    v_cmp_eq_u32 s[72:73], 1, v4
    v_cmp_eq_u32 s[74:75], 2, v4
    v_cmp_eq_u32 s[76:77], 3, v4
    v_ashrrev_i32 v20, 31, v34
    v_not_b32 v20, v20
    v_or_b32 v20, 0x80000000, v20
    v_xor_b32 v20, v20, v34
    v_and_b32 v20, 0xffff0000, v20
    v_mul_f32 v20, {NLOG2E}, v20
    v_exp_f32 v20, v20
    v_and_b32 v23, 1, v35
    v_xor_b32 v23, 1, v23
    v_lshlrev_b32 v23, 4, v23
    v_add_f32 v20, 1.0, v20
    v_rcp_f32 v20, v20
    s_or_b64 s[74:75], s[74:75], s[76:77]
    '''.replace('v_add3_u32 v8, v8, v13, s47', f's_mov_b32 s47, {WS_Y2}\nv_add3_u32 v8, v8, v13, s47'))
    a.srd(24, 52, NB)
    for i in range(12):
        a(f's_mov_b32 s{28+i}, {i*8*PF}')
    rnd(a, 20, 20)
    e = a.lab('RG0')
    a('s_waitcnt vmcnt(0)\nv_lshlrev_b32 v21, 16, v12\nv_sub_f32 v22, v21, v38')
    rnd(a, 22, 22)
    a('v_mul_f32 v22, v39, v22')
    rnd(a, 22, 22)
    a.tagcheck(18, [16])
    a(f's_cbranch_vccz {e}')
    l = a.spin_begin('RG')
    a(f'buffer_load_dword v16, v6, {WS}, s50 offen sc1\ns_waitcnt vmcnt(0)')
    a.tagcheck(18, [16])
    a.spin_end_vcc(l, 2)
    a.label(e)
    a('s_mov_b32 s40, 0x04000c0c\ns_mov_b32 s41, 0x0706000c')
    if OPT['rpsl']:
        a(f's_sleep {OPT["rpsl"]}')
    l = a.spin_begin('RP')
    for i in range(12):
        a(f'buffer_load_dwordx4 v[{PR+4*i}:{PR+4*i+3}], v5, {WS}, s{28+i} offen sc1')
    a('s_waitcnt vmcnt(0)')
    a.tagcheck(18, [PR + 4 * i + 3 for i in range(12)])
    a.spin_end_exec(l)
    a(f';STAMP F3\ns_mov_b32 exec_hi, 0\nbuffer_load_dword v13, v8, {WS}, 0 offen sc1\ns_mov_b32 exec_hi, -1')
    for i in range(12):
        a(f'v_perm_b32 v{PR+4*i+3}, v{PR+4*i}, v{PR+4*i+1}, s40')
    for i in range(12):
        a(f'v_perm_b32 v{PR+4*i+3}, v{PR+4*i+3}, v{PR+4*i+2}, s41')
    for n in (24, 12):
        for i in range(0, n, 2):
            a(f'v_pk_add_f32 {pr(PR+i)}, {pr(PR+i)}, {pr(PR+n+i)}')
    for st in (4, 8):
        for i in (0, 2):
            a(f'v_pk_add_f32 {pr(PR+i)}, {pr(PR+i)}, {pr(PR+st+i)}')
    for i in range(4):
        a(f'v_add_f32_dpp v{PR+i}, v{PR+i}, v{PR+i} row_ror:8 {DPP}')
    for i in range(4):
        a(f'v_mov_b32 v{PR+4+i}, v{PR+i}')
    for i in range(4):
        a(f'v_permlane16_swap_b32 v{PR+i}, v{PR+4+i}')
    for i in (0, 2):
        a(f'v_pk_add_f32 {pr(PR+i)}, {pr(PR+i)}, {pr(PR+4+i)}')
    a(f'''
    v_cndmask_b32 v{PR}, v{PR}, v{PR+1}, s[72:73]
    v_cndmask_b32 v{PR+2}, v{PR+2}, v{PR+3}, s[76:77]
    v_cndmask_b32 v{PR}, v{PR}, v{PR+2}, s[74:75]
    v_mov_b32 v{PR+1}, v{PR}
    v_permlane32_swap_b32 v{PR}, v{PR+1}
    v_add_f32 v{PR}, v{PR}, v{PR+1}
    ''')
    rnd(a, PR, PR)
    a(f'v_mul_f32 v{PR}, v{PR}, v20')
    rnd(a, PR, PR)
    a(f'v_add_f32 v{PR}, v{PR}, v22')
    rnd(a, PR, PR)
    silu(a, [PR], [PR + 1])
    e = a.lab('RY0')
    a(f'v_mul_f32 v22, v22, v{PR}\ns_mov_b32 exec_hi, 0\ns_waitcnt vmcnt(0)\nv_cmp_eq_u32 vcc, -1, v13\ns_cbranch_vccz {e}')
    l = a.spin_begin('RY')
    a(f'buffer_load_dword v13, v8, {WS}, 0 offen sc1\ns_waitcnt vmcnt(0)\nv_cmp_eq_u32 vcc, -1, v13')
    a.spin_end_vcc(l, 2)
    a.label(e)
    a(f'''
    v_lshlrev_b32 v13, v23, v13
    v_and_b32 v13, 0xffff0000, v13
    v_fma_f32 v22, v22, v13, v21
    v_cvt_pk_bf16_f32 v22, v22, v22
    buffer_store_short v22, v9, s[24:27], 0 offen
    s_endpgm
    ''')


def kernel():
    a = K()
    a.label('K_FIRST')
    a(f'''
    s_cmp_ge_u32 s2, 256
    s_cbranch_scc1 K_END
    s_load_dwordx8 s[4:11], s[0:1], 0
    s_load_dwordx4 s[12:15], s[0:1], 32
    s_load_dwordx8 s[44:51], s[0:1], 56
    s_load_dwordx2 s[52:53], s[0:1], 88
    s_load_dwordx2 s[54:55], s[0:1], 104
    v_lshrrev_b32 v1, 6, v0
    s_and_b32 s{S_X}, s2, 7
    v_readfirstlane_b32 s3, v1
    s_lshr_b32 s{S_J}, s2, 3
    s_cmp_lg_u32 s3, 0
    s_cbranch_scc1 K_NOPF
    s_getpc_b64 s[20:21]
    K_PC:
    s_sub_u32 s20, s20, K_PC-K_FIRST
    s_subb_u32 s21, s21, 0
    s_mov_b32 s22, K_END-K_FIRST
    s_mov_b32 s23, 0x20000
    s_lshl_b32 s24, s{S_J}, 10
    v_lshlrev_b32 v1, 7, v0
    s_mov_b64 exec, 0xff
    buffer_load_dword v{PFV}, v1, s[20:23], s24 offen
    s_mov_b64 exec, -1
    K_NOPF:
    s_and_b32 s{S_G}, s{S_J}, 3
    s_and_b32 s{S_TT}, s{S_J}, 24
    s_add_u32 s{S_TT}, s{S_TT}, s{S_X}
    s_lshl_b32 s{S_TT}, s{S_TT}, 1
    s_bfe_u32 s18, s{S_J}, 0x10002
    s_add_u32 s{S_TT}, s{S_TT}, s18
    s_cmp_lt_u32 s3, 4
    s_cbranch_scc1 K_L
    ''')
    tile_role(a)
    a.label('K_L')
    ln_role(a)
    a(f's_cmp_ge_u32 s{S_J}, 20\ns_cbranch_scc1 K_FFN')
    conv_role(a)
    a.label('K_FFN')
    ffn_role(a)
    a.label('K_END')
    a('s_endpgm')
    return a


def single_module(body):
    s = HDR + f'; @launch grid=(256,1,1) block=(576,1,1) lds={LDS_BYTES}\n'
    s += f'.amdgcn_target "amdgcn-amd-amdhsa--gfx950"\n.text\n.p2align 12\n.globl {KNAME}\n.p2align 8\n.type {KNAME},@function\n{KNAME}:\n{body}'
    nv, ns, na = max_regs(body)
    s += '.section .rodata,"a"\n' + KD.format(name=KNAME, vgpr=nv, sgpr=ns, acc=(nv + 3) // 4 * 4)
    return s


if __name__ == '__main__':
    out = sys.argv[1]
    rep = []
    for o in sys.argv[2:]:
        if '=' in o:
            k_, v_ = o.split('=')
            OPT[k_] = int(v_) if v_.lstrip('-').isdigit() else v_.replace('+', ' ')
    k = kernel()
    if 'diag' in sys.argv[2:]:
        import diag
        diag.CYC = 'cyc' in sys.argv
        sel = [o for o in sys.argv[2:] if o.startswith('@')]
        diag.instrument(k, 0, {n: i for g in sel for i, n in enumerate(g[1:].split(','))})
    k.lines = [l for l in k.lines if not l.startswith(';STAMP')]
    body = k.text(rep)
    assert not re.search(r'op_sel:\[[01,]*1', body), 'crossed low-half op_sel is unsafe beside MFMA'
    open(out, 'w').write(single_module(body))
    print('wrote', out, 'regs', max_regs(body), 'nops', len(rep), sum(n for n, _ in rep), 'lines', body.count('\n'))
```

```python
import sys, re
from asmlib import *

KNAME = 'recurrent_scan__ssm_conv_h3__moe_arch_mod__prompt_kernel'
HDR = open('recurrent_scan__ssm_conv_h3__moe_arch_mod__prompt.s.ref').read().split('; Override launch')[0]

NB = 2048 * 1280
RS = 4224
WS_E = 0
WS_IDX = 4096
WS_RI = 64 << 10
WS_F2 = 128 << 10
WS_HN = 256 << 10
WS_F1 = 512 << 10
WS_UR = 1 << 20
WS_Y2 = 4 << 20
WS_P = 8 << 20
WS_SIZE = 16 << 20
PTOK = 2560
PF = 8 * PTOK
NLOG2E = 0xbfb8aa3b
INV640 = 0x3acccccd
EPS = 0x3727c5ac
SPIN = 100000

H0_OFF, H1_OFF, U_OFF, CW_LDS = 0, 4160, 8288, 12864
L_G, L_U, L_D, L_MISC = 0, 20480, 40960, 61440
L_CNT, L_CAND, L_SLOT, L_RI, L_TP = L_MISC, L_MISC + 64, L_MISC + 192, L_MISC + 320, L_MISC + 512
LDS_BYTES = L_TP + 5 * 2304
W_S0, W_S1, W_EPN, W_EP, W_RI, W_TST, W_TFL, W_CF, W_U, W_YC, W_DMA = 0, 4, 12, 16, 20, 24, 32, 36, 40, 44, 48

OPT = dict(sleep=1, rpsl=8, prio=1, out='', pfat=2, hgate=1, qgate=0, fgate=1, dmas=10, ddn=0, qe=1, hpos=-1, ycr=2, tprio=0)

S_X, S_J, S_EP, S_CNT, ONES = 16, 17, 56, 57, 58
S_G, S_TT, S_RI = 74, 75, 76
C_NL2E, C_ONE = 70, 72
WS = 's[60:63]'
PFV = 71


class K(Asm):
    def __init__(self):
        super().__init__()
        self.n = 0

    def lab(self, p):
        self.n += 1
        return f'{p}_{self.n}'

    def spin_begin(self, p):
        l = self.lab(p)
        self(f's_mov_b32 s{S_CNT}, 0')
        self.label(l)
        return l

    def _tail(self, l, slp):
        self(f'''
        {f's_sleep {slp}' if slp else ''}
        s_add_u32 s{S_CNT}, s{S_CNT}, 1
        s_cmp_lt_u32 s{S_CNT}, {SPIN}
        s_cbranch_scc1 {l}
        ''')
        self.label(l + '_x')

    def spin_end_vcc(self, l, slp=None):
        self(f's_cbranch_vccz {l}_x')
        self._tail(l, OPT['sleep'] if slp is None else slp)

    def spin_end_exec(self, l, restore='-1', slp=None):
        self(f's_and_b64 exec, exec, vcc\ns_cbranch_execz {l}_x')
        self._tail(l, OPT['sleep'] if slp is None else slp)
        self(f's_mov_b64 exec, {restore}')

    def lds_wait(self, vaddr, vtmp, word, count, slp=0):
        l = self.spin_begin('LW')
        self(f'ds_read_b32 v{vtmp}, v{vaddr} offset:{word}\ns_waitcnt lgkmcnt(0)\nv_cmp_gt_u32 vcc, {count}, v{vtmp}')
        self.spin_end_vcc(l, slp)

    def lds_add(self, vaddr, vone, word):
        self(f's_mov_b64 exec, 1\nds_add_u32 v{vaddr}, v{vone} offset:{word}\ns_mov_b64 exec, -1')

    def maxtree(self, d, regs):
        regs = list(regs)
        self(f'v_max3_u32 v{d}, v{regs[0]}, v{regs[1]}, v{regs[2]}')
        regs = regs[3:]
        while len(regs) >= 2:
            self(f'v_max3_u32 v{d}, v{d}, v{regs[0]}, v{regs[1]}')
            regs = regs[2:]
        if regs:
            self(f'v_max_u32 v{d}, v{d}, v{regs[0]}')

    def tagcheck(self, d, regs):
        regs = list(regs)
        if len(regs) == 1:
            self(f'v_cmp_ne_u32 vcc, s{S_EP}, v{regs[0]}')
            return
        self.maxtree(d, regs)
        r = regs
        self(f'v_min3_u32 v{d+1}, v{r[0]}, v{r[1]}, v{r[2]}')
        r = r[3:]
        while len(r) >= 2:
            self(f'v_min3_u32 v{d+1}, v{d+1}, v{r[0]}, v{r[1]}')
            r = r[2:]
        if r:
            self(f'v_min_u32 v{d+1}, v{d+1}, v{r[0]}')
        self(f'v_xor_b32 v{d}, s{S_EP}, v{d}\nv_xor_b32 v{d+1}, s{S_EP}, v{d+1}\nv_or_b32 v{d}, v{d}, v{d+1}\nv_cmp_ne_u32 vcc, 0, v{d}')


def rnd(a, d, s):
    a(f'v_cvt_pk_bf16_f32 v{d}, v{s}, v{s}\nv_and_b32 v{d}, 0xffff0000, v{d}')


def unpack(a, d, s):
    a(f'v_lshlrev_b32 v{d}, 16, v{s}\nv_and_b32 v{d+1}, 0xffff0000, v{s}')


def pr(r):
    return f'v[{r}:{r+1}]'


DPP = 'row_mask:0xf bank_mask:0xf'
BC = 'op_sel_hi:[1,0]'
NEG = 'neg_lo:[0,1] neg_hi:[0,1]'


def rows8(a, op, reg0, vaddr, srd, mods=''):
    for i in range(8):
        so = '0' if i < 4 else 's18'
        a(f'{op} v{reg0+i}, v{vaddr}, {srd}, {so} offen offset:{1280*(i%4)} {mods}')


def weight_prefetch(a, vb, sb):
    a(f'''
    s_mul_i32 s40, s{S_J}, 60
    v_min_u32 v{vb}, 59, v0
    v_add_u32 v{vb}, s40, v{vb}
    s_mov_b32 s40, 0x5556
    v_mul_u32_u24 v{vb+1}, s40, v{vb}
    v_lshrrev_b32 v{vb+1}, 16, v{vb+1}
    s_cmp_eq_u32 s3, 0
    s_cselect_b32 s{sb}, s46, s48
    s_cselect_b32 s{sb+1}, s47, s49
    s_cmp_eq_u32 s3, 2
    s_cselect_b32 s{sb}, s50, s{sb}
    s_cselect_b32 s{sb+1}, s51, s{sb+1}
    s_cselect_b32 s40, 0, {3072-384}
    s_cselect_b32 s41, 640, 1
    s_mul_i32 s41, s41, s{S_X}
    s_mul_i32 s41, s41, 384
    s_cmp_ge_u32 s3, 3
    s_cselect_b32 s{sb+2}, 0, {640*3072}
    s_mov_b32 s{sb+3}, 0x20000
    v_mul_u32_u24 v{vb+1}, s40, v{vb+1}
    v_lshl_add_u32 v{vb}, v{vb}, 7, v{vb+1}
    buffer_load_dword v{vb+2}, v{vb}, s[{sb}:{sb+3}], s41 offen
    ''')


def tile_role(a):
    KK, VV, W, WF, KF, S, P = 8, 20, 28, 32, 40, 64, 80
    a(f'''
    s_sub_u32 s3, s3, 4
    s_mul_i32 s18, s{S_G}, 160
    s_lshl_b32 s19, s3, 5
    s_add_u32 s64, s18, s19
    s_lshl_b32 s19, s{S_TT}, 5
    v_and_b32 v0, 63, v0
    v_and_b32 v1, 15, v0
    v_lshrrev_b32 v2, 4, v0
    v_lshl_add_u32 v1, v1, 1, s64
    v_lshl_add_u32 v2, v2, 3, s19
    v_mul_u32_u24 v3, 1280, v2
    v_lshl_add_u32 v3, v1, 1, v3
    v_subrev_u32 v4, 3840, v3
    v_cmp_eq_u32 vcc, 0, v2
    v_mov_b32 v5, 0x80000000
    v_cndmask_b32 v4, v4, v5, vcc
    v_lshlrev_b32 v5, 3, v1
    s_mov_b32 s18, 5120
    s_mov_b32 s22, {NB}
    s_mov_b32 s23, 0x20000
    s_mov_b32 s26, {NB}
    s_mov_b32 s27, 0x20000
    s_mov_b32 s30, {640*8}
    s_mov_b32 s31, 0x20000
    s_waitcnt lgkmcnt(0)
    ;STAMP Targ
    s_mov_b64 s[20:21], s[6:7]
    ''')
    rows8(a, 'buffer_load_dword', KK + 3, 3, 's[20:23]')
    for i in range(3):
        a(f'buffer_load_dword v{KK+i}, v4, s[20:23], 0 offen offset:{1280*i}')
    a(f's_mov_b64 s[28:29], s[10:11]\ns_mov_b64 s[24:25], s[8:9]\nbuffer_load_dwordx4 v[{W}:{W+3}], v5, s[28:31], 0 offen')
    rows8(a, 'buffer_load_dword', VV, 3, 's[24:27]')
    a(';STAMP Tiss\ns_barrier')
    a.srd(32, 4, NB)
    QE = 98
    E = 8 * OPT['qe'] + (1 if OPT['pfat'] == 2 else 0)
    if OPT['qe']:
        rows8(a, 'buffer_load_dword', QE, 3, 's[32:35]')
    if OPT['pfat'] == 2:
        weight_prefetch(a, 95, 76)
    a.srd(36, 52, NB)
    a.srd(60, 54, WS_SIZE)
    a(f'''
    s_mul_i32 s67, s64, {RS}
    s_lshl_b32 s40, s{S_TT}, 6
    s_sub_u32 s65, s67, s40
    s_add_u32 s65, s65, {WS_UR + 63*64}
    s_add_u32 s66, s65, {16*RS}
    s_add_u32 s67, s67, s40
    s_add_u32 s67, s67, {WS_Y2}
    s_add_u32 s68, s67, {16*RS}
    v_lshrrev_b32 v6, 2, v0
    v_and_b32 v90, 3, v0
    v_mul_u32_u24 v6, {RS}, v6
    v_lshl_add_u32 v6, v90, 4, v6
    s_mul_i32 s40, s3, 2304
    s_add_u32 s40, s40, {L_TP}
    v_lshrrev_b32 v91, 3, v0
    v_add_u32 v91, v91, v0
    v_lshl_add_u32 v91, v91, 4, s40
    v_and_b32 v90, 15, v0
    v_mul_u32_u24 v90, 144, v90
    v_lshrrev_b32 v93, 4, v0
    v_lshl_add_u32 v94, v93, 4, v90
    v_add_u32 v94, s40, v94
    v_sub_u32 v93, 3, v93
    v_lshl_add_u32 v90, v93, 4, v90
    v_add_u32 v90, s40, v90
    v_mov_b32 v92, {L_CNT}
    v_mov_b32 v93, 1
    v_lshlrev_b32 v5, 4, v2
    v_add_u32 v5, {WS_RI+64}, v5
    s_lshl_b32 s40, s64, 1
    s_add_u32 s40, s40, s{S_TT}
    s_lshl_b32 s40, s40, 7
    s_add_u32 s40, s40, {WS_F1}
    v_mov_b32 v89, s40
    s_mov_b32 s{C_NL2E}, {NLOG2E}
    s_mov_b32 s{C_NL2E+1}, {NLOG2E}
    s_mov_b32 s{C_ONE}, 1.0
    s_mov_b32 s{C_ONE+1}, 1.0
    s_waitcnt vmcnt({8+E})
    ;STAMP Tk
    ''')
    for j in range(4):
        for hf in range(2):
            src = W + 2 * hf + j // 2
            a(f'v_lshlrev_b32 v{WF+2*j+hf}, 16, v{src}' if j % 2 == 0 else f'v_and_b32 v{WF+2*j+hf}, 0xffff0000, v{src}')
    for i in range(11):
        unpack(a, KF + 2 * i, KK + i)
    for t in range(8):
        a(f'v_pk_mul_f32 {pr(S+2*t)}, {pr(KF+2*t)}, {pr(WF+6)}')
    for j in (2, 1, 0):
        for t in range(8):
            a(f'v_pk_fma_f32 {pr(S+2*t)}, {pr(KF+2*(t+3-j))}, {pr(WF+2*j)}, {pr(S+2*t)}')
    a(f's_waitcnt vmcnt({E})\n;STAMP Tv')
    for t in range(8):
        unpack(a, KF + 2 * t, VV + t)
    for t in range(8):
        a(f'v_pk_mul_f32 {pr(S+2*t)}, {pr(S+2*t)}, {pr(KF+2*t)}')
    for hf in range(2):
        for m in range(4):
            a(f'v_cvt_pk_bf16_f32 v{P+4*hf+m}, v{S+2*(7-2*m)+hf}, v{S+2*(6-2*m)+hf}')
        a(f'ds_write_b128 v90, v[{P+4*hf}:{P+4*hf+3}] offset:{64*hf}')
    a(f'ds_read_b128 v[{S}:{S+3}], v91\nds_read_b128 v[{S+4}:{S+7}], v91 offset:1152')
    for hf in range(2):
        a(f's_waitcnt lgkmcnt({1-hf})\nbuffer_store_dwordx4 v[{S+4*hf}:{S+4*hf+3}], v6, {WS}, s{65+hf} offen sc1')
    a(';STAMP T1')
    Q, ST, X, F, T = 8, 16, 32, 48, 64

    def stl():
        for i in range(4):
            a(f'buffer_load_dwordx4 v[{ST+4*i}:{ST+4*i+3}], v5, {WS}, 0 offen offset:{16*i} sc1')
    ste = OPT['qgate'] < 0
    if ste:
        stl()
    a.lds_add(92, 93, W_TST)
    if ste:
        for t in range(8):
            unpack(a, X + 2 * t, QE + t)
    a.lds_wait(92, 88, W_EPN, 1)
    a(f'''
    ds_read_b32 v88, v92 offset:{W_EP}
    s_waitcnt vmcnt({4 if ste else 0}) lgkmcnt(0)
    ;STAMP Tack
    s_mov_b64 exec, 1
    buffer_store_dword v88, v89, {WS}, 0 offen sc1
    ds_add_u32 v92, v93 offset:{W_TFL}
    s_mov_b64 exec, -1
    v_readfirstlane_b32 s{S_EP}, v88
    ''')
    if OPT['qgate'] > 0:
        a.lds_wait(92, 88, W_TST if OPT['qgate'] == 1 else W_TFL, 5)
    if ste:
        a('s_waitcnt vmcnt(1)')
    else:
        stl()
        if OPT['qe']:
            for t in range(8):
                unpack(a, X + 2 * t, QE + t)
        else:
            rows8(a, 'buffer_load_dword', QE, 3, 's[32:35]')
        a('s_waitcnt vmcnt(0)')
    e = a.lab('TS0')
    a.tagcheck(T + 8, [ST + 2 * i + 1 for i in range(8)])
    a(f's_cbranch_vccz {e}\ns_mov_b64 exec, vcc')
    l = a.spin_begin('TS')
    stl()
    a('s_waitcnt vmcnt(0)')
    a.tagcheck(T + 8, [ST + 2 * i + 1 for i in range(8)])
    a.spin_end_exec(l)
    a.label(e)
    a(';STAMP Tst')
    if OPT['tprio']:
        a('s_setprio 3')
    if OPT['pfat'] == 0:
        weight_prefetch(a, 95, 76)
    for t in range(8):
        a(f'v_and_b32 v{T+2*t}, 0xffff0000, v{ST+2*t}\nv_lshlrev_b32 v{ST+2*t}, 16, v{ST+2*t}\nv_rcp_f32 v{T+2*t}, v{T+2*t}')
    if not OPT['qe']:
        for t in range(8):
            unpack(a, X + 2 * t, QE + t)
    for t in range(8):
        a(f'v_pk_add_f32 {pr(F+2*t)}, {pr(X+2*t)}, {pr(ST+2*t)} {BC} {NEG}')

    def round_pairs(base):
        for t in range(8):
            a(f'v_cvt_pk_bf16_f32 v{Q+t}, v{base+2*t}, v{base+2*t+1}')
        for t in range(8):
            unpack(a, base + 2 * t, Q + t)
    round_pairs(F)
    for t in range(8):
        a(f'v_pk_mul_f32 {pr(F+2*t)}, {pr(F+2*t)}, {pr(T+2*t)} {BC}')
    round_pairs(F)
    for t in range(8):
        a(f'v_pk_mul_f32 {pr(T+2*t)}, {pr(F+2*t)}, s[{C_NL2E}:{C_NL2E+1}]')
    for i in range(16):
        a(f'v_exp_f32 v{T+i}, v{T+i}')
    for t in range(8):
        a(f'v_pk_mul_f32 {pr(F+2*t)}, {pr(F+2*t)}, {pr(F+2*t)}')
        a(f'v_pk_add_f32 {pr(T+2*t)}, {pr(T+2*t)}, s[{C_ONE}:{C_ONE+1}]')
    for i in range(16):
        a(f'v_rcp_f32 v{T+i}, v{T+i}')
    for t in range(8):
        a(f'v_pk_mul_f32 {pr(F+2*t)}, {pr(F+2*t)}, {pr(T+2*t)}')
    a(';STAMP T2')
    if OPT['tprio']:
        a('s_setprio 0')
    if OPT['pfat'] == 1:
        weight_prefetch(a, 95, 76)
    AD, Y = 16, 80
    for t in range(8):
        a(f'v_mov_b32 v{AD+t}, v3')
    o, e = a.lab('TO'), a.lab('TE')
    a(f'''
    v_and_b32 v8, 7, v0
    v_lshlrev_b32 v13, 3, v8
    v_lshlrev_b32 v8, 2, v8
    v_lshlrev_b32 v9, 7, v0
    s_lshl_b32 s41, s64, 5
    s_add_u32 s41, s41, {WS_F2}
    s_lshl_b32 s40, s{S_X}, 7
    s_add_u32 s40, s40, {WS_IDX}
    s_lshl_b32 s42, s{S_TT}, 5
    s_sub_u32 s42, 2016, s42
    s_cmp_ge_u32 s{S_J}, 20
    s_cbranch_scc1 {o}
    ''')
    a.lds_wait(92, 11, W_YC, 4, 4)
    l = a.spin_begin('TI')
    a(f'buffer_load_dwordx2 v[10:11], v13, {WS}, s40 offen sc1\ns_waitcnt vmcnt(0)')
    a.tagcheck(14, [11])
    a.spin_end_vcc(l, 2)
    a(f's_branch {e}')
    a.label(o)
    a.lds_wait(92, 11, W_DMA, 1, 4)
    a(f'ds_read_b32 v10, v8 offset:{L_SLOT}\ns_waitcnt lgkmcnt(0)')
    a.label(e)
    e = a.lab('TM')
    a(f'''
    s_mov_b64 exec, 0xff
    buffer_load_dword v12, v9, {WS}, s41 offen sc1
    s_mov_b64 exec, -1
    v_and_b32 v10, 0x7ff, v10
    v_subrev_u32 v11, s42, v10
    v_cmp_gt_u32 vcc, 32, v11
    s_cbranch_vccz {e}
    v_sub_u32 v10, 2047, v10
    v_mov_b32 v7, 0
    ''')
    for k in range(8):
        a(f'v_readlane_b32 s{44+k}, v10, {k}')
    for k in range(8):
        a(f'''
        v_sub_u32 v8, s{44+k}, v2
        v_cmp_gt_u32 vcc, 8, v8
        v_lshlrev_b32 v8, v8, 1
        v_cndmask_b32 v8, 0, v8, vcc
        v_or_b32 v7, v7, v8
        ''')
    for t in range(8):
        a(f'v_bfe_i32 v{AD+t}, v7, {t}, 1\nv_and_b32 v{AD+t}, 0x80000000, v{AD+t}\nv_or_b32 v{AD+t}, v{AD+t}, v3')
    a.label(e)
    e = a.lab('TF0')
    a('s_mov_b64 exec, 0xff\ns_waitcnt vmcnt(0)')
    a.tagcheck(14, [12])
    a(f's_and_b64 exec, exec, vcc\ns_cbranch_execz {e}')
    l = a.spin_begin('TF')
    a(f'buffer_load_dword v12, v9, {WS}, s41 offen sc1\ns_waitcnt vmcnt(0)')
    a.tagcheck(14, [12])
    a.spin_end_exec(l, slp=2)
    a.label(e)
    a('s_mov_b64 exec, -1')
    a(';STAMP Tix')
    if OPT['hpos'] < 0:
        a('s_mov_b32 exec_lo, 0\ns_mov_b32 exec_hi, 0x80000000')
        l = a.spin_begin('TH')
        a(f'buffer_load_dword v9, v6, {WS}, s68 offen offset:12 sc1\ns_waitcnt vmcnt(0)\nv_cmp_eq_u32 vcc, -1, v9')
        a.spin_end_exec(l)
    else:
        a(f's_lshr_b32 s40, s64, 2\ns_add_u32 s40, s40, s{S_X}\ns_lshl_b32 s40, s40, 7\nv_mov_b32 v8, {WS_HN}\ns_mov_b64 exec, 1')
        l = a.spin_begin('TH')
        a(f'buffer_load_dword v9, v8, {WS}, s40 offen sc1\ns_waitcnt vmcnt(0)')
        a.tagcheck(14, [9])
        a.spin_end_exec(l)
    a(';STAMP Th')
    l = a.spin_begin('TY')
    a(f'buffer_load_dwordx4 v[{Y}:{Y+3}], v6, {WS}, s67 offen sc1')
    a(f'buffer_load_dwordx4 v[{Y+4}:{Y+7}], v6, {WS}, s68 offen sc1')
    a('s_waitcnt vmcnt(0)')
    a.maxtree(8, range(Y, Y + 8))
    a('v_cmp_eq_u32 vcc, -1, v8')
    a.spin_end_exec(l)
    a(f''';STAMP T3
    ds_write_b128 v91, v[{Y}:{Y+3}]
    ds_write_b128 v91, v[{Y+4}:{Y+7}] offset:1152
    ds_read_b128 v[{Y}:{Y+3}], v94
    ds_read_b128 v[{Y+4}:{Y+7}], v94 offset:64
    s_waitcnt lgkmcnt(0)
    ''')
    for t in range(8):
        for hf in range(2):
            src = Y + 4 * hf + t // 2
            a(f'v_lshlrev_b32 v{T+2*t+hf}, 16, v{src}' if t % 2 == 0 else f'v_and_b32 v{T+2*t+hf}, 0xffff0000, v{src}')
        a(f'v_pk_fma_f32 {pr(T+2*t)}, {pr(T+2*t)}, {pr(F+2*t)}, {pr(X+2*t)}')
        a(f'v_cvt_pk_bf16_f32 v{Q+t}, v{T+2*t}, v{T+2*t+1}')
        so = '0' if t < 4 else 's18'
        a(f'buffer_store_dword v{Q+t}, v{AD+t}, s[36:39], {so} offen offset:{1280*(t%4)} {OPT["out"]}')
    a('s_endpgm')


LX, LW, LF, LA = 72, 84, 96, 120
HD, HX = 40, 56


def ln_role(a):
    A = LA
    a(f'''
    s_lshl_b32 s{S_RI}, s{S_TT}, 2
    s_add_u32 s{S_RI}, s{S_RI}, s{S_G}
    s_lshl_b32 s18, s{S_RI}, 3
    s_lshl_b32 s19, s3, 1
    s_add_u32 s18, s18, s19
    v_and_b32 v1, 63, v0
    v_lshrrev_b32 v2, 5, v1
    v_add_u32 v2, s18, v2
    v_and_b32 v3, 31, v1
    v_lshlrev_b32 v4, 4, v3
    v_lshlrev_b32 v5, 3, v3
    v_mul_u32_u24 v6, 1280, v2
    v_add_u32 v7, v6, v5
    v_add_u32 v6, v6, v4
    v_mov_b32 v12, 0
    v_mov_b32 v13, 0
    v_mov_b32 v14, 0
    v_mov_b32 v15, 0
    v_mov_b32 v11, {L_CNT}
    s_waitcnt lgkmcnt(0)
    ''')
    a.srd(20, 4, NB)
    a(f'''
    buffer_load_dwordx4 v[{LX}:{LX+3}], v6, s[20:23], 0 offen
    buffer_load_dwordx4 v[{LX+4}:{LX+7}], v6, s[20:23], 0 offen offset:512
    buffer_load_dwordx2 v[{LX+8}:{LX+9}], v7, s[20:23], 0 offen offset:1024
    ''')
    a.srd(24, 44, 1280)
    a(f'''
    ds_write_b128 v11, v[12:15]
    ds_write_b128 v11, v[12:15] offset:16
    ds_write_b128 v11, v[12:15] offset:32
    ds_write_b128 v11, v[12:15] offset:48
    ''')
    a.srd(60, 54, WS_SIZE)
    a(f'''
    s_waitcnt lgkmcnt(0)
    s_barrier
    s_load_dword s{S_EP}, s[54:55], {WS_E}
    buffer_load_dwordx4 v[{LW}:{LW+3}], v4, s[24:27], 0 offen
    buffer_load_dwordx4 v[{LW+4}:{LW+7}], v4, s[24:27], 0 offen offset:512
    buffer_load_dwordx2 v[{LW+8}:{LW+9}], v5, s[24:27], 0 offen offset:1024
    v_mov_b32 v18, 1
    s_mov_b32 s{ONES}, 0x3f803f80
    s_mov_b32 s41, {INV640}
    s_waitcnt vmcnt(3)
    ;STAMP Lq
    v_dot2_f32_bf16 v{A}, v{LX}, s{ONES}, 0
    ''')
    for i in range(1, 10):
        a(f'v_dot2_f32_bf16 v{A}, v{LX+i}, s{ONES}, v{A}')
    for i in range(3):
        unpack(a, LF + 2 * i, LX + i)
    for n, sh in enumerate((8, 4, 2, 1)):
        a(f'v_add_f32_dpp v{A}, v{A}, v{A} row_ror:{sh} {DPP}')
        unpack(a, LF + 2 * (3 + n), LX + 3 + n)
    a(f'v_mov_b32 v{A+1}, v{A}')
    unpack(a, LF + 14, LX + 7)
    a(f'v_permlane16_swap_b32 v{A}, v{A+1}')
    unpack(a, LF + 16, LX + 8)
    a(f'v_add_f32 v{A}, v{A}, v{A+1}')
    unpack(a, LF + 18, LX + 9)
    a(f'v_mul_f32 v{A}, s41, v{A}')
    rnd(a, A + 2, A)
    a(f'v_sub_f32 v{A}, v{A}, v{A+2}')
    for i in range(10):
        a(f'v_pk_add_f32 {pr(LF+2*i)}, {pr(LF+2*i)}, {pr(A+2)} {BC} {NEG}')
    a(f'v_pk_mul_f32 {pr(A+4)}, {pr(LF)}, {pr(LF)}')
    for i in range(1, 10):
        a(f'v_pk_fma_f32 {pr(A+4)}, {pr(LF+2*i)}, {pr(LF+2*i)}, {pr(A+4)}')
    a(f'v_add_f32 v{A+4}, v{A+4}, v{A+5}')
    cv = [f'v_cvt_pk_bf16_f32 v{LX+i}, v{LF+2*i}, v{LF+2*i+1}' for i in range(10)]
    a(cv.pop(0) + '\n' + cv.pop(0))
    for sh in (8, 4, 2, 1):
        a(f'v_add_f32_dpp v{A+4}, v{A+4}, v{A+4} row_ror:{sh} {DPP}')
        a(cv.pop(0) + '\n' + cv.pop(0))
    a(f'v_mov_b32 v{A+1}, v{A+4}')
    unpack(a, LF, LX)
    a(f'''
    v_permlane16_swap_b32 v{A+4}, v{A+1}
    v_add_f32 v{A+4}, v{A+4}, v{A+1}
    v_mul_f32 v{A+4}, s41, v{A+4}
    v_fma_f32 v{A+4}, -v{A}, v{A}, v{A+4}
    v_max_f32 v{A+4}, 0, v{A+4}
    ''')
    rnd(a, A + 4, A + 4)
    a(f'v_add_f32 v{A+4}, {EPS}, v{A+4}')
    rnd(a, A + 4, A + 4)
    a(f'v_sqrt_f32 v{A+4}, v{A+4}')
    unpack(a, LF + 2, LX + 1)
    rnd(a, A + 4, A + 4)
    a(f'v_rcp_f32 v{A+6}, v{A+4}')
    for i in range(2, 10):
        unpack(a, LF + 2 * i, LX + i)
    for i in range(10):
        a(f'v_pk_mul_f32 {pr(LF+2*i)}, {pr(LF+2*i)}, {pr(A+6)} {BC}')
    for i in range(10):
        a(f'v_cvt_pk_bf16_f32 v{LX+i}, v{LF+2*i}, v{LF+2*i+1}')
    a(f'''
    s_waitcnt vmcnt(0) lgkmcnt(0)
    s_add_u32 s{S_EP}, s{S_EP}, 1
    v_mov_b32 v17, s{S_EP}
    s_mov_b64 exec, 1
    ds_write_b32 v11, v17 offset:{W_EP}
    ds_write_b32 v11, v18 offset:{W_EPN}
    s_mov_b64 exec, -1
    v_dot2_f32_bf16 v{A+6}, v{LX}, v{LW}, 0
    ''')
    for i in range(1, 10):
        a(f'v_dot2_f32_bf16 v{A+6}, v{LX+i}, v{LW+i}, v{A+6}')
    fill = [f'v_lshrrev_b32 v{A+2}, 16, v{A+2}', f'v_or_b32 v{LF}, v{A+2}, v{A+4}', f'v_and_b32 v{LF+4}, 7, v2',
            f'v_lshlrev_b32 v{LF+4}, 3, v{LF+4}', f'v_mov_b32 v{LF+1}, s{S_EP}', f'v_mov_b32 v{LF+3}, s{S_EP}',
            f'v_lshlrev_b32 v{LF+6}, 4, v1', f'v_sub_u32 v{A+7}, 2047, v2', f's_lshl_b32 s40, s{S_RI}, 7', f's_add_u32 s40, s40, {WS_RI}',
            's_nop 0']
    a('\n'.join(fill[:3]))
    fill = fill[3:]
    for sh in (8, 4, 2, 1):
        a(f'v_add_f32_dpp v{A+6}, v{A+6}, v{A+6} row_ror:{sh} {DPP}')
        a(fill.pop(0) + '\n' + fill.pop(0))
    a(f'''
    v_mov_b32 v{A+1}, v{A+6}
    v_permlane16_swap_b32 v{A+6}, v{A+1}
    v_add_f32 v{A+6}, v{A+6}, v{A+1}
    v_add_f32 v{A+6}, 0, v{A+6}
    v_cvt_pk_bf16_f32 v{A+6}, v{A+6}, v{A+6}
    v_ashrrev_i32 v{A+1}, 31, v{A+6}
    v_or_b32 v{A+1}, 0x80000000, v{A+1}
    v_xor_b32 v{A+6}, v{A+6}, v{A+1}
    v_and_b32 v{A+6}, 0xffff0000, v{A+6}
    v_or_b32 v{LF+2}, v{A+6}, v{A+7}
    s_mov_b32 exec_lo, 1
    s_mov_b32 exec_hi, 1
    ds_write_b64 v{LF+4}, v[{LF+2}:{LF+3}] offset:{L_RI}
    ds_write_b64 v{LF+4}, v[{LF}:{LF+1}] offset:{L_RI+64}
    s_mov_b32 exec_hi, 0
    ds_add_rtn_u32 v18, v11, v18 offset:{W_RI}
    s_mov_b64 exec, 0xff
    ds_read_b128 v[{LF+12}:{LF+15}], v{LF+6} offset:{L_RI}
    s_waitcnt lgkmcnt(0)
    v_readfirstlane_b32 s41, v18
    s_cmp_eq_u32 s41, 3
    s_cselect_b32 s40, s40, 0x80000000
    buffer_store_dwordx4 v[{LF+12}:{LF+15}], v{LF+6}, {WS}, s40 offen sc1
    ;STAMP Lri
    s_mov_b64 exec, -1
    ''')


def lds_schedule(a, ops):
    issued, pos, done = 0, {}, 0
    for o in ops:
        if o[0] == 'ld':
            a(o[1])
            issued += 1
            pos[o[2]] = issued
        elif o[0] == 'raw':
            a(o[1])
        else:
            needp = max(pos[k] for k in o[2])
            if needp > done:
                n = min(issued - needp, 15)
                a(f's_waitcnt lgkmcnt({n})')
                done = issued - n
            a(o[1])


def conv_role(a):
    AA, GA = 136, 140
    ACC, AF, GF = 8, 40, 72
    a(f'''
    s_mul_i32 s18, s{S_X}, 80
    s_lshl_b32 s19, s{S_J}, 2
    s_add_u32 s19, s19, s3
    s_add_u32 s64, s18, s19
    s_lshl_b32 s65, s64, 12
    v_lshlrev_b32 v8, 4, v1
    ''')
    a.srd(28, 12, NB)
    if OPT['hgate']:
        a.lds_wait(11, 16, W_TST if OPT['hgate'] == 1 else W_TFL, 5)
    for m in range(4):
        a(f'buffer_load_dwordx4 v[{HD+4*m}:{HD+4*m+3}], v8, s[28:31], s65 offen offset:{1024*m}')
    a(f'''
    s_mul_i32 s66, s64, {RS}
    s_mul_i32 s67, s3, {CW_LDS}
    s_lshl_b32 s40, s64, 1
    s_and_b32 s40, s40, 0xfffffffc
    s_add_u32 s14, s14, s40
    s_addc_u32 s15, s15, 0
    s_load_dword s68, s[14:15], 0
    v_add_u32 v9, s67, v8
    s_mov_b64 exec, 0x3fffffff
    ds_write_b128 v9, v[12:15] offset:{U_OFF+4096}
    s_mov_b64 exec, 3
    ds_write_b128 v9, v[12:15] offset:{H0_OFF}
    ds_write_b128 v9, v[12:15] offset:{H1_OFF}
    s_mov_b64 exec, -1
    v_mov_b32 v{GA+3}, {L_CNT}
    v_and_b32 v10, 15, v1
    v_lshrrev_b32 v11, 4, v1
    v_and_b32 v16, 1, v10
    v_add_u32 v{AA}, v10, v16
    v_lshlrev_b32 v{AA}, 1, v{AA}
    v_lshl_add_u32 v{AA}, v11, 4, v{AA}
    v_xor_b32 v16, 1, v16
    v_mul_u32_u24 v16, {H1_OFF}, v16
    v_add3_u32 v{AA}, v{AA}, v16, s67
    v_add_u32 v{AA+1}, 1024, v{AA}
    v_add_u32 v{AA+2}, 2048, v{AA}
    v_add_u32 v{AA+3}, 3072, v{AA}
    v_lshlrev_b32 v{GA}, 5, v10
    v_sub_u32 v{GA}, {U_OFF+480}, v{GA}
    v_lshl_add_u32 v{GA}, v11, 4, v{GA}
    v_add_u32 v{GA}, s67, v{GA}
    v_lshlrev_b32 v{GA+1}, 5, v10
    v_lshl_add_u32 v{GA+2}, v11, 3, v{GA+1}
    v_sub_u32 v{GA+2}, {U_OFF+2*2044-3584}, v{GA+2}
    v_add_u32 v{GA+2}, s67, v{GA+2}
    v_and_b32 v16, 1, v11
    v_lshl_add_u32 v{GA+1}, v16, 9, v{GA+1}
    v_lshrrev_b32 v16, 1, v11
    v_lshl_add_u32 v{GA+1}, v16, 4, v{GA+1}
    v_mov_b32 v12, 1
    s_lshr_b32 s43, s64, 5
    s_lshl_b32 s43, s43, 13
    s_add_u32 s43, s43, {WS_F1}
    v_lshlrev_b32 v19, 7, v1
    s_waitcnt vmcnt(0)
    ;STAMP Ch
    ''')
    for m in range(4):
        a(f'v_mov_b32_dpp v{HX+m}, v{HD+4*m} wave_shl:1 {DPP}')
    for m in range(3):
        a(f'v_readlane_b32 s{40+m}, v{HD+4*m+4}, 0')
    for m in range(3):
        a(f'v_writelane_b32 v{HX+m}, s{40+m}, 63')
    for m in range(4):
        a(f'ds_write_b128 v9, v[{HD+4*m}:{HD+4*m+3}] offset:{H0_OFF+32+1024*m}')
        T = 20 + 4 * m
        for d in range(4):
            hi = HD + 4 * m + d + 1 if d < 3 else HX + m
            a(f'v_alignbyte_b32 v{T+d}, v{hi}, v{HD+4*m+d}, 2')
        a(f'ds_write_b128 v9, v[{T}:{T+3}] offset:{H1_OFF+32+1024*m}')
    a(f'''
    v_lshlrev_b32 v16, 16, v{HD}
    s_mov_b64 exec, 1
    ds_write_b32 v9, v16 offset:{H1_OFF+28}
    s_mov_b64 exec, -1
    ''')

    def ldA(g, rho):
        o = 128 * (g & 1) + 16 * rho
        r = AF + 4 * g
        return [('ld', f'ds_read2_b32 v[{r}:{r+1}], v{AA+g//2} offset0:{o} offset1:{o+1}', ('A0', g, rho)),
                ('ld', f'ds_read2_b32 v[{r+2}:{r+3}], v{AA+g//2} offset0:{o+2} offset1:{o+3}', ('A', g, rho))]

    def greg(d, rho):
        return GF + 4 * d + 32 * (rho & 1)

    def ldG(d, rho):
        r = greg(d, rho)
        return [('ld', f'ds_read_b128 v[{r}:{r+3}], v{GA} offset:{512*(7-d)+64*rho}', ('G', d, rho))]
    for g in range(7, -1, -1):
        for o in ldA(g, 0):
            a(o[1])
    a(f's_add_u32 s40, s66, {WS_UR}\ns_add_u32 m0, s67, {U_OFF}')
    o, e = a.lab('CO'), a.lab('CE')
    a(f's_cmp_lg_u32 s3, 0\ns_cbranch_scc1 {o}')
    a.lds_wait(GA + 3, 17, W_TFL, 5)
    l = a.spin_begin('CF')
    a(f'buffer_load_dword v17, v19, {WS}, s43 offen sc1\ns_waitcnt vmcnt(0)')
    a.tagcheck(18, [17])
    a.spin_end_exec(l)
    a(f'ds_write_b32 v{GA+3}, v12 offset:{W_CF}\ns_branch {e}')
    a.label(o)
    a.lds_wait(GA + 3, 17, W_CF, 1)
    a.label(e)
    a(';STAMP Cfl')
    for m in (3, 2, 1, 0):
        a(f'buffer_load_dwordx4 v8, {WS}, s40 offen offset:{1024*m} sc1 lds')
    if OPT['prio']:
        a(f's_setprio {OPT["prio"]}')
    a(f'''
    s_lshr_b32 s42, s64, 2
    s_lshl_b32 s42, s42, 7
    s_add_u32 s42, s42, {WS_F2}
    s_lshr_b32 s43, s64, 5
    s_lshl_b32 s43, s43, 10
    s_add_u32 s43, s43, {WS_HN}
    s_and_b32 s41, s64, 31
    s_cmp_eq_u32 s41, 31
    s_cselect_b32 s43, s43, 0x80000000
    v_mov_b32 v{GA+4}, 1
    v_mov_b32 v{GA+5}, s{S_EP}
    v_mov_b32 v{GA+6}, 0
    v_mov_b32 v12, -1
    v_mov_b32 v13, -1
    v_mov_b32 v14, -1
    v_mov_b32 v15, -1
    s_and_b32 s41, s64, 1
    s_lshl_b32 s41, s41, 4
    s_waitcnt lgkmcnt(0)
    s_lshr_b32 s68, s68, s41
    s_and_b32 s68, s68, 0xffff
    s_lshl_b32 s69, s68, 16
    s_add_u32 s40, s66, {WS_Y2}
    s_waitcnt vmcnt(0)
    ;STAMP C1
    ''')
    ops = []
    for d in range(8):
        ops += ldG(d, 0)
    clr = [('raw', f'buffer_store_dwordx4 v[12:15], v{GA+7}, {WS}, s40 offen offset:{1024*m} sc1') for m in range(4)]
    a(f'v_mov_b32 v{GA+7}, v8')
    first, pend, nm = set(), [], 0
    a(f'v_mov_b32 v{GA+8}, v19')
    for rho in range(8):
        nxt = rho + 1 < 8
        if rho == OPT['ycr']:
            ops.append(('ld', f's_waitcnt vmcnt(0)\ns_mov_b64 exec, 1\nds_add_rtn_u32 v{GA+4}, v{GA+3}, v{GA+4} offset:{W_YC}\ns_mov_b64 exec, -1', 'yc'))
        if rho == OPT['ycr'] + 1:
            ops.append(('mfma', f'v_readfirstlane_b32 s41, v{GA+4}\ns_cmp_eq_u32 s41, 3\ns_cselect_b32 s42, s42, 0x80000000\ns_mov_b64 exec, 1\nbuffer_store_dword v{GA+5}, v{GA+6}, {WS}, s42 offen sc1\ns_mov_b64 exec, -1', ['yc']))
        for g in range(7, -1, -1):
            for d in range(8 - g):
                i = g + d
                c = f'v[{ACC+4*i}:{ACC+4*i+3}]' if i in first else '0'
                first.add(i)
                keys = [('G', d, rho)] + ([('A', g, rho)] if rho else [])
                r = greg(d, rho)
                ops.append(('mfma', f'v_mfma_f32_16x16x32_bf16 v[{ACC+4*i}:{ACC+4*i+3}], v[{AF+4*g}:{AF+4*g+3}], v[{r}:{r+3}], {c}', keys))
                if pend:
                    ops.append(pend.pop(0))
                nm += 1
                if nm == 288 - OPT['hpos'] and OPT['hpos'] >= 0:
                    ops.append(('raw', f's_mov_b64 exec, 0xff\nbuffer_store_dword v{GA+5}, v19, {WS}, s43 offen sc1\ns_mov_b64 exec, -1'.replace('v19', f'v{GA+8}')))
                if rho == 0 and g == 4 and clr:
                    ops.append(clr.pop(0))
                slot = {(4, 3): 0, (3, 3): 1, (2, 3): 2, (2, 5): 3, (1, 3): 4, (1, 5): 5, (0, 3): 6, (0, 5): 7}.get((g, d))
                if nxt and slot is not None:
                    ops += ldG(slot, rho + 1)
                if not nxt and g <= 1 and d < 4:
                    n = (1 - g) * 4 + d
                    ops.append(('ld', f'ds_read_b64 v[{72+2*n}:{73+2*n}], v{GA+2} offset:{512*(7-n)}', ('U', n)))
            if nxt:
                pend += ldA(g, rho + 1)
    lds_schedule(a, ops)
    UU, T, OUT = 72, 40, 88
    a('s_waitcnt lgkmcnt(0)\n;STAMP C2')

    def dots(i):
        for r in range(4):
            src = UU + 2 * i + (1 if r < 2 else 0)
            sel = 's69' if r % 2 == 0 else 's68'
            a(f'v_dot2_f32_bf16 v{T+4*i+r}, v{src}, {sel}, v{ACC+4*i+r}')

    def cvts(i):
        a(f'v_cvt_pk_bf16_f32 v{OUT+2*i}, v{T+4*i}, v{T+4*i+1}')
        a(f'v_cvt_pk_bf16_f32 v{OUT+2*i+1}, v{T+4*i+2}, v{T+4*i+3}')

    def put(p):
        a(f'v_permlane16_swap_b32 v{OUT+4*p}, v{OUT+4*p+2}')
        a(f'v_permlane16_swap_b32 v{OUT+4*p+1}, v{OUT+4*p+3}')
        a(f'buffer_store_dwordx4 v[{OUT+4*p}:{OUT+4*p+3}], v{GA+1}, {WS}, s40 offen offset:{1024*p} sc1')
    dots(0)
    dots(1)
    for p in range(4):
        if p < 3:
            dots(2 * p + 2)
        cvts(2 * p)
        cvts(2 * p + 1)
        if p < 3:
            dots(2 * p + 3)
        put(p)
    a('s_endpgm')


SORT8 = [(0, 1), (2, 3), (4, 5), (6, 7), (0, 2), (1, 3), (4, 6), (5, 7), (1, 2), (5, 6), (0, 4), (3, 7), (1, 5), (2, 6), (1, 4), (3, 6), (2, 4), (3, 5), (3, 4)]
M_ODD16, M_HI32, M_B1, M_B0 = 40, 42, 72, 74


def silu(a, regs, tmp):
    for op in (f'v_mul_f32 v{{t}}, {NLOG2E}, v{{r}}', 'v_exp_f32 v{t}, v{t}', 'v_add_f32 v{t}, 1.0, v{t}', 'v_rcp_f32 v{t}, v{t}', 'v_mul_f32 v{r}, v{r}, v{t}'):
        for r, t in zip(regs, tmp):
            a(op.format(r=r, t=t))


def clean8(a, v, t):
    a(f'''
    v_max_u32_dpp v{t}, v{v}, v{v} row_shl:4 row_mask:0xf bank_mask:0x5
    v_min_u32_dpp v{t}, v{v}, v{v} row_shr:4 row_mask:0xf bank_mask:0xa
    v_max_u32_dpp v{v}, v{t}, v{t} quad_perm:[2,3,0,1] {DPP}
    v_min_u32_dpp v{t}, v{t}, v{t} quad_perm:[2,3,0,1] {DPP}
    v_cndmask_b32 v{v}, v{v}, v{t}, s[{M_B1}:{M_B1+1}]
    v_max_u32_dpp v{t}, v{v}, v{v} quad_perm:[1,0,3,2] {DPP}
    v_min_u32_dpp v{v}, v{v}, v{v} quad_perm:[1,0,3,2] {DPP}
    v_cndmask_b32 v{v}, v{t}, v{v}, s[{M_B0}:{M_B0+1}]
    ''')


def merge_rows(a, v, t):
    for swap, mask in (('v_permlane16_swap_b32', M_ODD16), ('v_permlane32_swap_b32', M_HI32)):
        a(f'''
        v_mov_b32_dpp v{t}, v{v} row_half_mirror {DPP}
        v_mov_b32_dpp v{t+1}, v{v} row_half_mirror {DPP}
        {swap} v{t}, v{t+1}
        v_cndmask_b32 v{t}, v{t+1}, v{t}, s[{mask}:{mask+1}]
        v_max_u32 v{v}, v{v}, v{t}
        ''')
        clean8(a, v, t)


def ffn_role(a):
    a(f'''
    s_sub_u32 s65, s{S_J}, 20
    s_mul_i32 s64, s{S_X}, 12
    s_add_u32 s64, s64, s65
    v_lshrrev_b32 v8, 1, v1
    v_mul_u32_u24 v8, 3072, v8
    v_and_b32 v9, 1, v1
    v_lshl_add_u32 v8, v9, 4, v8
    s_mul_i32 s40, s3, {160*3072}
    s_lshl_b32 s41, s64, 5
    s_add_u32 s67, s40, s41
    s_mul_i32 s68, s3, 5120
    s_mul_i32 s59, s64, {16*1280}
    s_mul_i32 s41, s3, 320
    s_add_u32 s59, s59, s41
    v_and_b32 v2, 15, v1
    v_lshrrev_b32 v3, 4, v1
    v_lshlrev_b32 v10, 4, v2
    v_lshl_add_u32 v10, v3, 7, v10
    s_mul_i32 s66, s64, {PF}
    s_mul_i32 s41, s3, 5120
    s_add_u32 s66, s66, s41
    s_add_u32 s66, s66, {WS_P}
    s_lshl_b32 s18, s3, 13
    s_add_u32 s18, s18, {WS_RI}
    s_add_u32 s19, s18, 4096
    v_lshrrev_b32 v4, 2, v1
    v_and_b32 v5, 3, v1
    v_lshlrev_b32 v5, 4, v5
    v_lshl_add_u32 v4, v4, 7, v5
    s_mov_b32 s41, 0xcccd
    ''')
    a.srd(28, 46, 640 * 3072)
    a.srd(32, 48, 640 * 3072)
    a.srd(36, 50, 1536 * 1280)
    DA = 104
    for c in range(5):
        a(f'''
        v_add_u32 v{DA+c}, {64*c}, v1
        v_mul_u32_u24 v9, s41, v{DA+c}
        v_lshrrev_b32 v9, 20, v9
        v_mul_u32_u24 v9, {1280-320}, v9
        v_lshl_add_u32 v{DA+c}, v{DA+c}, 4, v9
        ''')
    a(f'''
    s_mov_b32 s{M_ODD16}, 0xffff0000
    s_mov_b32 s{M_ODD16+1}, 0xffff0000
    s_mov_b32 s{M_HI32}, 0
    s_mov_b32 s{M_HI32+1}, -1
    s_mov_b32 s{M_B1}, 0xcccccccc
    s_mov_b32 s{M_B1+1}, 0xcccccccc
    s_mov_b32 s{M_B0}, 0xaaaaaaaa
    s_mov_b32 s{M_B0+1}, 0xaaaaaaaa
    s_mov_b32 s76, 0x00010001
    s_mov_b32 s77, 0x00010001
    v_mov_b32 v34, 0
    v_mov_b32 v12, 1
    ''')
    D = []
    for c in range(5):
        D.append(f's_add_u32 m0, s68, {L_G + 1024*c}\ns_add_u32 s69, s67, {c*32*3072}\nbuffer_load_dwordx4 v8, s[28:31], s69 offen lds')
        D.append(f's_add_u32 m0, s68, {L_U + 1024*c}\ns_nop 0\nbuffer_load_dwordx4 v8, s[32:35], s69 offen lds')
    DN = [f's_add_u32 m0, s68, {L_D + 1024*c}\ns_nop 0\nbuffer_load_dwordx4 v{DA+c}, s[36:39], s59 offen lds' for c in range(5)]
    if OPT['ddn']:
        D, DN = D + DN, []
    a.lds_wait(11, 9, W_TFL if OPT['fgate'] else W_TST, 5)
    for _ in range(OPT['dmas']):
        a(D.pop(0))
    KG = 16
    l = a.spin_begin('FK')
    for i in range(4):
        a(f'buffer_load_dwordx4 v[{KG+4*i}:{KG+4*i+3}], v4, {WS}, s{18+i//2} offen offset:{2048*(i%2)} sc1')
    a('s_waitcnt vmcnt(0)')
    a.tagcheck(32, [KG + 2 * i + 1 for i in range(8)])
    a.spin_end_exec(l)
    a(';STAMP F0')
    key = [KG + 2 * i for i in range(8)]
    spare = KG + 1
    for n, (i, j) in enumerate(SORT8):
        a(f'v_max_u32 v{spare}, v{key[i]}, v{key[j]}\nv_min_u32 v{key[j]}, v{key[i]}, v{key[j]}')
        key[i], spare = spare, key[i]
        if n % 2 == 1 and len(D) > 8:
            a(D.pop(0))
    for rd in range(8):
        a(f'v_max_u32_dpp v33, v{key[0]}, v{key[0]} row_ror:8 {DPP}')
        if D:
            a(D.pop(0))
        for sh in (4, 2, 1):
            a(f'v_max_u32_dpp v33, v33, v33 row_ror:{sh} {DPP}')
        if rd < 7:
            a(f'v_cmp_eq_u32 vcc, v33, v{key[0]}')
        a('v_cndmask_b32 v34, v34, v33, s[76:77]\ns_lshl_b64 s[76:77], s[76:77], 1')
        for i in range(7 - rd):
            a(f'v_cndmask_b32 v{key[i]}, v{key[i]}, v{key[i+1]}, vcc')
    assert not D
    merge_rows(a, 34, 32)
    a(f'''
    s_lshl_b32 s76, s3, 5
    s_add_u32 s76, s76, {L_CAND}
    v_lshl_add_u32 v35, v1, 2, s76
    v_and_b32 v36, 7, v1
    v_lshlrev_b32 v36, 2, v36
    v_lshl_add_u32 v36, v3, 5, v36
    s_mov_b64 exec, 0xff
    ds_write_b32 v35, v34
    s_mov_b64 exec, 1
    ds_add_u32 v11, v12 offset:{W_S0}
    s_mov_b64 exec, -1
    ;STAMP Fex
    ''')
    a.lds_wait(11, 35, W_S0, 4)
    a(f'''
    ds_read_b32 v34, v36 offset:{L_CAND}
    s_mul_i32 s76, s3, 320
    v_lshl_add_u32 v36, v3, 4, s76
    v_bfe_u32 v37, v1, 3, 1
    v_lshl_add_u32 v36, v37, 6, v36
    s_mov_b32 s77, {WS_RI+64}
    s_waitcnt lgkmcnt(0)
    ''')
    merge_rows(a, 34, 32)
    XP = 40
    a(f'''
    ;STAMP F1
    v_and_b32 v35, 0x7ff, v34
    v_sub_u32 v35, 2047, v35
    v_mul_u32_u24 v37, 1280, v35
    v_add_u32 v36, v36, v37
    buffer_load_dwordx4 v[{XP}:{XP+3}], v36, s[20:23], 0 offen
    buffer_load_dwordx4 v[{XP+4}:{XP+7}], v36, s[20:23], 0 offen offset:128
    buffer_load_dwordx4 v[{XP+8}:{XP+11}], v36, s[20:23], 0 offen offset:256
    v_and_b32 v37, 0x7f8, v35
    v_add_u32 v37, v37, v35
    v_lshlrev_b32 v37, 3, v37
    buffer_load_dwordx2 v[38:39], v37, {WS}, s77 offen sc1
    ''')
    a(f'''
    v_lshlrev_b32 v15, 2, v1
    v_mov_b32_dpp v52, v34 quad_perm:[0,2,0,2] {DPP}
    v_mov_b32_dpp v54, v34 quad_perm:[1,3,1,3] {DPP}
    v_mov_b32 v53, s{S_EP}
    v_mov_b32 v55, s{S_EP}
    s_mov_b64 exec, 0xff
    ds_write_b32 v15, v34 offset:{L_SLOT}
    ds_write_b32 v11, v12 offset:{W_DMA}
    v_lshrrev_b32 v15, 2, v1
    v_lshlrev_b32 v15, 5, v15
    v_and_b32 v32, 1, v1
    v_lshl_add_u32 v15, v32, 4, v15
    s_lshl_b32 s76, s{S_X}, 7
    s_add_u32 s76, s76, {WS_IDX}
    s_or_b32 s40, s65, s3
    s_cmp_eq_u32 s40, 0
    s_cselect_b32 s76, s76, 0x80000000
    s_mov_b64 exec, 0x33
    buffer_store_dwordx4 v[52:55], v15, {WS}, s76 offen sc1
    s_or_b32 s40, s64, s3
    s_cmp_eq_u32 s40, 0
    s_cselect_b32 s76, {WS_E}, 0x80000000
    s_mov_b64 exec, 1
    buffer_store_dword v53, v15, {WS}, s76 offen sc1
    s_mov_b64 exec, -1
    ''')
    for o in DN:
        a(o)
    WA = 72
    a(f'''
    v_lshrrev_b32 v4, 2, v2
    v_and_b32 v5, 3, v2
    v_lshlrev_b32 v6, 5, v4
    v_lshl_add_u32 v6, v5, 3, v6
    v_lshl_add_u32 v6, v3, 8, v6
    v_add_u32 v6, s68, v6
    v_lshl_add_u32 v13, v3, 2, v4
    v_mul_u32_u24 v13, 320, v13
    v_lshl_add_u32 v13, v5, 3, v13
    v_add_u32 v13, s68, v13
    v_lshlrev_b32 v14, 4, v1
    v_add_u32 v7, s68, v14
    s_waitcnt vmcnt({len(DN)+2})
    ''')
    e = a.lab('FS0')
    a.tagcheck(32, [39])
    a(f's_cbranch_vccz {e}')
    l = a.spin_begin('FS')
    a(f'buffer_load_dwordx2 v[38:39], v37, {WS}, s77 offen sc1\ns_waitcnt vmcnt(0)')
    a.tagcheck(32, [39])
    a.spin_end_vcc(l)
    a.label(e)
    a(';STAMP Fx')
    frag = []
    for c in (0, 2, 4, 1, 3):
        for mt, base in enumerate((L_G, L_U)):
            r = WA + 8 * c + 4 * mt
            frag.append(f'ds_read_b64_tr_b16 v[{r}:{r+1}], v6 offset:{base+1024*c}')
            frag.append(f'ds_read_b64_tr_b16 v[{r+2}:{r+3}], v6 offset:{base+1024*c+128}')
    XF = 112
    a('v_and_b32 v39, 0xffff0000, v38\nv_lshlrev_b32 v38, 16, v38\nv_rcp_f32 v60, v39')
    for i in range(12):
        unpack(a, XF + 2 * i, XP + i)
        a(frag.pop(0))
    for i in range(12):
        a(f'v_pk_add_f32 {pr(XF+2*i)}, {pr(XF+2*i)}, {pr(38)} {BC} {NEG}')
        if frag:
            a(frag.pop(0))
    for i in range(12):
        a(f'v_cvt_pk_bf16_f32 v{XP+i}, v{XF+2*i}, v{XF+2*i+1}')
    for i in range(12):
        unpack(a, XF + 2 * i, XP + i)
    for i in range(12):
        a(f'v_pk_mul_f32 {pr(XF+2*i)}, {pr(XF+2*i)}, {pr(60)} {BC}')
    for i in range(12):
        a(f'v_cvt_pk_bf16_f32 v{XP+i}, v{XF+2*i}, v{XF+2*i+1}')
    a(';STAMP Fxn\nv_mov_b32 v39, v60')
    XO = 52
    for i in range(8):
        a(f'v_mov_b32_dpp v{XO+i}, v{XP+i} row_ror:8 {DPP}')
    a('s_waitcnt lgkmcnt(0)')
    for c in (0, 2, 4, 1, 3):
        xr = XP + 4 * (c // 2) if c % 2 == 0 else XO + 4 * (c // 2)
        for mt in range(2):
            acc = 60 + 4 * mt
            r = WA + 8 * c + 4 * mt
            cc = '0' if c == 0 else f'v[{acc}:{acc+3}]'
            a(f'v_mfma_f32_16x16x32_bf16 v[{acc}:{acc+3}], v[{r}:{r+3}], v[{xr}:{xr+3}], {cc}')
    WDN, R, O = 112, 72, 72
    a(f'''
    s_mov_b32 s40, 0x07060503
    s_mov_b32 s41, 0x07060502
    s_mov_b32 s43, 0x07060501
    ds_write_b128 v7, v[60:63] offset:{L_G}
    ds_write_b128 v7, v[64:67] offset:{L_G+1024}
    s_mov_b64 exec, 1
    ds_add_u32 v11, v12 offset:{W_S1}
    s_mov_b64 exec, -1
    ;STAMP Fm1
    s_waitcnt vmcnt(0)
    ;STAMP Fdma
    ''')
    for nt in range(10):
        a(f'ds_read_b64_tr_b16 v[{WDN+2*nt}:{WDN+2*nt+1}], v13 offset:{L_D+32*nt}')
    a.lds_wait(11, 32, W_S1, 4)
    a(';STAMP Fs1')
    for w in range(4):
        for mt in range(2):
            a(f'ds_read_b128 v[{R+8*w+4*mt}:{R+8*w+4*mt+3}], v14 offset:{L_G+5120*w+1024*mt}')
    a('s_waitcnt lgkmcnt(0)')
    for i in range(4):
        a(f'v_pk_add_f32 {pr(R+2*i)}, {pr(R+2*i)}, {pr(R+8+2*i)}')
        a(f'v_pk_add_f32 {pr(R+16+2*i)}, {pr(R+16+2*i)}, {pr(R+24+2*i)}')
    for i in range(4):
        a(f'v_pk_add_f32 {pr(R+2*i)}, {pr(R+2*i)}, {pr(R+16+2*i)}')
    for i in range(4):
        a(f'v_cvt_pk_bf16_f32 v{R+8+i}, v{R+2*i}, v{R+2*i+1}')
    for i in range(4):
        unpack(a, R + 2 * i, R + 8 + i)
    silu(a, range(R, R + 4), range(R + 8, R + 12))
    for i in range(2):
        a(f'v_cvt_pk_bf16_f32 v{R+8+i}, v{R+2*i}, v{R+2*i+1}')
    for i in range(2):
        unpack(a, R + 2 * i, R + 8 + i)
    for i in range(2):
        a(f'v_pk_mul_f32 {pr(R+2*i)}, {pr(R+2*i)}, {pr(R+4+2*i)}')
    for i in range(2):
        a(f'v_cvt_pk_bf16_f32 v{60+i}, v{R+2*i}, v{R+2*i+1}')
    a(';STAMP Fgu')
    for nt in range(10):
        a(f'v_mfma_f32_16x16x16_bf16 v[{O+4*nt}:{O+4*nt+3}], v[{WDN+2*nt}:{WDN+2*nt+1}], v[60:61], 0')
    a('s_mov_b32 exec_lo, 0x00ff00ff\ns_mov_b32 exec_hi, 0x00ff00ff')
    for nt in range(10):
        for d, sr in enumerate((40, 41, 43)):
            a(f'v_perm_b32 v{O+4*nt+d}, v{O+4*nt+d}, v{O+4*nt+3}, s{sr}')
        a(f'v_mov_b32 v{O+4*nt+3}, s{S_EP}')
        if nt == 8:
            a('s_add_u32 s66, s66, 4096')
        a(f'buffer_store_dwordx4 v[{O+4*nt}:{O+4*nt+3}], v10, {WS}, s66 offen offset:{512*(nt%8)} sc1')
    a(f'''
    s_mov_b64 exec, -1
    ;STAMP F2
    s_cmp_ge_u32 s64, 80
    s_cbranch_scc1 K_END
    s_cmp_ge_u32 s3, 2
    s_cbranch_scc1 K_END
    ''')
    PR = 40
    a(f'''
    s_lshl_b32 s42, s64, 1
    s_add_u32 s42, s42, s3
    s_lshl_b32 s50, s42, 7
    v_mov_b32 v6, {WS_F2}
    buffer_load_dword v16, v6, {WS}, s50 offen sc1
    v_lshrrev_b32 v4, 3, v1
    v_and_b32 v15, 7, v1
    v_mul_u32_u24 v5, {PF}, v4
    v_lshl_add_u32 v5, v15, 4, v5
    s_add_u32 s40, s50, {WS_P}
    v_add_u32 v5, s40, v5
    v_and_b32 v4, 3, v4
    s_lshl_b32 s42, s42, 2
    v_add_u32 v8, s42, v4
    v_mul_u32_u24 v9, 1280, v35
    v_lshl_add_u32 v9, v8, 1, v9
    buffer_load_ushort v12, v9, s[20:23], 0 offen
    v_lshlrev_b32 v13, 1, v35
    v_and_b32 v13, 0xfffffffc, v13
    v_mul_u32_u24 v8, {RS}, v8
    v_add3_u32 v8, v8, v13, s47
    v_cmp_eq_u32 s[72:73], 1, v4
    v_cmp_eq_u32 s[74:75], 2, v4
    v_cmp_eq_u32 s[76:77], 3, v4
    v_ashrrev_i32 v20, 31, v34
    v_not_b32 v20, v20
    v_or_b32 v20, 0x80000000, v20
    v_xor_b32 v20, v20, v34
    v_and_b32 v20, 0xffff0000, v20
    v_mul_f32 v20, {NLOG2E}, v20
    v_exp_f32 v20, v20
    v_and_b32 v23, 1, v35
    v_xor_b32 v23, 1, v23
    v_lshlrev_b32 v23, 4, v23
    v_add_f32 v20, 1.0, v20
    v_rcp_f32 v20, v20
    s_or_b64 s[74:75], s[74:75], s[76:77]
    '''.replace('v_add3_u32 v8, v8, v13, s47', f's_mov_b32 s47, {WS_Y2}\nv_add3_u32 v8, v8, v13, s47'))
    a.srd(24, 52, NB)
    for i in range(12):
        a(f's_mov_b32 s{28+i}, {i*8*PF}')
    rnd(a, 20, 20)
    e = a.lab('RG0')
    a('s_waitcnt vmcnt(0)\nv_lshlrev_b32 v21, 16, v12\nv_sub_f32 v22, v21, v38')
    rnd(a, 22, 22)
    a('v_mul_f32 v22, v39, v22')
    rnd(a, 22, 22)
    a.tagcheck(18, [16])
    a(f's_cbranch_vccz {e}')
    l = a.spin_begin('RG')
    a(f'buffer_load_dword v16, v6, {WS}, s50 offen sc1\ns_waitcnt vmcnt(0)')
    a.tagcheck(18, [16])
    a.spin_end_vcc(l, 2)
    a.label(e)
    a(';STAMP Rg\ns_mov_b32 s40, 0x04000c0c\ns_mov_b32 s41, 0x0706000c')
    if OPT['rpsl']:
        a(f's_sleep {OPT["rpsl"]}')
    l = a.spin_begin('RP')
    for i in range(12):
        a(f'buffer_load_dwordx4 v[{PR+4*i}:{PR+4*i+3}], v5, {WS}, s{28+i} offen sc1')
    a('s_waitcnt vmcnt(0)')
    a.tagcheck(18, [PR + 4 * i + 3 for i in range(12)])
    a.spin_end_exec(l)
    a(f';STAMP F3\ns_mov_b32 exec_hi, 0\nbuffer_load_dword v13, v8, {WS}, 0 offen sc1\ns_mov_b32 exec_hi, -1')
    for i in range(12):
        a(f'v_perm_b32 v{PR+4*i+3}, v{PR+4*i}, v{PR+4*i+1}, s40')
    for i in range(12):
        a(f'v_perm_b32 v{PR+4*i+3}, v{PR+4*i+3}, v{PR+4*i+2}, s41')
    for n in (24, 12):
        for i in range(0, n, 2):
            a(f'v_pk_add_f32 {pr(PR+i)}, {pr(PR+i)}, {pr(PR+n+i)}')
    for st in (4, 8):
        for i in (0, 2):
            a(f'v_pk_add_f32 {pr(PR+i)}, {pr(PR+i)}, {pr(PR+st+i)}')
    for i in range(4):
        a(f'v_add_f32_dpp v{PR+i}, v{PR+i}, v{PR+i} row_ror:8 {DPP}')
    for i in range(4):
        a(f'v_mov_b32 v{PR+4+i}, v{PR+i}')
    for i in range(4):
        a(f'v_permlane16_swap_b32 v{PR+i}, v{PR+4+i}')
    for i in (0, 2):
        a(f'v_pk_add_f32 {pr(PR+i)}, {pr(PR+i)}, {pr(PR+4+i)}')
    a(f'''
    v_cndmask_b32 v{PR}, v{PR}, v{PR+1}, s[72:73]
    v_cndmask_b32 v{PR+2}, v{PR+2}, v{PR+3}, s[76:77]
    v_cndmask_b32 v{PR}, v{PR}, v{PR+2}, s[74:75]
    v_mov_b32 v{PR+1}, v{PR}
    v_permlane32_swap_b32 v{PR}, v{PR+1}
    v_add_f32 v{PR}, v{PR}, v{PR+1}
    ''')
    rnd(a, PR, PR)
    a(f'v_mul_f32 v{PR}, v{PR}, v20')
    rnd(a, PR, PR)
    a(f'v_add_f32 v{PR}, v{PR}, v22')
    rnd(a, PR, PR)
    silu(a, [PR], [PR + 1])
    e = a.lab('RY0')
    a(';STAMP Rs')
    a(f'v_mul_f32 v22, v22, v{PR}\ns_mov_b32 exec_hi, 0\ns_waitcnt vmcnt(0)\nv_cmp_eq_u32 vcc, -1, v13\ns_cbranch_vccz {e}')
    l = a.spin_begin('RY')
    a(f'buffer_load_dword v13, v8, {WS}, 0 offen sc1\ns_waitcnt vmcnt(0)\nv_cmp_eq_u32 vcc, -1, v13')
    a.spin_end_vcc(l, 2)
    a.label(e)
    a(f'''
    ;STAMP Ry
    v_lshlrev_b32 v13, v23, v13
    v_and_b32 v13, 0xffff0000, v13
    v_fma_f32 v22, v22, v13, v21
    v_cvt_pk_bf16_f32 v22, v22, v22
    buffer_store_short v22, v9, s[24:27], 0 offen
    s_endpgm
    ''')


def kernel():
    a = K()
    a.label('K_FIRST')
    a(f'''
    s_cmp_ge_u32 s2, 256
    s_cbranch_scc1 K_END
    s_load_dwordx8 s[4:11], s[0:1], 0
    s_load_dwordx4 s[12:15], s[0:1], 32
    s_load_dwordx8 s[44:51], s[0:1], 56
    s_load_dwordx2 s[52:53], s[0:1], 88
    s_load_dwordx2 s[54:55], s[0:1], 104
    v_lshrrev_b32 v1, 6, v0
    s_and_b32 s{S_X}, s2, 7
    v_readfirstlane_b32 s3, v1
    s_lshr_b32 s{S_J}, s2, 3
    s_cmp_lg_u32 s3, 0
    s_cbranch_scc1 K_NOPF
    s_getpc_b64 s[20:21]
    K_PC:
    s_sub_u32 s20, s20, K_PC-K_FIRST
    s_subb_u32 s21, s21, 0
    s_mov_b32 s22, K_END-K_FIRST
    s_mov_b32 s23, 0x20000
    s_lshl_b32 s24, s{S_J}, 10
    v_lshlrev_b32 v1, 7, v0
    s_mov_b64 exec, 0xff
    buffer_load_dword v{PFV}, v1, s[20:23], s24 offen
    s_mov_b64 exec, -1
    K_NOPF:
    s_and_b32 s{S_G}, s{S_J}, 3
    s_and_b32 s{S_TT}, s{S_J}, 24
    s_add_u32 s{S_TT}, s{S_TT}, s{S_X}
    s_lshl_b32 s{S_TT}, s{S_TT}, 1
    s_bfe_u32 s18, s{S_J}, 0x10002
    s_add_u32 s{S_TT}, s{S_TT}, s18
    s_cmp_lt_u32 s3, 4
    s_cbranch_scc1 K_L
    ''')
    tile_role(a)
    a.label('K_L')
    ln_role(a)
    a(f's_cmp_ge_u32 s{S_J}, 20\ns_cbranch_scc1 K_FFN')
    conv_role(a)
    a.label('K_FFN')
    ffn_role(a)
    a.label('K_END')
    a('s_endpgm')
    return a


def single_module(body):
    s = HDR + f'; @launch grid=(256,1,1) block=(576,1,1) lds={LDS_BYTES}\n'
    s += f'.amdgcn_target "amdgcn-amd-amdhsa--gfx950"\n.text\n.globl {KNAME}\n.p2align 8\n.type {KNAME},@function\n{KNAME}:\n{body}'
    nv, ns, na = max_regs(body)
    s += '.section .rodata,"a"\n' + KD.format(name=KNAME, vgpr=nv, sgpr=ns, acc=(nv + 3) // 4 * 4)
    return s


if __name__ == '__main__':
    out = sys.argv[1]
    rep = []
    for o in sys.argv[2:]:
        if '=' in o:
            k_, v_ = o.split('=')
            OPT[k_] = int(v_) if v_.lstrip('-').isdigit() else v_.replace('+', ' ')
    k = kernel()
    if 'diag' in sys.argv[2:]:
        import diag
        diag.CYC = 'cyc' in sys.argv
        sel = [o for o in sys.argv[2:] if o.startswith('@')]
        diag.instrument(k, 0, {n: i for g in sel for i, n in enumerate(g[1:].split(','))})
    k.lines = [l for l in k.lines if not l.startswith(';STAMP')]
    body = k.text(rep)
    assert not re.search(r'op_sel:\[[01,]*1', body), 'crossed low-half op_sel is unsafe beside MFMA'
    open(out, 'w').write(single_module(body))
    print('wrote', out, 'regs', max_regs(body), 'nops', len(rep), sum(n for n, _ in rep), 'lines', body.count('\n'))
```

```python
import sys, re
from asmlib import *

KNAME = 'recurrent_scan__ssm_conv_h3__moe_arch_mod__prompt_kernel'
HDR = open('recurrent_scan__ssm_conv_h3__moe_arch_mod__prompt.s.ref').read().split('; Override launch')[0]

NB = 2048 * 1280
RS = 4224
WS_E = 0
WS_IDX = 4096
WS_RI = 64 << 10
WS_F2 = 128 << 10
WS_HN = 256 << 10
WS_F1 = 512 << 10
WS_UR = 1 << 20
WS_Y2 = 4 << 20
WS_P = 8 << 20
WS_SIZE = 16 << 20
PTOK = 2560
PF = 8 * PTOK
NLOG2E = 0xbfb8aa3b
INV640 = 0x3acccccd
EPS = 0x3727c5ac
SPIN = 100000

H0_OFF, H1_OFF, U_OFF, CW_LDS = 0, 4160, 8288, 12864
L_G, L_U, L_D, L_MISC = 0, 20480, 40960, 61440
L_CNT, L_CAND, L_SLOT, L_RI, L_TP = L_MISC, L_MISC + 64, L_MISC + 192, L_MISC + 320, L_MISC + 512
LDS_BYTES = L_TP + 5 * 2304
W_S0, W_S1, W_EPN, W_EP, W_RI, W_TST, W_TFL, W_CF, W_FK, W_YC, W_DMA = 0, 4, 12, 16, 20, 24, 32, 36, 40, 44, 48
W_GU, W_DN, W_PS, W_MODE = 52, 56, 60, 28
BLOCK = 704

OPT = dict(sleep=1, rpsl=8, prio=1, out='', pfat=3, pfw=0, hgate=1, qgate=2, fgate=1, dmas=20, xpf=0, qe=0, hpos=-1, ycr=2, tprio=0, local=1, pft=1, dnpf=1, fq=1, opp=0)

S_X, S_J, S_EP, S_CNT, ONES = 16, 17, 56, 57, 58
S_G, S_TT, S_RI = 74, 75, 76
C_NL2E, C_ONE = 70, 72
WS = 's[60:63]'
PFV = 71


class K(Asm):
    def __init__(self):
        super().__init__()
        self.n = 0

    def lab(self, p):
        self.n += 1
        return f'{p}_{self.n}'

    def spin_begin(self, p):
        l = self.lab(p)
        self(f's_mov_b32 s{S_CNT}, 0')
        self.label(l)
        return l

    def _tail(self, l, slp):
        self(f'''
        {f's_sleep {slp}' if slp else ''}
        s_add_u32 s{S_CNT}, s{S_CNT}, 1
        s_cmp_lt_u32 s{S_CNT}, {SPIN}
        s_cbranch_scc1 {l}
        ''')
        self.label(l + '_x')

    def spin_end_vcc(self, l, slp=None):
        self(f's_cbranch_vccz {l}_x')
        self._tail(l, OPT['sleep'] if slp is None else slp)

    def spin_end_exec(self, l, restore='-1', slp=None):
        self(f's_and_b64 exec, exec, vcc\ns_cbranch_execz {l}_x')
        self._tail(l, OPT['sleep'] if slp is None else slp)
        self(f's_mov_b64 exec, {restore}')

    def lds_wait(self, vaddr, vtmp, word, count, slp=0):
        l = self.spin_begin('LW')
        self(f'ds_read_b32 v{vtmp}, v{vaddr} offset:{word}\ns_waitcnt lgkmcnt(0)\nv_cmp_gt_u32 vcc, {count}, v{vtmp}')
        self.spin_end_vcc(l, slp)

    def lds_add(self, vaddr, vone, word):
        self(f's_mov_b64 exec, 1\nds_add_u32 v{vaddr}, v{vone} offset:{word}\ns_mov_b64 exec, -1')

    def maxtree(self, d, regs):
        regs = list(regs)
        self(f'v_max3_u32 v{d}, v{regs[0]}, v{regs[1]}, v{regs[2]}')
        regs = regs[3:]
        while len(regs) >= 2:
            self(f'v_max3_u32 v{d}, v{d}, v{regs[0]}, v{regs[1]}')
            regs = regs[2:]
        if regs:
            self(f'v_max_u32 v{d}, v{d}, v{regs[0]}')

    def tagcheck(self, d, regs):
        regs = list(regs)
        if len(regs) == 1:
            self(f'v_cmp_ne_u32 vcc, s{S_EP}, v{regs[0]}')
            return
        self.maxtree(d, regs)
        r = regs
        self(f'v_min3_u32 v{d+1}, v{r[0]}, v{r[1]}, v{r[2]}')
        r = r[3:]
        while len(r) >= 2:
            self(f'v_min3_u32 v{d+1}, v{d+1}, v{r[0]}, v{r[1]}')
            r = r[2:]
        if r:
            self(f'v_min_u32 v{d+1}, v{d+1}, v{r[0]}')
        self(f'v_xor_b32 v{d}, s{S_EP}, v{d}\nv_xor_b32 v{d+1}, s{S_EP}, v{d+1}\nv_or_b32 v{d}, v{d}, v{d+1}\nv_cmp_ne_u32 vcc, 0, v{d}')


def rnd(a, d, s):
    a(f'v_cvt_pk_bf16_f32 v{d}, v{s}, v{s}\nv_and_b32 v{d}, 0xffff0000, v{d}')


def unpack(a, d, s):
    a(f'v_lshlrev_b32 v{d}, 16, v{s}\nv_and_b32 v{d+1}, 0xffff0000, v{s}')


def pr(r):
    return f'v[{r}:{r+1}]'


DPP = 'row_mask:0xf bank_mask:0xf'
BC = 'op_sel_hi:[1,0]'
NEG = 'neg_lo:[0,1] neg_hi:[0,1]'


def rows8(a, op, reg0, vaddr, srd, mods=''):
    for i in range(8):
        so = '0' if i < 4 else 's18'
        a(f'{op} v{reg0+i}, v{vaddr}, {srd}, {so} offen offset:{1280*(i%4)} {mods}')


def weight_prefetch(a, vb, sb):
    a(f'''
    s_mul_i32 s40, s{S_J}, 60
    v_min_u32 v{vb}, 59, v0
    v_add_u32 v{vb}, s40, v{vb}
    s_mov_b32 s40, 0x5556
    v_mul_u32_u24 v{vb+1}, s40, v{vb}
    v_lshrrev_b32 v{vb+1}, 16, v{vb+1}
    s_cmp_eq_u32 s3, 0
    s_cselect_b32 s{sb}, s46, s48
    s_cselect_b32 s{sb+1}, s47, s49
    s_cmp_eq_u32 s3, 2
    s_cselect_b32 s{sb}, s50, s{sb}
    s_cselect_b32 s{sb+1}, s51, s{sb+1}
    s_cselect_b32 s40, 0, {3072-384}
    s_cselect_b32 s41, 640, 1
    s_mul_i32 s41, s41, s{S_X}
    s_mul_i32 s41, s41, 384
    s_cmp_ge_u32 s3, 3
    s_cselect_b32 s{sb+2}, 0, {640*3072}
    s_mov_b32 s{sb+3}, 0x20000
    v_mul_u32_u24 v{vb+1}, s40, v{vb+1}
    v_lshl_add_u32 v{vb}, v{vb}, 7, v{vb+1}
    buffer_load_dword v{vb+2}, v{vb}, s[{sb}:{sb+3}], s41 offen
    ''')


def tile_role(a):
    KK, VV, W, WF, KF, S, P = 8, 20, 28, 32, 40, 64, 80
    a(f'''
    s_sub_u32 s3, s3, 4
    s_mul_i32 s18, s{S_G}, 160
    s_lshl_b32 s19, s3, 5
    s_add_u32 s64, s18, s19
    s_lshl_b32 s19, s{S_TT}, 5
    v_and_b32 v0, 63, v0
    v_and_b32 v1, 15, v0
    v_lshrrev_b32 v2, 4, v0
    v_lshl_add_u32 v1, v1, 1, s64
    v_lshl_add_u32 v2, v2, 3, s19
    v_mul_u32_u24 v3, 1280, v2
    v_lshl_add_u32 v3, v1, 1, v3
    v_subrev_u32 v4, 3840, v3
    v_cmp_eq_u32 vcc, 0, v2
    v_mov_b32 v5, 0x80000000
    v_cndmask_b32 v4, v4, v5, vcc
    v_lshlrev_b32 v5, 3, v1
    s_mov_b32 s18, 5120
    s_mov_b32 s22, {NB}
    s_mov_b32 s23, 0x20000
    s_mov_b32 s26, {NB}
    s_mov_b32 s27, 0x20000
    s_mov_b32 s30, {640*8}
    s_mov_b32 s31, 0x20000
    s_waitcnt lgkmcnt(0)
    ;STAMP Targ
    s_mov_b64 s[20:21], s[6:7]
    ''')
    rows8(a, 'buffer_load_dword', KK + 3, 3, 's[20:23]')
    for i in range(3):
        a(f'buffer_load_dword v{KK+i}, v4, s[20:23], 0 offen offset:{1280*i}')
    a(f's_mov_b64 s[28:29], s[10:11]\ns_mov_b64 s[24:25], s[8:9]\nbuffer_load_dwordx4 v[{W}:{W+3}], v5, s[28:31], 0 offen')
    rows8(a, 'buffer_load_dword', VV, 3, 's[24:27]')
    a(';STAMP Tiss\ns_barrier')
    a.srd(32, 4, NB)
    QE = 98
    E = 8 * OPT['qe'] + (1 if OPT['pfat'] == 2 else 0)
    if OPT['qe']:
        rows8(a, 'buffer_load_dword', QE, 3, 's[32:35]')
    if OPT['pfat'] == 2:
        weight_prefetch(a, 95, 76)
    a.srd(36, 52, NB)
    a.srd(60, 54, WS_SIZE)
    a(f'''
    s_mul_i32 s67, s64, {RS}
    s_lshl_b32 s40, s{S_TT}, 6
    s_sub_u32 s65, s67, s40
    s_add_u32 s65, s65, {WS_UR + 63*64}
    s_add_u32 s66, s65, {16*RS}
    v_lshrrev_b32 v6, 2, v0
    v_and_b32 v90, 3, v0
    v_mul_u32_u24 v6, {RS}, v6
    v_lshl_add_u32 v6, v90, 4, v6
    s_mul_i32 s40, s3, 2304
    s_add_u32 s40, s40, {L_TP}
    v_lshrrev_b32 v91, 3, v0
    v_add_u32 v91, v91, v0
    v_lshl_add_u32 v91, v91, 4, s40
    v_and_b32 v90, 15, v0
    v_mul_u32_u24 v90, 144, v90
    v_lshrrev_b32 v93, 4, v0
    v_sub_u32 v93, 3, v93
    v_lshl_add_u32 v90, v93, 4, v90
    v_add_u32 v90, s40, v90
    v_mov_b32 v92, {L_CNT}
    v_mov_b32 v93, 1
    s_lshl_b32 s40, s64, 1
    s_add_u32 s40, s40, s{S_TT}
    s_lshl_b32 s40, s40, 7
    s_add_u32 s40, s40, {WS_F1}
    v_mov_b32 v89, s40
    s_mov_b32 s{C_NL2E}, {NLOG2E}
    s_mov_b32 s{C_NL2E+1}, {NLOG2E}
    s_mov_b32 s{C_ONE}, 1.0
    s_mov_b32 s{C_ONE+1}, 1.0
    s_waitcnt vmcnt({8+E})
    ;STAMP Tk
    ''')
    for j in range(4):
        for hf in range(2):
            src = W + 2 * hf + j // 2
            a(f'v_lshlrev_b32 v{WF+2*j+hf}, 16, v{src}' if j % 2 == 0 else f'v_and_b32 v{WF+2*j+hf}, 0xffff0000, v{src}')
    for i in range(11):
        unpack(a, KF + 2 * i, KK + i)
    for t in range(8):
        a(f'v_pk_mul_f32 {pr(S+2*t)}, {pr(KF+2*t)}, {pr(WF+6)}')
    for j in (2, 1, 0):
        for t in range(8):
            a(f'v_pk_fma_f32 {pr(S+2*t)}, {pr(KF+2*(t+3-j))}, {pr(WF+2*j)}, {pr(S+2*t)}')
    a(f's_waitcnt vmcnt({E})\n;STAMP Tv')
    for t in range(8):
        unpack(a, KF + 2 * t, VV + t)
    for t in range(8):
        a(f'v_pk_mul_f32 {pr(S+2*t)}, {pr(S+2*t)}, {pr(KF+2*t)}')
    for hf in range(2):
        for m in range(4):
            a(f'v_cvt_pk_bf16_f32 v{P+4*hf+m}, v{S+2*(7-2*m)+hf}, v{S+2*(6-2*m)+hf}')
        a(f'ds_write_b128 v90, v[{P+4*hf}:{P+4*hf+3}] offset:{64*hf}')
    a(f'ds_read_b128 v[{S}:{S+3}], v91\nds_read_b128 v[{S+4}:{S+7}], v91 offset:1152')
    for hf in range(2):
        a(f's_waitcnt lgkmcnt({1-hf})\nbuffer_store_dwordx4 v[{S+4*hf}:{S+4*hf+3}], v6, {WS}, s{65+hf} offen sc1')
    a(';STAMP T1')
    Q, ST, X, F, T = 8, 16, 32, 48, 64

    def stl():
        for i in range(4):
            a(f'buffer_load_dwordx4 v[{ST+4*i}:{ST+4*i+3}], v5, {WS}, 0 offen offset:{16*i} sc1')
    ste = OPT['qgate'] < 0
    a.lds_add(92, 93, W_TST)
    a(f'''
    s_mul_i32 s64, s{S_X}, 80
    s_lshl_b32 s40, s3, 4
    s_add_u32 s64, s64, s40
    s_lshl_b32 s41, s{S_J}, 6
    v_and_b32 v1, 7, v0
    v_lshrrev_b32 v4, 3, v0
    v_lshl_add_u32 v2, v4, 3, s41
    v_mul_u32_u24 v3, 1280, v2
    v_lshl_add_u32 v3, v1, 2, v3
    s_lshl_b32 s40, s64, 1
    v_add_u32 v3, s40, v3
    v_lshlrev_b32 v5, 4, v2
    v_add_u32 v5, {WS_RI+64}, v5
    s_mul_i32 s67, s64, {RS}
    s_lshl_b32 s40, s{S_J}, 7
    s_add_u32 s67, s67, s40
    s_add_u32 s67, s67, {WS_Y2}
    s_add_u32 s68, s67, {8*RS}
    v_mul_u32_u24 v90, {RS}, v4
    v_lshl_add_u32 v90, v1, 4, v90
    s_mul_i32 s40, s3, 2304
    s_add_u32 s40, s40, {L_TP}
    v_mul_u32_u24 v91, 144, v4
    v_lshl_add_u32 v91, v1, 4, v91
    v_add_u32 v91, s40, v91
    v_mul_u32_u24 v94, 288, v1
    v_lshl_add_u32 v94, v4, 4, v94
    v_add_u32 v94, s40, v94
    v_lshlrev_b32 v95, 3, v1
    v_and_b32 v96, 3, v0
    v_lshlrev_b32 v96, 7, v96
    v_mov_b32 v97, {7*RS+124}
    s_lshl_b32 s41, s64, 5
    s_add_u32 s41, s41, {WS_F2}
    s_lshl_b32 s40, s{S_X}, 7
    s_add_u32 s40, s40, {WS_IDX}
    s_lshl_b32 s69, s{S_J}, 6
    s_sub_u32 s69, 1984, s69
    ''')
    a.lds_wait(92, 88, W_EPN, 1)
    if ste:
        a.lds_wait(92, 88, W_TST, 5)
        stl()
    a(f'''
    ds_read_b32 v88, v92 offset:{W_EP}
    s_waitcnt vmcnt({4 if ste else 0}) lgkmcnt(0)
    ;STAMP Tack
    s_mov_b64 exec, 1
    buffer_store_dword v88, v89, {WS}, 0 offen sc1
    ds_add_u32 v92, v93 offset:{W_TFL}
    s_mov_b64 exec, -1
    v_readfirstlane_b32 s{S_EP}, v88
    ''')
    if OPT['qgate'] > 0:
        a.lds_wait(92, 88, W_TST if OPT['qgate'] == 1 else W_TFL, 5)
    if OPT['fq']:
        e = a.lab('TQ')
        a(f's_cmp_lt_u32 s{S_J}, 20\ns_cbranch_scc1 {e}')
        a.lds_wait(92, 88, W_DN if OPT['fq'] == 1 else W_GU, 2, 2)
        a.label(e)
    if ste:
        for t in range(8):
            unpack(a, X + 2 * t, QE + t)
        a('s_waitcnt vmcnt(1)')
    else:
        stl()
        if OPT['qe']:
            for t in range(8):
                unpack(a, X + 2 * t, QE + t)
        else:
            rows8(a, 'buffer_load_dword', QE, 3, 's[32:35]')
        a('s_waitcnt vmcnt(0)')
    e = a.lab('TS0')
    a.tagcheck(T + 8, [ST + 2 * i + 1 for i in range(8)])
    a(f's_cbranch_vccz {e}\ns_mov_b64 exec, vcc')
    l = a.spin_begin('TS')
    stl()
    a('s_waitcnt vmcnt(0)')
    a.tagcheck(T + 8, [ST + 2 * i + 1 for i in range(8)])
    a.spin_end_exec(l)
    a.label(e)
    a(';STAMP Tst')
    if OPT['tprio']:
        a('s_setprio 3')
    if OPT['pfat'] == 0:
        weight_prefetch(a, 95, 76)
    for t in range(8):
        a(f'v_and_b32 v{T+2*t}, 0xffff0000, v{ST+2*t}\nv_lshlrev_b32 v{ST+2*t}, 16, v{ST+2*t}\nv_rcp_f32 v{T+2*t}, v{T+2*t}')
    if not OPT['qe']:
        for t in range(8):
            unpack(a, X + 2 * t, QE + t)
    for t in range(8):
        a(f'v_pk_add_f32 {pr(F+2*t)}, {pr(X+2*t)}, {pr(ST+2*t)} {BC} {NEG}')

    def round_pairs(base):
        for t in range(8):
            a(f'v_cvt_pk_bf16_f32 v{Q+t}, v{base+2*t}, v{base+2*t+1}')
        for t in range(8):
            unpack(a, base + 2 * t, Q + t)
    round_pairs(F)
    for t in range(8):
        a(f'v_pk_mul_f32 {pr(F+2*t)}, {pr(F+2*t)}, {pr(T+2*t)} {BC}')
    round_pairs(F)
    AD, Y = 16, 80
    tild = f'''
    buffer_load_dwordx2 v[84:85], v95, {WS}, s40 offen sc1
    buffer_load_dword v86, v96, {WS}, s41 offen sc1
    buffer_load_dword v87, v97, {WS}, s68 offen sc1
    '''
    if OPT['opp']:
        a(tild)
    for t in range(8):
        a(f'v_pk_mul_f32 {pr(T+2*t)}, {pr(F+2*t)}, s[{C_NL2E}:{C_NL2E+1}]')
    for i in range(16):
        a(f'v_exp_f32 v{T+i}, v{T+i}')
    for t in range(8):
        a(f'v_pk_mul_f32 {pr(F+2*t)}, {pr(F+2*t)}, {pr(F+2*t)}')
        a(f'v_pk_add_f32 {pr(T+2*t)}, {pr(T+2*t)}, s[{C_ONE}:{C_ONE+1}]')
    for i in range(16):
        a(f'v_rcp_f32 v{T+i}, v{T+i}')
    for t in range(8):
        a(f'v_pk_mul_f32 {pr(F+2*t)}, {pr(F+2*t)}, {pr(T+2*t)}')
    a(';STAMP T2')
    if OPT['tprio']:
        a('s_setprio 0')
    if OPT['pfat'] == 1:
        weight_prefetch(a, 95, 76)
    for t in range(8):
        a(f'v_mov_b32 v{AD+t}, v3')
    o, e, ok = a.lab('TO'), a.lab('TE'), a.lab('TK')
    chk = f'''
    s_waitcnt vmcnt(0)
    v_xor_b32 v85, s{S_EP}, v85
    v_xor_b32 v86, s{S_EP}, v86
    v_or_b32 v85, v85, v86
    v_cmp_ne_u32 vcc, 0, v85
    '''
    if OPT['opp']:
        a(chk + f's_cbranch_vccz {ok}')
    a(f's_cmp_ge_u32 s{S_J}, 20\ns_cbranch_scc1 {e}')
    a.lds_wait(92, 11, W_YC, 4, 4)
    a.label(e)
    l = a.spin_begin('TI')
    a(tild + chk)
    a.spin_end_vcc(l, 3)
    a.label(ok)
    e = a.lab('TM')
    a(f'''
    ;STAMP Tix
    v_cmp_eq_u32 s[42:43], -1, v87
    v_bfe_u32 v10, v84, 4, 11
    v_subrev_u32 v11, s69, v10
    v_cmp_gt_u32 vcc, 64, v11
    s_cbranch_vccz {e}
    v_sub_u32 v10, 2047, v10
    v_mov_b32 v7, 0
    ''')
    for k in range(8):
        a(f'v_readlane_b32 s{44+k}, v10, {k}')
    for k in range(8):
        a(f'''
        v_sub_u32 v8, s{44+k}, v2
        v_cmp_gt_u32 vcc, 8, v8
        v_lshlrev_b32 v8, v8, 1
        v_cndmask_b32 v8, 0, v8, vcc
        v_or_b32 v7, v7, v8
        ''')
    for t in range(8):
        a(f'v_bfe_i32 v{AD+t}, v7, {t}, 1\nv_and_b32 v{AD+t}, 0x80000000, v{AD+t}\nv_or_b32 v{AD+t}, v{AD+t}, v3')
    a.label(e)
    e = a.lab('TH0')
    a(f's_cmp_eq_u32 s42, 0\ns_cbranch_scc1 {e}')
    if OPT['pft']:
        a(f'buffer_load_dwordx4 v[{Y}:{Y+3}], v90, {WS}, s67 offen sc1\nbuffer_load_dwordx4 v[{Y+4}:{Y+7}], v90, {WS}, s68 offen sc1')
    a('s_mov_b64 exec, 1')
    l = a.spin_begin('TH')
    a(f'buffer_load_dword v7, v97, {WS}, s68 offen sc1\ns_waitcnt vmcnt(0)\nv_cmp_eq_u32 vcc, -1, v7')
    a.spin_end_exec(l)
    a.label(e)
    a(';STAMP Th')
    l = a.spin_begin('TY')
    a(f'buffer_load_dwordx4 v[{Y}:{Y+3}], v90, {WS}, s67 offen sc1')
    a(f'buffer_load_dwordx4 v[{Y+4}:{Y+7}], v90, {WS}, s68 offen sc1')
    a('s_waitcnt vmcnt(0)')
    a.maxtree(8, range(Y, Y + 8))
    a('v_cmp_eq_u32 vcc, -1, v8')
    a.spin_end_exec(l)
    a(f''';STAMP T3
    ds_write_b128 v91, v[{Y}:{Y+3}]
    ds_write_b128 v91, v[{Y+4}:{Y+7}] offset:1152
    ds_read_b128 v[{Y}:{Y+3}], v94
    ds_read_b128 v[{Y+4}:{Y+7}], v94 offset:144
    s_waitcnt lgkmcnt(0)
    ''')
    for t in range(8):
        for hf in range(2):
            src = Y + 4 * hf + t // 2
            a(f'v_lshlrev_b32 v{T+2*t+hf}, 16, v{src}' if t % 2 == 0 else f'v_and_b32 v{T+2*t+hf}, 0xffff0000, v{src}')
        a(f'v_pk_fma_f32 {pr(T+2*t)}, {pr(T+2*t)}, {pr(F+2*t)}, {pr(X+2*t)}')
        a(f'v_cvt_pk_bf16_f32 v{Q+t}, v{T+2*t}, v{T+2*t+1}')
        so = '0' if t < 4 else 's18'
        a(f'buffer_store_dword v{Q+t}, v{AD+t}, s[36:39], {so} offen offset:{1280*(t%4)} {OPT["out"]}')
    a('s_endpgm')


LX, LW, LF, LA = 72, 84, 96, 120
HD, HX = 40, 56


def ln_role(a):
    A = LA
    a(f'''
    s_lshl_b32 s{S_RI}, s{S_TT}, 2
    s_add_u32 s{S_RI}, s{S_RI}, s{S_G}
    s_lshl_b32 s18, s{S_RI}, 3
    s_lshl_b32 s19, s3, 1
    s_add_u32 s18, s18, s19
    v_and_b32 v1, 63, v0
    v_lshrrev_b32 v2, 5, v1
    v_add_u32 v2, s18, v2
    v_and_b32 v3, 31, v1
    v_lshlrev_b32 v4, 4, v3
    v_lshlrev_b32 v5, 3, v3
    v_mul_u32_u24 v6, 1280, v2
    v_add_u32 v7, v6, v5
    v_add_u32 v6, v6, v4
    v_mov_b32 v12, 0
    v_mov_b32 v13, 0
    v_mov_b32 v14, 0
    v_mov_b32 v15, 0
    v_mov_b32 v11, {L_CNT}
    s_waitcnt lgkmcnt(0)
    ''')
    a.srd(20, 4, NB)
    a(f'''
    buffer_load_dwordx4 v[{LX}:{LX+3}], v6, s[20:23], 0 offen
    buffer_load_dwordx4 v[{LX+4}:{LX+7}], v6, s[20:23], 0 offen offset:512
    buffer_load_dwordx2 v[{LX+8}:{LX+9}], v7, s[20:23], 0 offen offset:1024
    ''')
    a.srd(24, 44, 1280)
    a(f'''
    ds_write_b128 v11, v[12:15]
    ds_write_b128 v11, v[12:15] offset:16
    ds_write_b128 v11, v[12:15] offset:32
    ds_write_b128 v11, v[12:15] offset:48
    ''')
    a.srd(60, 54, WS_SIZE)
    a(f'''
    s_waitcnt lgkmcnt(0)
    s_barrier
    s_load_dword s{S_EP}, s[54:55], {WS_E}
    buffer_load_dwordx4 v[{LW}:{LW+3}], v4, s[24:27], 0 offen
    buffer_load_dwordx4 v[{LW+4}:{LW+7}], v4, s[24:27], 0 offen offset:512
    buffer_load_dwordx2 v[{LW+8}:{LW+9}], v5, s[24:27], 0 offen offset:1024
    ''')
    HE = 4 if OPT['hgate'] == 3 else 0
    if HE:
        a(f'''
        s_mul_i32 s18, s{S_X}, 80
        s_lshl_b32 s19, s{S_J}, 2
        s_add_u32 s19, s19, s3
        s_add_u32 s18, s18, s19
        s_lshl_b32 s18, s18, 12
        s_cmp_lt_u32 s{S_J}, 20
        s_cselect_b32 s18, s18, 0x80000000
        v_lshlrev_b32 v8, 4, v1
        ''')
        a.srd(28, 12, NB)
        for m in range(4):
            a(f'buffer_load_dwordx4 v[{HD+4*m}:{HD+4*m+3}], v8, s[28:31], s18 offen offset:{1024*m}')
    a(f'''
    s_getreg_b32 s42, hwreg(HW_REG_XCC_ID, 0, 4)
    v_mov_b32 v18, 1
    s_mov_b32 s{ONES}, 0x3f803f80
    s_mov_b32 s41, {INV640}
    s_waitcnt vmcnt({3+HE})
    ;STAMP Lq
    v_dot2_f32_bf16 v{A}, v{LX}, s{ONES}, 0
    ''')
    for i in range(1, 10):
        a(f'v_dot2_f32_bf16 v{A}, v{LX+i}, s{ONES}, v{A}')
    for i in range(3):
        unpack(a, LF + 2 * i, LX + i)
    for n, sh in enumerate((8, 4, 2, 1)):
        a(f'v_add_f32_dpp v{A}, v{A}, v{A} row_ror:{sh} {DPP}')
        unpack(a, LF + 2 * (3 + n), LX + 3 + n)
    a(f'v_mov_b32 v{A+1}, v{A}')
    unpack(a, LF + 14, LX + 7)
    a(f'v_permlane16_swap_b32 v{A}, v{A+1}')
    unpack(a, LF + 16, LX + 8)
    a(f'v_add_f32 v{A}, v{A}, v{A+1}')
    unpack(a, LF + 18, LX + 9)
    a(f'v_mul_f32 v{A}, s41, v{A}')
    rnd(a, A + 2, A)
    a(f'v_sub_f32 v{A}, v{A}, v{A+2}')
    for i in range(10):
        a(f'v_pk_add_f32 {pr(LF+2*i)}, {pr(LF+2*i)}, {pr(A+2)} {BC} {NEG}')
    a(f'v_pk_mul_f32 {pr(A+4)}, {pr(LF)}, {pr(LF)}')
    for i in range(1, 10):
        a(f'v_pk_fma_f32 {pr(A+4)}, {pr(LF+2*i)}, {pr(LF+2*i)}, {pr(A+4)}')
    a(f'v_add_f32 v{A+4}, v{A+4}, v{A+5}')
    cv = [f'v_cvt_pk_bf16_f32 v{LX+i}, v{LF+2*i}, v{LF+2*i+1}' for i in range(10)]
    a(cv.pop(0) + '\n' + cv.pop(0))
    for sh in (8, 4, 2, 1):
        a(f'v_add_f32_dpp v{A+4}, v{A+4}, v{A+4} row_ror:{sh} {DPP}')
        a(cv.pop(0) + '\n' + cv.pop(0))
    a(f'v_mov_b32 v{A+1}, v{A+4}')
    unpack(a, LF, LX)
    a(f'''
    v_permlane16_swap_b32 v{A+4}, v{A+1}
    v_add_f32 v{A+4}, v{A+4}, v{A+1}
    v_mul_f32 v{A+4}, s41, v{A+4}
    v_fma_f32 v{A+4}, -v{A}, v{A}, v{A+4}
    v_max_f32 v{A+4}, 0, v{A+4}
    ''')
    rnd(a, A + 4, A + 4)
    a(f'v_add_f32 v{A+4}, {EPS}, v{A+4}')
    rnd(a, A + 4, A + 4)
    a(f'v_sqrt_f32 v{A+4}, v{A+4}')
    unpack(a, LF + 2, LX + 1)
    rnd(a, A + 4, A + 4)
    a(f'v_rcp_f32 v{A+6}, v{A+4}')
    for i in range(2, 10):
        unpack(a, LF + 2 * i, LX + i)
    for i in range(10):
        a(f'v_pk_mul_f32 {pr(LF+2*i)}, {pr(LF+2*i)}, {pr(A+6)} {BC}')
    for i in range(10):
        a(f'v_cvt_pk_bf16_f32 v{LX+i}, v{LF+2*i}, v{LF+2*i+1}')
    a(f'''
    s_waitcnt vmcnt({HE}) lgkmcnt(0)
    s_add_u32 s{S_EP}, s{S_EP}, 1
    v_mov_b32 v17, s{S_EP}
    s_mov_b64 exec, 1
    ds_write_b32 v11, v17 offset:{W_EP}
    ds_write_b32 v11, v18 offset:{W_EPN}
    s_mov_b64 exec, -1
    v_dot2_f32_bf16 v{A+6}, v{LX}, v{LW}, 0
    ''')
    for i in range(1, 10):
        a(f'v_dot2_f32_bf16 v{A+6}, v{LX+i}, v{LW+i}, v{A+6}')
    fill = [f'v_lshrrev_b32 v{A+2}, 16, v{A+2}', f'v_or_b32 v{LF}, v{A+2}, v{A+4}', f'v_and_b32 v{LF+4}, 7, v2',
            f'v_lshlrev_b32 v{LF+4}, 3, v{LF+4}', f'v_mov_b32 v{LF+1}, s{S_EP}', f'v_mov_b32 v{LF+3}, s{S_EP}',
            f'v_lshlrev_b32 v{LF+6}, 4, v1', f'v_sub_u32 v{A+7}, 2047, v2', f's_lshl_b32 s40, s{S_RI}, 7', f's_add_u32 s40, s40, {WS_RI}',
            f'v_lshl_or_b32 v{A+7}, v{A+7}, 4, s42']
    a('\n'.join(fill[:3]))
    fill = fill[3:]
    for sh in (8, 4, 2, 1):
        a(f'v_add_f32_dpp v{A+6}, v{A+6}, v{A+6} row_ror:{sh} {DPP}')
        a(fill.pop(0) + '\n' + fill.pop(0))
    a(f'''
    v_mov_b32 v{A+1}, v{A+6}
    v_permlane16_swap_b32 v{A+6}, v{A+1}
    v_add_f32 v{A+6}, v{A+6}, v{A+1}
    v_add_f32 v{A+6}, 0, v{A+6}
    v_cvt_pk_bf16_f32 v{A+6}, v{A+6}, v{A+6}
    v_ashrrev_i32 v{A+1}, 31, v{A+6}
    v_or_b32 v{A+1}, 0x80000000, v{A+1}
    v_xor_b32 v{A+6}, v{A+6}, v{A+1}
    v_and_b32 v{A+6}, 0xffff0000, v{A+6}
    v_or_b32 v{LF+2}, v{A+6}, v{A+7}
    s_mov_b32 exec_lo, 1
    s_mov_b32 exec_hi, 1
    ds_write_b64 v{LF+4}, v[{LF+2}:{LF+3}] offset:{L_RI}
    ds_write_b64 v{LF+4}, v[{LF}:{LF+1}] offset:{L_RI+64}
    s_mov_b32 exec_hi, 0
    ds_add_rtn_u32 v18, v11, v18 offset:{W_RI}
    s_mov_b64 exec, 0xff
    ds_read_b128 v[{LF+12}:{LF+15}], v{LF+6} offset:{L_RI}
    s_waitcnt lgkmcnt(0)
    v_readfirstlane_b32 s41, v18
    s_cmp_eq_u32 s41, 3
    s_cselect_b32 s40, s40, 0x80000000
    buffer_store_dwordx4 v[{LF+12}:{LF+15}], v{LF+6}, {WS}, s40 offen sc1
    ;STAMP Lri
    s_mov_b64 exec, -1
    ''')


def lds_schedule(a, ops):
    issued, pos, done = 0, {}, 0
    for o in ops:
        if o[0] == 'ld':
            a(o[1])
            issued += 1
            pos[o[2]] = issued
        elif o[0] == 'raw':
            a(o[1])
        else:
            needp = max(pos[k] for k in o[2])
            if needp > done:
                n = min(issued - needp, 15)
                a(f's_waitcnt lgkmcnt({n})')
                done = issued - n
            a(o[1])


def conv_role(a):
    AA, GA = 136, 140
    ACC, AF, GF = 8, 40, 72
    a(f'''
    s_mul_i32 s18, s{S_X}, 80
    s_lshl_b32 s19, s{S_J}, 2
    s_add_u32 s19, s19, s3
    s_add_u32 s64, s18, s19
    s_lshl_b32 s65, s64, 12
    v_lshlrev_b32 v8, 4, v1
    ''')
    if OPT['hgate'] != 3:
        a.srd(28, 12, NB)
        if OPT['hgate']:
            a.lds_wait(11, 16, W_TST if OPT['hgate'] == 1 else W_TFL, 5)
        for m in range(4):
            a(f'buffer_load_dwordx4 v[{HD+4*m}:{HD+4*m+3}], v8, s[28:31], s65 offen offset:{1024*m}')
    a(f'''
    s_mul_i32 s66, s64, {RS}
    s_mul_i32 s67, s3, {CW_LDS}
    s_lshl_b32 s40, s64, 1
    s_and_b32 s40, s40, 0xfffffffc
    s_add_u32 s14, s14, s40
    s_addc_u32 s15, s15, 0
    s_load_dword s68, s[14:15], 0
    v_add_u32 v9, s67, v8
    s_mov_b64 exec, 0x3fffffff
    ds_write_b128 v9, v[12:15] offset:{U_OFF+4096}
    s_mov_b64 exec, 3
    ds_write_b128 v9, v[12:15] offset:{H0_OFF}
    ds_write_b128 v9, v[12:15] offset:{H1_OFF}
    s_mov_b64 exec, -1
    v_mov_b32 v{GA+3}, {L_CNT}
    v_and_b32 v10, 15, v1
    v_lshrrev_b32 v11, 4, v1
    v_and_b32 v16, 1, v10
    v_add_u32 v{AA}, v10, v16
    v_lshlrev_b32 v{AA}, 1, v{AA}
    v_lshl_add_u32 v{AA}, v11, 4, v{AA}
    v_xor_b32 v16, 1, v16
    v_mul_u32_u24 v16, {H1_OFF}, v16
    v_add3_u32 v{AA}, v{AA}, v16, s67
    v_add_u32 v{AA+1}, 1024, v{AA}
    v_add_u32 v{AA+2}, 2048, v{AA}
    v_add_u32 v{AA+3}, 3072, v{AA}
    v_lshlrev_b32 v{GA}, 5, v10
    v_sub_u32 v{GA}, {U_OFF+480}, v{GA}
    v_lshl_add_u32 v{GA}, v11, 4, v{GA}
    v_add_u32 v{GA}, s67, v{GA}
    v_lshlrev_b32 v{GA+1}, 5, v10
    v_lshl_add_u32 v{GA+2}, v11, 3, v{GA+1}
    v_sub_u32 v{GA+2}, {U_OFF+2*2044-3584}, v{GA+2}
    v_add_u32 v{GA+2}, s67, v{GA+2}
    v_and_b32 v16, 1, v11
    v_lshl_add_u32 v{GA+1}, v16, 9, v{GA+1}
    v_lshrrev_b32 v16, 1, v11
    v_lshl_add_u32 v{GA+1}, v16, 4, v{GA+1}
    v_mov_b32 v12, 1
    v_lshlrev_b32 v19, 7, v1
    s_waitcnt vmcnt(0)
    ;STAMP Ch
    ''')
    for m in range(4):
        a(f'v_mov_b32_dpp v{HX+m}, v{HD+4*m} wave_shl:1 {DPP}')
    for m in range(3):
        a(f'v_readlane_b32 s{40+m}, v{HD+4*m+4}, 0')
    for m in range(3):
        a(f'v_writelane_b32 v{HX+m}, s{40+m}, 63')
    for m in range(4):
        a(f'ds_write_b128 v9, v[{HD+4*m}:{HD+4*m+3}] offset:{H0_OFF+32+1024*m}')
        T = 20 + 4 * m
        for d in range(4):
            hi = HD + 4 * m + d + 1 if d < 3 else HX + m
            a(f'v_alignbyte_b32 v{T+d}, v{hi}, v{HD+4*m+d}, 2')
        a(f'ds_write_b128 v9, v[{T}:{T+3}] offset:{H1_OFF+32+1024*m}')
    a(f'''
    v_lshlrev_b32 v16, 16, v{HD}
    s_mov_b64 exec, 1
    ds_write_b32 v9, v16 offset:{H1_OFF+28}
    s_mov_b64 exec, -1
    ''')

    def ldA(g, rho):
        o = 128 * (g & 1) + 16 * rho
        r = AF + 4 * g
        return [('ld', f'ds_read2_b32 v[{r}:{r+1}], v{AA+g//2} offset0:{o} offset1:{o+1}', ('A0', g, rho)),
                ('ld', f'ds_read2_b32 v[{r+2}:{r+3}], v{AA+g//2} offset0:{o+2} offset1:{o+3}', ('A', g, rho))]

    def greg(d, rho):
        return GF + 4 * d + 32 * (rho & 1)

    def ldG(d, rho):
        r = greg(d, rho)
        return [('ld', f'ds_read_b128 v[{r}:{r+3}], v{GA} offset:{512*(7-d)+64*rho}', ('G', d, rho))]
    for g in range(7, -1, -1):
        for o in ldA(g, 0):
            a(o[1])
    if OPT['prio']:
        a(f's_setprio {OPT["prio"]}')
    a(f'''
    s_lshr_b32 s42, s64, 2
    s_lshl_b32 s42, s42, 7
    s_add_u32 s42, s42, {WS_F2}
    s_lshr_b32 s43, s64, 5
    s_lshl_b32 s43, s43, 10
    s_add_u32 s43, s43, {WS_HN}
    s_and_b32 s41, s64, 31
    s_cmp_eq_u32 s41, 31
    s_cselect_b32 s43, s43, 0x80000000
    v_mov_b32 v{GA+4}, 1
    v_mov_b32 v{GA+5}, s{S_EP}
    v_mov_b32 v{GA+6}, 0
    v_mov_b32 v12, -1
    v_mov_b32 v13, -1
    v_mov_b32 v14, -1
    v_mov_b32 v15, -1
    s_and_b32 s41, s64, 1
    s_lshl_b32 s41, s41, 4
    s_waitcnt lgkmcnt(0)
    s_lshr_b32 s68, s68, s41
    s_and_b32 s68, s68, 0xffff
    s_lshl_b32 s69, s68, 16
    s_add_u32 s40, s66, {WS_Y2}
    ;STAMP Cfl
    ''')
    a.lds_wait(GA + 3, 17, W_CF, 1)
    a(';STAMP C1')
    ops = []
    for d in range(8):
        ops += ldG(d, 0)
    clr = [('raw', f'buffer_store_dwordx4 v[12:15], v{GA+7}, {WS}, s40 offen offset:{1024*m} sc1') for m in range(4)]
    a(f'v_mov_b32 v{GA+7}, v8')
    first, pend, nm = set(), [], 0
    a(f'v_mov_b32 v{GA+8}, v19')
    for rho in range(8):
        nxt = rho + 1 < 8
        if rho == OPT['ycr']:
            ops.append(('ld', f's_waitcnt vmcnt(0)\ns_mov_b64 exec, 1\nds_add_rtn_u32 v{GA+4}, v{GA+3}, v{GA+4} offset:{W_YC}\ns_mov_b64 exec, -1', 'yc'))
        if rho == OPT['ycr'] + 1:
            ops.append(('mfma', f'v_readfirstlane_b32 s41, v{GA+4}\ns_cmp_eq_u32 s41, 3\ns_cselect_b32 s42, s42, 0x80000000\ns_mov_b64 exec, 1\nbuffer_store_dword v{GA+5}, v{GA+6}, {WS}, s42 offen sc1\ns_mov_b64 exec, -1', ['yc']))
        for g in range(7, -1, -1):
            for d in range(8 - g):
                i = g + d
                c = f'v[{ACC+4*i}:{ACC+4*i+3}]' if i in first else '0'
                first.add(i)
                keys = [('G', d, rho)] + ([('A', g, rho)] if rho else [])
                r = greg(d, rho)
                ops.append(('mfma', f'v_mfma_f32_16x16x32_bf16 v[{ACC+4*i}:{ACC+4*i+3}], v[{AF+4*g}:{AF+4*g+3}], v[{r}:{r+3}], {c}', keys))
                if pend:
                    ops.append(pend.pop(0))
                nm += 1
                if nm == 288 - OPT['hpos'] and OPT['hpos'] >= 0:
                    ops.append(('raw', f's_mov_b64 exec, 0xff\nbuffer_store_dword v{GA+5}, v19, {WS}, s43 offen sc1\ns_mov_b64 exec, -1'.replace('v19', f'v{GA+8}')))
                if rho == 0 and g == 4 and clr:
                    ops.append(clr.pop(0))
                slot = {(4, 3): 0, (3, 3): 1, (2, 3): 2, (2, 5): 3, (1, 3): 4, (1, 5): 5, (0, 3): 6, (0, 5): 7}.get((g, d))
                if nxt and slot is not None:
                    ops += ldG(slot, rho + 1)
                if not nxt and g <= 1 and d < 4:
                    n = (1 - g) * 4 + d
                    ops.append(('ld', f'ds_read_b64 v[{72+2*n}:{73+2*n}], v{GA+2} offset:{512*(7-n)}', ('U', n)))
                if not nxt and (g, d) == (2, 0):
                    ops.append(('ld', f'ds_read_b32 v{GA+4}, v{GA+3} offset:{W_MODE}', 'mode'))
            if nxt:
                pend += ldA(g, rho + 1)
    lds_schedule(a, ops)
    UU, T, OUT = 72, 40, 88
    a('s_waitcnt lgkmcnt(0)\n;STAMP C2')

    def dots(i):
        for r in range(4):
            src = UU + 2 * i + (1 if r < 2 else 0)
            sel = 's69' if r % 2 == 0 else 's68'
            a(f'v_dot2_f32_bf16 v{T+4*i+r}, v{src}, {sel}, v{ACC+4*i+r}')

    def cvts(i):
        a(f'v_cvt_pk_bf16_f32 v{OUT+2*i}, v{T+4*i}, v{T+4*i+1}')
        a(f'v_cvt_pk_bf16_f32 v{OUT+2*i+1}, v{T+4*i+2}, v{T+4*i+3}')

    def put(p, mod):
        a(f'v_permlane16_swap_b32 v{OUT+4*p}, v{OUT+4*p+2}')
        a(f'v_permlane16_swap_b32 v{OUT+4*p+1}, v{OUT+4*p+3}')
        a(f'buffer_store_dwordx4 v[{OUT+4*p}:{OUT+4*p+3}], v{GA+1}, {WS}, s40 offen offset:{1024*p} {mod}')

    def tail(mod):
        for p in range(4):
            if p < 3:
                dots(2 * p + 2)
            cvts(2 * p)
            cvts(2 * p + 1)
            if p < 3:
                dots(2 * p + 3)
            put(p, mod)
        a('s_endpgm')
    a(f'v_readfirstlane_b32 s41, v{GA+4}')
    dots(0)
    dots(1)
    if OPT['local']:
        f = a.lab('CS')
        a(f's_cmp_lg_u32 s41, 1\ns_cbranch_scc1 {f}')
        tail('')
        a.label(f)
    tail('sc1')


SORT8 = [(0, 1), (2, 3), (4, 5), (6, 7), (0, 2), (1, 3), (4, 6), (5, 7), (1, 2), (5, 6), (0, 4), (3, 7), (1, 5), (2, 6), (1, 4), (3, 6), (2, 4), (3, 5), (3, 4)]
M_ODD16, M_HI32, M_B1, M_B0 = 40, 42, 72, 74


def silu(a, regs, tmp):
    for op in (f'v_mul_f32 v{{t}}, {NLOG2E}, v{{r}}', 'v_exp_f32 v{t}, v{t}', 'v_add_f32 v{t}, 1.0, v{t}', 'v_rcp_f32 v{t}, v{t}', 'v_mul_f32 v{r}, v{r}, v{t}'):
        for r, t in zip(regs, tmp):
            a(op.format(r=r, t=t))


def clean8(a, v, t):
    a(f'''
    v_max_u32_dpp v{t}, v{v}, v{v} row_shl:4 row_mask:0xf bank_mask:0x5
    v_min_u32_dpp v{t}, v{v}, v{v} row_shr:4 row_mask:0xf bank_mask:0xa
    v_max_u32_dpp v{v}, v{t}, v{t} quad_perm:[2,3,0,1] {DPP}
    v_min_u32_dpp v{t}, v{t}, v{t} quad_perm:[2,3,0,1] {DPP}
    v_cndmask_b32 v{v}, v{v}, v{t}, s[{M_B1}:{M_B1+1}]
    v_max_u32_dpp v{t}, v{v}, v{v} quad_perm:[1,0,3,2] {DPP}
    v_min_u32_dpp v{v}, v{v}, v{v} quad_perm:[1,0,3,2] {DPP}
    v_cndmask_b32 v{v}, v{t}, v{v}, s[{M_B0}:{M_B0+1}]
    ''')


def merge_rows(a, v, t):
    for swap, mask in (('v_permlane16_swap_b32', M_ODD16), ('v_permlane32_swap_b32', M_HI32)):
        a(f'''
        v_mov_b32_dpp v{t}, v{v} row_half_mirror {DPP}
        v_mov_b32_dpp v{t+1}, v{v} row_half_mirror {DPP}
        {swap} v{t}, v{t+1}
        v_cndmask_b32 v{t}, v{t+1}, v{t}, s[{mask}:{mask+1}]
        v_max_u32 v{v}, v{v}, v{t}
        ''')
        clean8(a, v, t)


def ffn_role(a):
    a(f'''
    s_sub_u32 s65, s{S_J}, 20
    s_mul_i32 s64, s{S_X}, 12
    s_add_u32 s64, s64, s65
    s_mul_i32 s68, s3, 5120
    v_and_b32 v2, 15, v1
    v_lshrrev_b32 v3, 4, v1
    v_lshlrev_b32 v10, 4, v2
    v_lshl_add_u32 v10, v3, 7, v10
    s_mul_i32 s66, s64, {PF}
    s_mul_i32 s41, s3, 5120
    s_add_u32 s66, s66, s41
    s_add_u32 s66, s66, {WS_P}
    s_lshl_b32 s18, s3, 13
    s_add_u32 s18, s18, {WS_RI}
    s_add_u32 s19, s18, 4096
    v_lshrrev_b32 v4, 2, v1
    v_and_b32 v5, 3, v1
    v_lshlrev_b32 v5, 4, v5
    v_lshl_add_u32 v4, v4, 7, v5
    s_mov_b32 s{M_ODD16}, 0xffff0000
    s_mov_b32 s{M_ODD16+1}, 0xffff0000
    s_mov_b32 s{M_HI32}, 0
    s_mov_b32 s{M_HI32+1}, -1
    s_mov_b32 s{M_B1}, 0xcccccccc
    s_mov_b32 s{M_B1+1}, 0xcccccccc
    s_mov_b32 s{M_B0}, 0xaaaaaaaa
    s_mov_b32 s{M_B0+1}, 0xaaaaaaaa
    s_mov_b32 s76, 0x00010001
    s_mov_b32 s77, 0x00010001
    v_mov_b32 v34, 0
    v_mov_b32 v12, 1
    ''')
    a.lds_wait(11, 9, W_TFL if OPT['fgate'] else W_TST, 5)
    KG = 16
    l = a.spin_begin('FK')
    for i in range(4):
        a(f'buffer_load_dwordx4 v[{KG+4*i}:{KG+4*i+3}], v4, {WS}, s{18+i//2} offen offset:{2048*(i%2)} sc1')
    a('s_waitcnt vmcnt(0)')
    a.tagcheck(32, [KG + 2 * i + 1 for i in range(8)])
    a.spin_end_exec(l)
    a(';STAMP F0')
    a.lds_add(11, 12, W_FK)
    key = [KG + 2 * i for i in range(8)]
    spare = KG + 1
    for n, (i, j) in enumerate(SORT8):
        a(f'v_max_u32 v{spare}, v{key[i]}, v{key[j]}\nv_min_u32 v{key[j]}, v{key[i]}, v{key[j]}')
        key[i], spare = spare, key[i]
    for rd in range(8):
        a(f'v_max_u32_dpp v33, v{key[0]}, v{key[0]} row_ror:8 {DPP}')
        for sh in (4, 2, 1):
            a(f'v_max_u32_dpp v33, v33, v33 row_ror:{sh} {DPP}')
        if rd < 7:
            a(f'v_cmp_eq_u32 vcc, v33, v{key[0]}')
        a('v_cndmask_b32 v34, v34, v33, s[76:77]\ns_lshl_b64 s[76:77], s[76:77], 1')
        for i in range(7 - rd):
            a(f'v_cndmask_b32 v{key[i]}, v{key[i]}, v{key[i+1]}, vcc')
    merge_rows(a, 34, 32)
    a(f'''
    s_lshl_b32 s76, s3, 5
    s_add_u32 s76, s76, {L_CAND}
    v_lshl_add_u32 v35, v1, 2, s76
    v_and_b32 v36, 7, v1
    v_lshlrev_b32 v36, 2, v36
    v_lshl_add_u32 v36, v3, 5, v36
    s_mov_b64 exec, 0xff
    ds_write_b32 v35, v34
    s_mov_b64 exec, 1
    ds_add_u32 v11, v12 offset:{W_S0}
    s_mov_b64 exec, -1
    ;STAMP Fex
    ''')
    if OPT['xpf']:
        a(f'''
        v_lshrrev_b32 v37, 3, v1
        v_lshlrev_b32 v37, 2, v37
        ds_bpermute_b32 v37, v37, v34
        v_and_b32 v33, 7, v1
        v_lshlrev_b32 v33, 7, v33
        s_waitcnt lgkmcnt(0)
        v_bfe_u32 v37, v37, 4, 11
        v_sub_u32 v37, 2047, v37
        v_mul_u32_u24 v37, 1280, v37
        v_add_u32 v37, v37, v33
        buffer_load_dword v70, v37, s[20:23], 0 offen
        buffer_load_dword v69, v37, s[20:23], 0 offen offset:256
        ''')
    a.lds_wait(11, 35, W_S0, 4)
    a(f'''
    ds_read_b32 v34, v36 offset:{L_CAND}
    s_mul_i32 s76, s3, 320
    v_lshl_add_u32 v36, v3, 4, s76
    v_bfe_u32 v37, v1, 3, 1
    v_lshl_add_u32 v36, v37, 6, v36
    s_mov_b32 s77, {WS_RI+64}
    s_waitcnt lgkmcnt(0)
    ''')
    merge_rows(a, 34, 32)
    XP = 40
    a(f'''
    ;STAMP F1
    v_bfe_u32 v35, v34, 4, 11
    v_sub_u32 v35, 2047, v35
    v_mul_u32_u24 v37, 1280, v35
    v_add_u32 v36, v36, v37
    buffer_load_dwordx4 v[{XP}:{XP+3}], v36, s[20:23], 0 offen
    buffer_load_dwordx4 v[{XP+4}:{XP+7}], v36, s[20:23], 0 offen offset:128
    buffer_load_dwordx4 v[{XP+8}:{XP+11}], v36, s[20:23], 0 offen offset:256
    v_and_b32 v37, 0x7f8, v35
    v_add_u32 v37, v37, v35
    v_lshlrev_b32 v37, 3, v37
    buffer_load_dwordx2 v[38:39], v37, {WS}, s77 offen sc1
    ''')
    a(f'''
    v_lshlrev_b32 v15, 2, v1
    v_mov_b32_dpp v52, v34 quad_perm:[0,2,0,2] {DPP}
    v_mov_b32_dpp v54, v34 quad_perm:[1,3,1,3] {DPP}
    v_mov_b32 v53, s{S_EP}
    v_mov_b32 v55, s{S_EP}
    s_mov_b64 exec, 0xff
    ds_write_b32 v15, v34 offset:{L_SLOT}
    ds_write_b32 v11, v12 offset:{W_DMA}
    v_lshrrev_b32 v15, 2, v1
    v_lshlrev_b32 v15, 5, v15
    v_and_b32 v32, 1, v1
    v_lshl_add_u32 v15, v32, 4, v15
    s_lshl_b32 s76, s{S_X}, 7
    s_add_u32 s76, s76, {WS_IDX}
    s_or_b32 s40, s65, s3
    s_cmp_eq_u32 s40, 0
    s_cselect_b32 s76, s76, 0x80000000
    s_mov_b64 exec, 0x33
    buffer_store_dwordx4 v[52:55], v15, {WS}, s76 offen sc1
    s_or_b32 s40, s64, s3
    s_cmp_eq_u32 s40, 0
    s_cselect_b32 s76, {WS_E}, 0x80000000
    s_mov_b64 exec, 1
    buffer_store_dword v53, v15, {WS}, s76 offen sc1
    s_mov_b64 exec, -1
    ''')
    WA = 72
    a(f'''
    v_lshrrev_b32 v4, 2, v2
    v_and_b32 v5, 3, v2
    v_lshlrev_b32 v6, 5, v4
    v_lshl_add_u32 v6, v5, 3, v6
    v_lshl_add_u32 v6, v3, 8, v6
    v_add_u32 v6, s68, v6
    v_lshl_add_u32 v13, v3, 2, v4
    v_mul_u32_u24 v13, 320, v13
    v_lshl_add_u32 v13, v5, 3, v13
    v_add_u32 v13, s68, v13
    v_lshlrev_b32 v14, 4, v1
    v_add_u32 v7, s68, v14
    s_waitcnt vmcnt(2)
    ''')
    e = a.lab('FS0')
    a.tagcheck(32, [39])
    a(f's_cbranch_vccz {e}')
    l = a.spin_begin('FS')
    a(f'buffer_load_dwordx2 v[38:39], v37, {WS}, s77 offen sc1\ns_waitcnt vmcnt(0)')
    a.tagcheck(32, [39])
    a.spin_end_vcc(l)
    a.label(e)
    a(';STAMP Fx')
    a.lds_wait(11, 32, W_GU, 2)
    a(';STAMP Fgd')
    frag = []
    for c in (0, 2, 4, 1, 3):
        for mt, base in enumerate((L_G, L_U)):
            r = WA + 8 * c + 4 * mt
            frag.append(f'ds_read_b64_tr_b16 v[{r}:{r+1}], v6 offset:{base+1024*c}')
            frag.append(f'ds_read_b64_tr_b16 v[{r+2}:{r+3}], v6 offset:{base+1024*c+128}')
    XF = 112
    a('v_and_b32 v39, 0xffff0000, v38\nv_lshlrev_b32 v38, 16, v38\nv_rcp_f32 v60, v39')
    for i in range(12):
        unpack(a, XF + 2 * i, XP + i)
        a(frag.pop(0))
    for i in range(12):
        a(f'v_pk_add_f32 {pr(XF+2*i)}, {pr(XF+2*i)}, {pr(38)} {BC} {NEG}')
        if frag:
            a(frag.pop(0))
    for i in range(12):
        a(f'v_cvt_pk_bf16_f32 v{XP+i}, v{XF+2*i}, v{XF+2*i+1}')
    for i in range(12):
        unpack(a, XF + 2 * i, XP + i)
    for i in range(12):
        a(f'v_pk_mul_f32 {pr(XF+2*i)}, {pr(XF+2*i)}, {pr(60)} {BC}')
    for i in range(12):
        a(f'v_cvt_pk_bf16_f32 v{XP+i}, v{XF+2*i}, v{XF+2*i+1}')
    a(';STAMP Fxn\nv_mov_b32 v39, v60')
    XO = 52
    for i in range(8):
        a(f'v_mov_b32_dpp v{XO+i}, v{XP+i} row_ror:8 {DPP}')
    a('s_waitcnt lgkmcnt(0)')
    for c in (0, 2, 4, 1, 3):
        xr = XP + 4 * (c // 2) if c % 2 == 0 else XO + 4 * (c // 2)
        for mt in range(2):
            acc = 60 + 4 * mt
            r = WA + 8 * c + 4 * mt
            cc = '0' if c == 0 else f'v[{acc}:{acc+3}]'
            a(f'v_mfma_f32_16x16x32_bf16 v[{acc}:{acc+3}], v[{r}:{r+3}], v[{xr}:{xr+3}], {cc}')
    WDN, R, O = 112, 72, 72
    a(f'''
    s_mov_b32 s40, 0x07060503
    s_mov_b32 s41, 0x07060502
    s_mov_b32 s43, 0x07060501
    ds_write_b128 v7, v[60:63] offset:{L_G}
    ds_write_b128 v7, v[64:67] offset:{L_G+1024}
    s_mov_b64 exec, 1
    ds_add_u32 v11, v12 offset:{W_S1}
    s_mov_b64 exec, -1
    ;STAMP Fm1
    ''')
    a.lds_wait(11, 32, W_DN, 2)
    for nt in range(10):
        a(f'ds_read_b64_tr_b16 v[{WDN+2*nt}:{WDN+2*nt+1}], v13 offset:{L_D+32*nt}')
    a.lds_wait(11, 32, W_S1, 4)
    a(';STAMP Fs1')
    for w in range(4):
        for mt in range(2):
            a(f'ds_read_b128 v[{R+8*w+4*mt}:{R+8*w+4*mt+3}], v14 offset:{L_G+5120*w+1024*mt}')
    a('s_waitcnt lgkmcnt(0)')
    for i in range(4):
        a(f'v_pk_add_f32 {pr(R+2*i)}, {pr(R+2*i)}, {pr(R+8+2*i)}')
        a(f'v_pk_add_f32 {pr(R+16+2*i)}, {pr(R+16+2*i)}, {pr(R+24+2*i)}')
    for i in range(4):
        a(f'v_pk_add_f32 {pr(R+2*i)}, {pr(R+2*i)}, {pr(R+16+2*i)}')
    for i in range(4):
        a(f'v_cvt_pk_bf16_f32 v{R+8+i}, v{R+2*i}, v{R+2*i+1}')
    for i in range(4):
        unpack(a, R + 2 * i, R + 8 + i)
    silu(a, range(R, R + 4), range(R + 8, R + 12))
    for i in range(2):
        a(f'v_cvt_pk_bf16_f32 v{R+8+i}, v{R+2*i}, v{R+2*i+1}')
    for i in range(2):
        unpack(a, R + 2 * i, R + 8 + i)
    for i in range(2):
        a(f'v_pk_mul_f32 {pr(R+2*i)}, {pr(R+2*i)}, {pr(R+4+2*i)}')
    for i in range(2):
        a(f'v_cvt_pk_bf16_f32 v{60+i}, v{R+2*i}, v{R+2*i+1}')
    a(';STAMP Fgu')
    for nt in range(10):
        a(f'v_mfma_f32_16x16x16_bf16 v[{O+4*nt}:{O+4*nt+3}], v[{WDN+2*nt}:{WDN+2*nt+1}], v[60:61], 0')
    a('s_mov_b32 exec_lo, 0x00ff00ff\ns_mov_b32 exec_hi, 0x00ff00ff')
    for nt in range(10):
        for d, sr in enumerate((40, 41, 43)):
            a(f'v_perm_b32 v{O+4*nt+d}, v{O+4*nt+d}, v{O+4*nt+3}, s{sr}')
        a(f'v_mov_b32 v{O+4*nt+3}, s{S_EP}')
        if nt == 8:
            a('s_add_u32 s66, s66, 4096')
        a(f'buffer_store_dwordx4 v[{O+4*nt}:{O+4*nt+3}], v10, {WS}, s66 offen offset:{512*(nt%8)} sc1')
    a(f';STAMP F2\ns_mov_b64 exec, 1\nds_add_u32 v11, v12 offset:{W_PS}\ns_endpgm')


def helper_role(a):
    DA = 104
    a(f'''
    s_sub_u32 s3, s3, 9
    v_and_b32 v0, 63, v0
    v_mov_b32 v11, {L_CNT}
    s_waitcnt lgkmcnt(0)
    ''')
    a.srd(60, 54, WS_SIZE)
    o, e = a.lab('HO'), a.lab('HE')
    a(f'''
    s_cmp_eq_u32 s3, 1
    s_cbranch_scc1 {o}
    s_cmp_ge_u32 s{S_J}, 20
    s_cbranch_scc1 {e}
    s_mul_i32 s64, s{S_X}, 80
    s_lshl_b32 s40, s{S_J}, 2
    s_add_u32 s64, s64, s40
    s_lshr_b32 s43, s64, 5
    s_lshl_b32 s43, s43, 13
    s_add_u32 s43, s43, {WS_F1}
    s_mul_i32 s40, s64, {RS}
    s_add_u32 s40, s40, {WS_UR}
    v_lshlrev_b32 v2, 7, v0
    v_lshlrev_b32 v3, 4, v0
    v_mov_b32 v5, 1
    s_setprio 3
    ''')
    a.lds_wait(11, 9, W_TFL, 5, 1)
    a(f'ds_read_b32 v9, v11 offset:{W_EP}\ns_waitcnt lgkmcnt(0)\nv_readfirstlane_b32 s{S_EP}, v9')
    l = a.spin_begin('CF')
    a(f'buffer_load_dword v4, v2, {WS}, s43 offen sc1\ns_waitcnt vmcnt(0)')
    a.tagcheck(6, [4])
    a.spin_end_exec(l)
    a(';STAMP Rcf')
    for c in range(4):
        a(f's_mov_b32 m0, {c*CW_LDS + U_OFF}')
        for m in range(4):
            a(f'buffer_load_dwordx4 v3, {WS}, s40 offen offset:{1024*m} sc1 lds')
        if c < 3:
            a(f's_add_u32 s40, s40, {RS}')
    a(f'''
    s_waitcnt vmcnt(0)
    ds_write_b32 v11, v5 offset:{W_CF}
    s_setprio 0
    s_getreg_b32 s42, hwreg(HW_REG_XCC_ID, 0, 4)
    v_and_b32 v2, 24, v0
    v_add_u32 v2, s{S_X}, v2
    v_bfe_u32 v3, v0, 2, 1
    v_lshl_add_u32 v2, v2, 1, v3
    v_and_b32 v3, 3, v0
    v_lshl_add_u32 v2, v2, 2, v3
    v_lshlrev_b32 v2, 7, v2
    s_mov_b32 s40, {WS_RI}
    buffer_load_dwordx2 v[6:7], v2, {WS}, s40 offen sc1
    s_waitcnt vmcnt(0)
    v_and_b32 v6, 15, v6
    v_xor_b32 v6, s42, v6
    v_xor_b32 v7, s{S_EP}, v7
    v_or_b32 v6, v6, v7
    v_cmp_ne_u32 vcc, 0, v6
    s_cbranch_vccnz K_END
    ds_write_b32 v11, v5 offset:{W_MODE}
    s_endpgm
    ''')
    a.label(o)
    if OPT['pfat'] == 3:
        if OPT['pfw']:
            a.lds_wait(11, 9, W_TST if OPT['pfw'] == 1 else W_TFL, 5, 1)
        for n in range(3 if OPT['dnpf'] else 2):
            a(f's_mov_b32 s3, {n}')
            weight_prefetch(a, 95 + 3 * n, 76)
        a('s_mov_b32 s3, 1')
    a.label(e)
    a(f'''
    s_cmp_lt_u32 s{S_J}, 20
    s_cbranch_scc1 K_END
    s_sub_u32 s65, s{S_J}, 20
    s_mul_i32 s64, s{S_X}, 12
    s_add_u32 s64, s64, s65
    v_and_b32 v1, 63, v0
    v_lshrrev_b32 v8, 1, v1
    v_mul_u32_u24 v8, 3072, v8
    v_and_b32 v9, 1, v1
    v_lshl_add_u32 v8, v9, 4, v8
    s_mul_i32 s40, s3, {320*3072}
    s_lshl_b32 s41, s64, 5
    s_add_u32 s67, s40, s41
    s_mul_i32 s68, s3, 10240
    s_mul_i32 s59, s64, {16*1280}
    s_mul_i32 s41, s3, 640
    s_add_u32 s59, s59, s41
    s_add_u32 s66, s59, 320
    v_mov_b32 v11, {L_CNT}
    v_mov_b32 v12, 1
    s_mov_b32 s41, 0xcccd
    ''')
    for c in range(5):
        a(f'''
        v_add_u32 v{DA+c}, {64*c}, v1
        v_mul_u32_u24 v9, s41, v{DA+c}
        v_lshrrev_b32 v9, 20, v9
        v_mul_u32_u24 v9, {1280-320}, v9
        v_lshl_add_u32 v{DA+c}, v{DA+c}, 4, v9
        ''')
    a('s_waitcnt lgkmcnt(0)')
    a.srd(20, 4, NB)
    a.srd(24, 52, NB)
    a.srd(28, 46, 640 * 3072)
    a.srd(32, 48, 640 * 3072)
    a.srd(36, 50, 1536 * 1280)
    D = []
    for c in range(10):
        D.append(f's_add_u32 m0, s68, {L_G + 1024*c}\ns_add_u32 s69, s67, {c*32*3072}\nbuffer_load_dwordx4 v8, s[28:31], s69 offen lds')
        D.append(f's_add_u32 m0, s68, {L_U + 1024*c}\ns_add_u32 s69, s67, {c*32*3072}\nbuffer_load_dwordx4 v8, s[32:35], s69 offen lds')
    if OPT['pfat'] == 5:
        a(f'''
        s_lshl_b32 s40, s65, 1
        s_add_u32 s40, s40, s3
        s_mul_i32 s40, s40, 80
        v_add_u32 v2, s40, v1
        v_and_b32 v4, 15, v1
        v_add3_u32 v4, v4, s40, 64
        s_mov_b32 s40, 0x5556
        v_mul_u32_u24 v3, s40, v2
        v_mul_u32_u24 v5, s40, v4
        v_lshrrev_b32 v3, 16, v3
        v_lshrrev_b32 v5, 16, v5
        v_mul_u32_u24 v3, {3072-384}, v3
        v_mul_u32_u24 v5, {3072-384}, v5
        v_lshlrev_b32 v2, 7, v2
        v_lshlrev_b32 v4, 7, v4
        v_add_u32 v3, v3, v2
        v_add_u32 v5, v5, v4
        s_mul_i32 s40, s{S_X}, 384
        s_mul_i32 s41, s{S_X}, {192*1280}
        ''')
    a.lds_wait(11, 9, W_TST if OPT['pfw'] == 1 else W_TFL, 5, 1)
    if OPT['pfat'] == 5:
        a('''
        buffer_load_dword v16, v3, s[28:31], s40 offen
        buffer_load_dword v17, v3, s[32:35], s40 offen
        s_mov_b64 exec, 0xffff
        buffer_load_dword v18, v5, s[28:31], s40 offen
        buffer_load_dword v19, v5, s[32:35], s40 offen
        buffer_load_dword v20, v4, s[36:39], s41 offen
        s_mov_b64 exec, -1
        buffer_load_dword v21, v2, s[36:39], s41 offen
        ''')
    a.lds_wait(11, 9, W_EPN, 1, 1)
    a(f';STAMP Rds\nds_read_b32 v9, v11 offset:{W_EP}')
    for _ in range(OPT['dmas']):
        a(D.pop(0))
    a(f's_waitcnt lgkmcnt(0)\nv_readfirstlane_b32 s{S_EP}, v9')
    if D:
        a.lds_wait(11, 9, W_FK, 4, 1)
    a(';STAMP Rd0')
    for o in D:
        a(o)
    for h in range(2):
        for c in range(5):
            a(f's_add_u32 m0, s68, {L_D + 5120*h + 1024*c}\ns_nop 0\nbuffer_load_dwordx4 v{DA+c}, s[36:39], s{59 if h == 0 else 66} offen lds')
    a('s_waitcnt vmcnt(10)\n;STAMP Rd1')
    a.lds_add(11, 12, W_GU)
    a('s_waitcnt vmcnt(0)')
    a.lds_add(11, 12, W_DN)
    a(';STAMP Rd2')
    a('s_cmp_ge_u32 s65, 10\ns_cbranch_scc1 K_END')
    a.lds_wait(11, 9, W_DMA, 1, 1)
    a(f'''
    v_and_b32 v15, 7, v1
    v_lshlrev_b32 v9, 2, v15
    ds_read_b32 v34, v9 offset:{L_SLOT}
    s_mov_b32 s77, {WS_RI+64}
    s_waitcnt lgkmcnt(0)
    v_bfe_u32 v35, v34, 4, 11
    v_sub_u32 v35, 2047, v35
    v_and_b32 v37, 0x7f8, v35
    v_add_u32 v37, v37, v35
    v_lshlrev_b32 v37, 3, v37
    ''')
    l = a.spin_begin('RS')
    a(f'buffer_load_dwordx2 v[38:39], v37, {WS}, s77 offen sc1\ns_waitcnt vmcnt(0)')
    a.tagcheck(32, [39])
    a.spin_end_vcc(l)
    a('v_and_b32 v39, 0xffff0000, v38\nv_lshlrev_b32 v38, 16, v38\nv_rcp_f32 v39, v39')
    PR = 40
    a(f'''
    s_mul_i32 s42, s{S_X}, 10
    s_add_u32 s42, s42, s65
    s_lshl_b32 s42, s42, 1
    s_add_u32 s42, s42, s3
    s_lshl_b32 s50, s42, 7
    v_mov_b32 v6, {WS_F2}
    v_lshrrev_b32 v4, 3, v1
    v_and_b32 v15, 7, v1
    v_mul_u32_u24 v5, {PF}, v4
    v_lshl_add_u32 v5, v15, 4, v5
    s_add_u32 s40, s50, {WS_P}
    v_add_u32 v5, s40, v5
    v_and_b32 v4, 3, v4
    s_lshl_b32 s42, s42, 2
    v_add_u32 v8, s42, v4
    v_mul_u32_u24 v9, 1280, v35
    v_lshl_add_u32 v9, v8, 1, v9
    buffer_load_ushort v12, v9, s[20:23], 0 offen
    v_lshlrev_b32 v13, 1, v35
    v_and_b32 v13, 0xfffffffc, v13
    v_mul_u32_u24 v8, {RS}, v8
    v_add3_u32 v8, v8, v13, s47
    v_cmp_eq_u32 s[72:73], 1, v4
    v_cmp_eq_u32 s[74:75], 2, v4
    v_cmp_eq_u32 s[76:77], 3, v4
    v_ashrrev_i32 v20, 31, v34
    v_not_b32 v20, v20
    v_or_b32 v20, 0x80000000, v20
    v_xor_b32 v20, v20, v34
    v_and_b32 v20, 0xffff0000, v20
    v_mul_f32 v20, {NLOG2E}, v20
    v_exp_f32 v20, v20
    v_and_b32 v23, 1, v35
    v_xor_b32 v23, 1, v23
    v_lshlrev_b32 v23, 4, v23
    v_add_f32 v20, 1.0, v20
    v_rcp_f32 v20, v20
    s_or_b64 s[74:75], s[74:75], s[76:77]
    '''.replace('v_add3_u32 v8, v8, v13, s47', f's_mov_b32 s47, {WS_Y2}\nv_add3_u32 v8, v8, v13, s47'))
    for i in range(12):
        a(f's_mov_b32 s{28+i}, {i*8*PF}')
    rnd(a, 20, 20)
    a('s_waitcnt vmcnt(0)\nv_lshlrev_b32 v21, 16, v12\nv_sub_f32 v22, v21, v38')
    rnd(a, 22, 22)
    a('v_mul_f32 v22, v39, v22')
    rnd(a, 22, 22)
    a.lds_wait(11, 16, W_S1, 4, 2)
    l = a.spin_begin('RG')
    a(f'buffer_load_dword v16, v6, {WS}, s50 offen sc1\ns_waitcnt vmcnt(0)')
    a.tagcheck(18, [16])
    a.spin_end_vcc(l, 2)
    a.lds_wait(11, 16, W_PS, 4, 1)
    a(';STAMP Rg\ns_mov_b32 s40, 0x04000c0c\ns_mov_b32 s41, 0x0706000c')
    if OPT['rpsl']:
        a(f's_sleep {OPT["rpsl"]}')
    l = a.spin_begin('RP')
    for i in range(12):
        a(f'buffer_load_dwordx4 v[{PR+4*i}:{PR+4*i+3}], v5, {WS}, s{28+i} offen sc1')
    a('s_waitcnt vmcnt(0)')
    a.tagcheck(18, [PR + 4 * i + 3 for i in range(12)])
    a.spin_end_exec(l)
    a(f';STAMP F3\ns_mov_b32 exec_hi, 0\nbuffer_load_dword v13, v8, {WS}, 0 offen sc1\ns_mov_b32 exec_hi, -1')
    for i in range(12):
        a(f'v_perm_b32 v{PR+4*i+3}, v{PR+4*i}, v{PR+4*i+1}, s40')
    for i in range(12):
        a(f'v_perm_b32 v{PR+4*i+3}, v{PR+4*i+3}, v{PR+4*i+2}, s41')
    for n in (24, 12):
        for i in range(0, n, 2):
            a(f'v_pk_add_f32 {pr(PR+i)}, {pr(PR+i)}, {pr(PR+n+i)}')
    for st in (4, 8):
        for i in (0, 2):
            a(f'v_pk_add_f32 {pr(PR+i)}, {pr(PR+i)}, {pr(PR+st+i)}')
    for i in range(4):
        a(f'v_add_f32_dpp v{PR+i}, v{PR+i}, v{PR+i} row_ror:8 {DPP}')
    for i in range(4):
        a(f'v_mov_b32 v{PR+4+i}, v{PR+i}')
    for i in range(4):
        a(f'v_permlane16_swap_b32 v{PR+i}, v{PR+4+i}')
    for i in (0, 2):
        a(f'v_pk_add_f32 {pr(PR+i)}, {pr(PR+i)}, {pr(PR+4+i)}')
    a(f'''
    v_cndmask_b32 v{PR}, v{PR}, v{PR+1}, s[72:73]
    v_cndmask_b32 v{PR+2}, v{PR+2}, v{PR+3}, s[76:77]
    v_cndmask_b32 v{PR}, v{PR}, v{PR+2}, s[74:75]
    v_mov_b32 v{PR+1}, v{PR}
    v_permlane32_swap_b32 v{PR}, v{PR+1}
    v_add_f32 v{PR}, v{PR}, v{PR+1}
    ''')
    rnd(a, PR, PR)
    a(f'v_mul_f32 v{PR}, v{PR}, v20')
    rnd(a, PR, PR)
    a(f'v_add_f32 v{PR}, v{PR}, v22')
    rnd(a, PR, PR)
    silu(a, [PR], [PR + 1])
    e = a.lab('RY0')
    a(';STAMP Rs')
    a(f'v_mul_f32 v22, v22, v{PR}\ns_mov_b32 exec_hi, 0\ns_waitcnt vmcnt(0)\nv_cmp_eq_u32 vcc, -1, v13\ns_cbranch_vccz {e}')
    l = a.spin_begin('RY')
    a(f'buffer_load_dword v13, v8, {WS}, 0 offen sc1\ns_waitcnt vmcnt(0)\nv_cmp_eq_u32 vcc, -1, v13')
    a.spin_end_vcc(l, 2)
    a.label(e)
    a(f'''
    ;STAMP Ry
    v_lshlrev_b32 v13, v23, v13
    v_and_b32 v13, 0xffff0000, v13
    v_fma_f32 v22, v22, v13, v21
    v_cvt_pk_bf16_f32 v22, v22, v22
    buffer_store_short v22, v9, s[24:27], 0 offen
    s_endpgm
    ''')


def kernel():
    a = K()
    a.label('K_FIRST')
    a(f'''
    s_cmp_ge_u32 s2, 256
    s_cbranch_scc1 K_END
    s_load_dwordx8 s[4:11], s[0:1], 0
    s_load_dwordx4 s[12:15], s[0:1], 32
    s_load_dwordx8 s[44:51], s[0:1], 56
    s_load_dwordx2 s[52:53], s[0:1], 88
    s_load_dwordx2 s[54:55], s[0:1], 104
    v_lshrrev_b32 v1, 6, v0
    s_and_b32 s{S_X}, s2, 7
    v_readfirstlane_b32 s3, v1
    s_lshr_b32 s{S_J}, s2, 3
    s_cmp_lg_u32 s3, 0
    s_cbranch_scc1 K_NOPF
    s_getpc_b64 s[20:21]
    K_PC:
    s_sub_u32 s20, s20, K_PC-K_FIRST
    s_subb_u32 s21, s21, 0
    s_mov_b32 s22, K_END-K_FIRST
    s_mov_b32 s23, 0x20000
    s_lshl_b32 s24, s{S_J}, 10
    v_lshlrev_b32 v1, 7, v0
    s_mov_b64 exec, 0xff
    buffer_load_dword v{PFV}, v1, s[20:23], s24 offen
    s_mov_b64 exec, -1
    K_NOPF:
    s_and_b32 s{S_G}, s{S_J}, 3
    s_and_b32 s{S_TT}, s{S_J}, 24
    s_add_u32 s{S_TT}, s{S_TT}, s{S_X}
    s_lshl_b32 s{S_TT}, s{S_TT}, 1
    s_bfe_u32 s18, s{S_J}, 0x10002
    s_add_u32 s{S_TT}, s{S_TT}, s18
    s_cmp_lt_u32 s3, 4
    s_cbranch_scc1 K_L
    s_cmp_lt_u32 s3, 9
    s_cbranch_scc1 K_T
    s_barrier
    s_branch K_H
    K_T:
    ''')
    tile_role(a)
    a.label('K_L')
    ln_role(a)
    a(f's_cmp_ge_u32 s{S_J}, 20\ns_cbranch_scc1 K_FFN')
    conv_role(a)
    a.label('K_FFN')
    ffn_role(a)
    a.label('K_H')
    helper_role(a)
    a.label('K_END')
    a('s_endpgm')
    return a


def single_module(body):
    s = HDR + f'; @launch grid=(256,1,1) block=({BLOCK},1,1) lds={LDS_BYTES}\n'
    s += f'.amdgcn_target "amdgcn-amd-amdhsa--gfx950"\n.text\n.p2align 12\n.globl {KNAME}\n.p2align 8\n.type {KNAME},@function\n{KNAME}:\n{body}'
    nv, ns, na = max_regs(body)
    s += '.section .rodata,"a"\n' + KD.format(name=KNAME, vgpr=nv, sgpr=ns, acc=(nv + 3) // 4 * 4)
    return s


if __name__ == '__main__':
    out = sys.argv[1]
    rep = []
    for o in sys.argv[2:]:
        if '=' in o:
            k_, v_ = o.split('=')
            OPT[k_] = int(v_) if v_.lstrip('-').isdigit() else v_.replace('+', ' ')
    k = kernel()
    if 'diag' in sys.argv[2:]:
        import diag
        diag.CYC = 'cyc' in sys.argv
        sel = [o for o in sys.argv[2:] if o.startswith('@')]
        diag.instrument(k, 0, {n: i for g in sel for i, n in enumerate(g[1:].split(','))})
    k.lines = [l for l in k.lines if not l.startswith(';STAMP')]
    body = k.text(rep)
    assert not re.search(r'op_sel:\[[01,]*1', body), 'crossed low-half op_sel is unsafe beside MFMA'
    open(out, 'w').write(single_module(body))
    print('wrote', out, 'regs', max_regs(body), 'nops', len(rep), sum(n for n, _ in rep), 'lines', body.count('\n'))
```

```python
import sys, re
from asmlib import *

KNAME = 'recurrent_scan__ssm_conv_h3__moe_arch_mod__prompt_kernel'
HDR = open('recurrent_scan__ssm_conv_h3__moe_arch_mod__prompt.s.ref').read().split('; Override launch')[0]

NB = 2048 * 1280
RS = 4224
WS_E = 0
WS_IDX = 4096
WS_RI = 64 << 10
WS_F2 = 128 << 10
WS_HN = 256 << 10
WS_F1 = 512 << 10
WS_UR = 1 << 20
WS_Y2 = 4 << 20
WS_P = 8 << 20
WS_SIZE = 16 << 20
PTOK = 2560
PF = 8 * PTOK
NLOG2E = 0xbfb8aa3b
INV640 = 0x3acccccd
EPS = 0x3727c5ac
SPIN = 100000

H0_OFF, H1_OFF, U_OFF, CW_LDS = 0, 4160, 8288, 12864
L_G, L_U, L_D, L_MISC = 0, 20480, 40960, 61440
L_CNT, L_CAND, L_SLOT, L_RI, L_TP = L_MISC, L_MISC + 64, L_MISC + 192, L_MISC + 320, L_MISC + 512
LDS_BYTES = L_TP + 5 * 2304
W_S0, W_S1, W_EPN, W_EP, W_RI, W_TST, W_TFL, W_CF, W_FK, W_YC, W_DMA = 0, 4, 12, 16, 20, 24, 32, 36, 40, 44, 48
W_GU, W_DN = 52, 56

OPT = dict(sleep=1, rpsl=12, prio=1, out='sc1', pfat=2, hgate=1, qgate=2, fgate=1, dmas=10, ddn=0, qe=0, hpos=-1, ycr=2, tprio=0, lfirst=1, wre=1, tdma=2, ox4=0, fke=1, thsl=2, tq=2)

S_X, S_J, S_EP, S_CNT, ONES = 16, 17, 56, 57, 58
S_G, S_TT, S_RI = 74, 75, 76
C_NL2E, C_ONE = 70, 72
WS = 's[60:63]'
PFV = 71


class K(Asm):
    def __init__(self):
        super().__init__()
        self.n = 0

    def lab(self, p):
        self.n += 1
        return f'{p}_{self.n}'

    def spin_begin(self, p):
        l = self.lab(p)
        self(f's_mov_b32 s{S_CNT}, 0')
        self.label(l)
        return l

    def _tail(self, l, slp):
        self(f'''
        {f's_sleep {slp}' if slp else ''}
        s_add_u32 s{S_CNT}, s{S_CNT}, 1
        s_cmp_lt_u32 s{S_CNT}, {SPIN}
        s_cbranch_scc1 {l}
        ''')
        self.label(l + '_x')

    def spin_end_vcc(self, l, slp=None):
        self(f's_cbranch_vccz {l}_x')
        self._tail(l, OPT['sleep'] if slp is None else slp)

    def spin_end_exec(self, l, restore='-1', slp=None):
        self(f's_and_b64 exec, exec, vcc\ns_cbranch_execz {l}_x')
        self._tail(l, OPT['sleep'] if slp is None else slp)
        self(f's_mov_b64 exec, {restore}')

    def lds_wait(self, vaddr, vtmp, word, count, slp=0):
        l = self.spin_begin('LW')
        self(f'ds_read_b32 v{vtmp}, v{vaddr} offset:{word}\ns_waitcnt lgkmcnt(0)\nv_cmp_gt_u32 vcc, {count}, v{vtmp}')
        self.spin_end_vcc(l, slp)

    def lds_add(self, vaddr, vone, word):
        self(f's_mov_b64 exec, 1\nds_add_u32 v{vaddr}, v{vone} offset:{word}\ns_mov_b64 exec, -1')

    def maxtree(self, d, regs):
        regs = list(regs)
        self(f'v_max3_u32 v{d}, v{regs[0]}, v{regs[1]}, v{regs[2]}')
        regs = regs[3:]
        while len(regs) >= 2:
            self(f'v_max3_u32 v{d}, v{d}, v{regs[0]}, v{regs[1]}')
            regs = regs[2:]
        if regs:
            self(f'v_max_u32 v{d}, v{d}, v{regs[0]}')

    def tagcheck(self, d, regs):
        regs = list(regs)
        if len(regs) == 1:
            self(f'v_cmp_ne_u32 vcc, s{S_EP}, v{regs[0]}')
            return
        self.maxtree(d, regs)
        r = regs
        self(f'v_min3_u32 v{d+1}, v{r[0]}, v{r[1]}, v{r[2]}')
        r = r[3:]
        while len(r) >= 2:
            self(f'v_min3_u32 v{d+1}, v{d+1}, v{r[0]}, v{r[1]}')
            r = r[2:]
        if r:
            self(f'v_min_u32 v{d+1}, v{d+1}, v{r[0]}')
        self(f'v_xor_b32 v{d}, s{S_EP}, v{d}\nv_xor_b32 v{d+1}, s{S_EP}, v{d+1}\nv_or_b32 v{d}, v{d}, v{d+1}\nv_cmp_ne_u32 vcc, 0, v{d}')


def rnd(a, d, s):
    a(f'v_cvt_pk_bf16_f32 v{d}, v{s}, v{s}\nv_and_b32 v{d}, 0xffff0000, v{d}')


def unpack(a, d, s):
    a(f'v_lshlrev_b32 v{d}, 16, v{s}\nv_and_b32 v{d+1}, 0xffff0000, v{s}')


def pr(r):
    return f'v[{r}:{r+1}]'


DPP = 'row_mask:0xf bank_mask:0xf'
BC = 'op_sel_hi:[1,0]'
NEG = 'neg_lo:[0,1] neg_hi:[0,1]'


def rows8(a, op, reg0, vaddr, srd, mods=''):
    for i in range(8):
        so = '0' if i < 4 else 's18'
        a(f'{op} v{reg0+i}, v{vaddr}, {srd}, {so} offen offset:{1280*(i%4)} {mods}')


def weight_prefetch(a, vb, sb):
    a(f'''
    s_mul_i32 s40, s{S_J}, 60
    v_min_u32 v{vb}, 59, v0
    v_add_u32 v{vb}, s40, v{vb}
    s_mov_b32 s40, 0x5556
    v_mul_u32_u24 v{vb+1}, s40, v{vb}
    v_lshrrev_b32 v{vb+1}, 16, v{vb+1}
    s_cmp_eq_u32 s3, 0
    s_cselect_b32 s{sb}, s46, s48
    s_cselect_b32 s{sb+1}, s47, s49
    s_cmp_eq_u32 s3, 2
    s_cselect_b32 s{sb}, s50, s{sb}
    s_cselect_b32 s{sb+1}, s51, s{sb+1}
    s_cselect_b32 s40, 0, {3072-384}
    s_cselect_b32 s41, 640, 1
    s_mul_i32 s41, s41, s{S_X}
    s_mul_i32 s41, s41, 384
    s_cmp_ge_u32 s3, 3
    s_cselect_b32 s{sb+2}, 0, {640*3072}
    s_mov_b32 s{sb+3}, 0x20000
    v_mul_u32_u24 v{vb+1}, s40, v{vb+1}
    v_lshl_add_u32 v{vb}, v{vb}, 7, v{vb+1}
    buffer_load_dword v{vb+2}, v{vb}, s[{sb}:{sb+3}], s41 offen
    ''')


def tile_role(a):
    KK, VV, W, WF, KF, S, P = 8, 20, 28, 32, 40, 64, 80
    a(f'''
    s_sub_u32 s3, s3, 4
    s_mul_i32 s18, s{S_G}, 160
    s_lshl_b32 s19, s3, 5
    s_add_u32 s64, s18, s19
    s_lshl_b32 s19, s{S_TT}, 5
    v_and_b32 v0, 63, v0
    v_and_b32 v1, 15, v0
    v_lshrrev_b32 v2, 4, v0
    v_lshl_add_u32 v1, v1, 1, s64
    v_lshl_add_u32 v2, v2, 3, s19
    v_mul_u32_u24 v3, 1280, v2
    v_lshl_add_u32 v3, v1, 1, v3
    v_subrev_u32 v4, 3840, v3
    v_cmp_eq_u32 vcc, 0, v2
    v_mov_b32 v5, 0x80000000
    v_cndmask_b32 v4, v4, v5, vcc
    v_lshlrev_b32 v5, 3, v1
    s_mov_b32 s18, 5120
    s_mov_b32 s22, {NB}
    s_mov_b32 s23, 0x20000
    s_mov_b32 s26, {NB}
    s_mov_b32 s27, 0x20000
    s_mov_b32 s30, {640*8}
    s_mov_b32 s31, 0x20000
    s_waitcnt lgkmcnt(0)
    ;STAMP Targ
    s_mov_b64 s[20:21], s[6:7]
    ''')
    rows8(a, 'buffer_load_dword', KK + 3, 3, 's[20:23]')
    for i in range(3):
        a(f'buffer_load_dword v{KK+i}, v4, s[20:23], 0 offen offset:{1280*i}')
    a(f's_mov_b64 s[28:29], s[10:11]\ns_mov_b64 s[24:25], s[8:9]\nbuffer_load_dwordx4 v[{W}:{W+3}], v5, s[28:31], 0 offen')
    rows8(a, 'buffer_load_dword', VV, 3, 's[24:27]')
    a(';STAMP Tiss\ns_barrier')
    a.srd(32, 4, NB)
    QE = 98
    E = 8 * OPT['qe'] + (1 if OPT['pfat'] == 2 else 0)
    if OPT['qe']:
        rows8(a, 'buffer_load_dword', QE, 3, 's[32:35]')
    if OPT['pfat'] == 2:
        weight_prefetch(a, 95, 76)
    a.srd(36, 52, NB)
    a.srd(60, 54, WS_SIZE)
    a(f'''
    s_mul_i32 s67, s64, {RS}
    s_lshl_b32 s40, s{S_TT}, 6
    s_sub_u32 s65, s67, s40
    s_add_u32 s65, s65, {WS_UR + 63*64}
    s_add_u32 s66, s65, {16*RS}
    s_add_u32 s67, s67, s40
    s_add_u32 s67, s67, {WS_Y2}
    s_add_u32 s68, s67, {16*RS}
    v_lshrrev_b32 v6, 2, v0
    v_and_b32 v90, 3, v0
    v_mul_u32_u24 v6, {RS}, v6
    v_lshl_add_u32 v6, v90, 4, v6
    s_mul_i32 s40, s3, 2304
    s_add_u32 s40, s40, {L_TP}
    v_lshrrev_b32 v91, 3, v0
    v_add_u32 v91, v91, v0
    v_lshl_add_u32 v91, v91, 4, s40
    v_and_b32 v90, 15, v0
    v_mul_u32_u24 v90, 144, v90
    v_lshrrev_b32 v93, 4, v0
    v_lshl_add_u32 v94, v93, 4, v90
    v_add_u32 v94, s40, v94
    v_sub_u32 v93, 3, v93
    v_lshl_add_u32 v90, v93, 4, v90
    v_add_u32 v90, s40, v90
    v_mov_b32 v92, {L_CNT}
    v_mov_b32 v93, 1
    v_lshlrev_b32 v5, 4, v2
    v_add_u32 v5, {WS_RI+64}, v5
    s_lshl_b32 s40, s64, 1
    s_add_u32 s40, s40, s{S_TT}
    s_lshl_b32 s40, s40, 7
    s_add_u32 s40, s40, {WS_F1}
    v_mov_b32 v89, s40
    s_mov_b32 s{C_NL2E}, {NLOG2E}
    s_mov_b32 s{C_NL2E+1}, {NLOG2E}
    s_mov_b32 s{C_ONE}, 1.0
    s_mov_b32 s{C_ONE+1}, 1.0
    s_waitcnt vmcnt({8+E})
    ;STAMP Tk
    ''')
    for j in range(4):
        for hf in range(2):
            src = W + 2 * hf + j // 2
            a(f'v_lshlrev_b32 v{WF+2*j+hf}, 16, v{src}' if j % 2 == 0 else f'v_and_b32 v{WF+2*j+hf}, 0xffff0000, v{src}')
    for i in range(11):
        unpack(a, KF + 2 * i, KK + i)
    for t in range(8):
        a(f'v_pk_mul_f32 {pr(S+2*t)}, {pr(KF+2*t)}, {pr(WF+6)}')
    for j in (2, 1, 0):
        for t in range(8):
            a(f'v_pk_fma_f32 {pr(S+2*t)}, {pr(KF+2*(t+3-j))}, {pr(WF+2*j)}, {pr(S+2*t)}')
    a(f's_waitcnt vmcnt({E})\n;STAMP Tv')
    for t in range(8):
        unpack(a, KF + 2 * t, VV + t)
    for t in range(8):
        a(f'v_pk_mul_f32 {pr(S+2*t)}, {pr(S+2*t)}, {pr(KF+2*t)}')
    for hf in range(2):
        for m in range(4):
            a(f'v_cvt_pk_bf16_f32 v{P+4*hf+m}, v{S+2*(7-2*m)+hf}, v{S+2*(6-2*m)+hf}')
        a(f'ds_write_b128 v90, v[{P+4*hf}:{P+4*hf+3}] offset:{64*hf}')
    a(f'ds_read_b128 v[{S}:{S+3}], v91\nds_read_b128 v[{S+4}:{S+7}], v91 offset:1152')
    for hf in range(2):
        a(f's_waitcnt lgkmcnt({1-hf})\nbuffer_store_dwordx4 v[{S+4*hf}:{S+4*hf+3}], v6, {WS}, s{65+hf} offen sc1')
    a(';STAMP T1')
    Q, ST, X, F, T = 8, 16, 32, 48, 64

    def stl():
        for i in range(4):
            a(f'buffer_load_dwordx4 v[{ST+4*i}:{ST+4*i+3}], v5, {WS}, 0 offen offset:{16*i} sc1')
    ste = OPT['qgate'] < 0
    a.lds_add(92, 93, W_TST)
    a.lds_wait(92, 88, W_EPN, 1)
    if ste:
        a.lds_wait(92, 88, W_TST, 5)
        stl()
    a(f'''
    ds_read_b32 v88, v92 offset:{W_EP}
    s_waitcnt vmcnt({4 if ste else 0}) lgkmcnt(0)
    ;STAMP Tack
    s_mov_b64 exec, 1
    buffer_store_dword v88, v89, {WS}, 0 offen sc1
    ds_add_u32 v92, v93 offset:{W_TFL}
    s_mov_b64 exec, -1
    v_readfirstlane_b32 s{S_EP}, v88
    ''')
    if OPT['qgate'] > 0:
        a.lds_wait(92, 88, W_TST if OPT['qgate'] == 1 else W_TFL, 5)
    if OPT['tdma']:
        e, w4 = a.lab('TD'), a.lab('TD')
        a(f'''
        s_cmp_lt_u32 s{S_J}, 20
        s_cbranch_scc1 {e}
        s_cmp_eq_u32 s3, 4
        s_cbranch_scc1 {w4}
        s_sub_u32 s40, s{S_J}, 20
        s_mul_i32 s41, s{S_X}, 12
        s_add_u32 s40, s40, s41
        v_lshrrev_b32 v8, 1, v0
        v_mul_u32_u24 v8, 3072, v8
        v_and_b32 v9, 1, v0
        v_lshl_add_u32 v8, v9, 4, v8
        s_mul_i32 s41, s3, {160*3072}
        s_lshl_b32 s42, s40, 5
        s_add_u32 s41, s41, s42
        s_mul_i32 s42, s3, 5120
        s_mul_i32 s40, s40, {16*1280}
        s_mul_i32 s43, s3, 320
        s_add_u32 s40, s40, s43
        s_mov_b32 s43, 0xcccd
        ''')
        a.srd(20, 46, 640 * 3072)
        a.srd(24, 48, 640 * 3072)
        a.srd(28, 50, 1536 * 1280)
        for c in range(5):
            a(f'''
            v_add_u32 v{10+c}, {64*c}, v0
            v_mul_u32_u24 v9, s43, v{10+c}
            v_lshrrev_b32 v9, 20, v9
            v_mul_u32_u24 v9, {1280-320}, v9
            v_lshl_add_u32 v{10+c}, v{10+c}, 4, v9
            ''')
        if OPT['tq'] == 2:
            stl()
            rows8(a, 'buffer_load_dword', QE, 3, 's[32:35]')
        a.lds_wait(92, 88, W_FK, 4)
        for c in range(5):
            a(f's_add_u32 m0, s42, {L_G + 1024*c}\ns_nop 0\nbuffer_load_dwordx4 v8, s[20:23], s41 offen lds')
            a(f's_add_u32 m0, s42, {L_U + 1024*c}\ns_nop 0\nbuffer_load_dwordx4 v8, s[24:27], s41 offen lds\ns_add_u32 s41, s41, {32*3072}')
        if OPT['tq'] == 1:
            stl()
            rows8(a, 'buffer_load_dword', QE, 3, 's[32:35]')
        if OPT['tdma'] == 2:
            a.lds_wait(92, 88, W_DMA, 1)
        for c in range(5):
            a(f's_add_u32 m0, s42, {L_D + 1024*c}\ns_nop 0\nbuffer_load_dwordx4 v{10+c}, s[28:31], s40 offen lds')
        a('s_waitcnt vmcnt(5)')
        a.lds_add(92, 93, W_GU)
        a('s_waitcnt vmcnt(0)')
        a.lds_add(92, 93, W_DN)
        skipq = a.lab('TD')
        if OPT['tq']:
            a(f's_branch {skipq}')
        a.label(w4)
        if OPT['tq'] == 0:
            a.lds_wait(92, 88, W_DN, 4, 2)
        elif OPT['tq'] == 1:
            a.lds_wait(92, 88, W_FK, 4, 2)
            a('s_sleep 8')
        a.label(e)
    if ste:
        for t in range(8):
            unpack(a, X + 2 * t, QE + t)
        a('s_waitcnt vmcnt(1)')
    else:
        stl()
        if OPT['qe']:
            for t in range(8):
                unpack(a, X + 2 * t, QE + t)
        else:
            rows8(a, 'buffer_load_dword', QE, 3, 's[32:35]')
        a('s_waitcnt vmcnt(0)')
    if OPT['tdma'] and OPT['tq']:
        a.label(skipq)
    e = a.lab('TS0')
    a.tagcheck(T + 8, [ST + 2 * i + 1 for i in range(8)])
    a(f's_cbranch_vccz {e}\ns_mov_b64 exec, vcc')
    l = a.spin_begin('TS')
    stl()
    a('s_waitcnt vmcnt(0)')
    a.tagcheck(T + 8, [ST + 2 * i + 1 for i in range(8)])
    a.spin_end_exec(l)
    a.label(e)
    a(';STAMP Tst')
    if OPT['tprio']:
        a('s_setprio 3')
    if OPT['pfat'] == 0:
        weight_prefetch(a, 95, 76)
    for t in range(8):
        a(f'v_and_b32 v{T+2*t}, 0xffff0000, v{ST+2*t}\nv_lshlrev_b32 v{ST+2*t}, 16, v{ST+2*t}\nv_rcp_f32 v{T+2*t}, v{T+2*t}')
    if not OPT['qe']:
        for t in range(8):
            unpack(a, X + 2 * t, QE + t)
    for t in range(8):
        a(f'v_pk_add_f32 {pr(F+2*t)}, {pr(X+2*t)}, {pr(ST+2*t)} {BC} {NEG}')

    def round_pairs(base):
        for t in range(8):
            a(f'v_cvt_pk_bf16_f32 v{Q+t}, v{base+2*t}, v{base+2*t+1}')
        for t in range(8):
            unpack(a, base + 2 * t, Q + t)
    round_pairs(F)
    for t in range(8):
        a(f'v_pk_mul_f32 {pr(F+2*t)}, {pr(F+2*t)}, {pr(T+2*t)} {BC}')
    round_pairs(F)
    for t in range(8):
        a(f'v_pk_mul_f32 {pr(T+2*t)}, {pr(F+2*t)}, s[{C_NL2E}:{C_NL2E+1}]')
    for i in range(16):
        a(f'v_exp_f32 v{T+i}, v{T+i}')
    for t in range(8):
        a(f'v_pk_mul_f32 {pr(F+2*t)}, {pr(F+2*t)}, {pr(F+2*t)}')
        a(f'v_pk_add_f32 {pr(T+2*t)}, {pr(T+2*t)}, s[{C_ONE}:{C_ONE+1}]')
    for i in range(16):
        a(f'v_rcp_f32 v{T+i}, v{T+i}')
    for t in range(8):
        a(f'v_pk_mul_f32 {pr(F+2*t)}, {pr(F+2*t)}, {pr(T+2*t)}')
    a(';STAMP T2')
    if OPT['tprio']:
        a('s_setprio 0')
    if OPT['pfat'] == 1:
        weight_prefetch(a, 95, 76)
    AD, Y = 16, 80
    if OPT['ox4']:
        a(f'''
        v_lshrrev_b32 v24, 2, v0
        v_and_b32 v25, 3, v0
        s_lshl_b32 s40, s{S_TT}, 5
        v_add_u32 v26, s40, v24
        v_mul_u32_u24 v16, 1280, v26
        v_lshl_add_u32 v16, v25, 4, v16
        s_lshl_b32 s40, s64, 1
        v_add_u32 v16, s40, v16
        v_add_u32 v17, {16*1280}, v16
        s_mul_i32 s40, s3, 2304
        s_add_u32 s40, s40, {L_TP}
        v_mul_u32_u24 v18, 72, v24
        v_lshl_add_u32 v18, v25, 4, v18
        v_add_u32 v18, s40, v18
        v_lshrrev_b32 v19, 4, v0
        v_mul_u32_u24 v19, {8*72}, v19
        v_and_b32 v25, 15, v0
        v_lshl_add_u32 v19, v25, 2, v19
        v_add_u32 v19, s40, v19
        ''')
    else:
        for t in range(8):
            a(f'v_mov_b32 v{AD+t}, v3')
    o, e = a.lab('TO'), a.lab('TE')
    a(f'''
    v_and_b32 v8, 7, v0
    v_lshlrev_b32 v13, 3, v8
    v_lshlrev_b32 v8, 2, v8
    v_lshlrev_b32 v9, 7, v0
    s_lshl_b32 s41, s64, 5
    s_add_u32 s41, s41, {WS_F2}
    s_lshl_b32 s40, s{S_X}, 7
    s_add_u32 s40, s40, {WS_IDX}
    s_lshl_b32 s42, s{S_TT}, 5
    s_sub_u32 s42, 2016, s42
    s_cmp_ge_u32 s{S_J}, 20
    s_cbranch_scc1 {o}
    ''')
    a.lds_wait(92, 11, W_YC, 4, 4)
    l = a.spin_begin('TI')
    a(f'buffer_load_dwordx2 v[10:11], v13, {WS}, s40 offen sc1\ns_waitcnt vmcnt(0)')
    a.tagcheck(14, [11])
    a.spin_end_vcc(l, 2)
    a(f's_branch {e}')
    a.label(o)
    a.lds_wait(92, 11, W_DMA, 1, 4)
    a(f'ds_read_b32 v10, v8 offset:{L_SLOT}\ns_waitcnt lgkmcnt(0)')
    a.label(e)
    e = a.lab('TM')
    a(f'''
    s_mov_b64 exec, 0xff
    buffer_load_dword v12, v9, {WS}, s41 offen sc1
    s_mov_b64 exec, -1
    v_and_b32 v10, 0x7ff, v10
    v_subrev_u32 v11, s42, v10
    v_cmp_gt_u32 vcc, 32, v11
    s_cbranch_vccz {e}
    v_sub_u32 v10, 2047, v10
    v_mov_b32 v7, 0
    ''')
    for k in range(8):
        a(f'v_readlane_b32 s{44+k}, v10, {k}')
    if OPT['ox4']:
        a('v_mov_b32 v8, 0x80000000\nv_add_u32 v27, 16, v26')
        for k in range(8):
            a(f'''
            v_cmp_eq_u32 vcc, s{44+k}, v26
            v_cmp_eq_u32 s[76:77], s{44+k}, v27
            v_cndmask_b32 v16, v16, v8, vcc
            v_cndmask_b32 v17, v17, v8, s[76:77]
            ''')
    else:
        for k in range(8):
            a(f'''
            v_sub_u32 v8, s{44+k}, v2
            v_cmp_gt_u32 vcc, 8, v8
            v_lshlrev_b32 v8, v8, 1
            v_cndmask_b32 v8, 0, v8, vcc
            v_or_b32 v7, v7, v8
            ''')
        for t in range(8):
            a(f'v_bfe_i32 v{AD+t}, v7, {t}, 1\nv_and_b32 v{AD+t}, 0x80000000, v{AD+t}\nv_or_b32 v{AD+t}, v{AD+t}, v3')
    a.label(e)
    e = a.lab('TF0')
    a('s_mov_b64 exec, 0xff\ns_waitcnt vmcnt(0)')
    a.tagcheck(14, [12])
    a(f's_and_b64 exec, exec, vcc\ns_cbranch_execz {e}')
    l = a.spin_begin('TF')
    a(f'buffer_load_dword v12, v9, {WS}, s41 offen sc1\ns_waitcnt vmcnt(0)')
    a.tagcheck(14, [12])
    a.spin_end_exec(l, slp=2)
    a.label(e)
    a('s_mov_b64 exec, -1')
    a(';STAMP Tix')
    if OPT['hpos'] < 0:
        a('s_mov_b32 exec_lo, 0\ns_mov_b32 exec_hi, 0x80000000')
        l = a.spin_begin('TH')
        a(f'buffer_load_dword v9, v6, {WS}, s68 offen offset:12 sc1\ns_waitcnt vmcnt(0)\nv_cmp_eq_u32 vcc, -1, v9')
        a.spin_end_exec(l, slp=OPT['thsl'])
    else:
        a(f's_lshr_b32 s40, s64, 2\ns_add_u32 s40, s40, s{S_X}\ns_lshl_b32 s40, s40, 7\nv_mov_b32 v8, {WS_HN}\ns_mov_b64 exec, 1')
        l = a.spin_begin('TH')
        a(f'buffer_load_dword v9, v8, {WS}, s40 offen sc1\ns_waitcnt vmcnt(0)')
        a.tagcheck(14, [9])
        a.spin_end_exec(l)
    a(';STAMP Th')
    l = a.spin_begin('TY')
    a(f'buffer_load_dwordx4 v[{Y}:{Y+3}], v6, {WS}, s67 offen sc1')
    a(f'buffer_load_dwordx4 v[{Y+4}:{Y+7}], v6, {WS}, s68 offen sc1')
    a('s_waitcnt vmcnt(0)')
    a.maxtree(8, range(Y, Y + 8))
    a('v_cmp_eq_u32 vcc, -1, v8')
    a.spin_end_exec(l)
    a(f''';STAMP T3
    ds_write_b128 v91, v[{Y}:{Y+3}]
    ds_write_b128 v91, v[{Y+4}:{Y+7}] offset:1152
    ds_read_b128 v[{Y}:{Y+3}], v94
    ds_read_b128 v[{Y+4}:{Y+7}], v94 offset:64
    s_waitcnt lgkmcnt(0)
    ''')
    for t in range(8):
        for hf in range(2):
            src = Y + 4 * hf + t // 2
            a(f'v_lshlrev_b32 v{T+2*t+hf}, 16, v{src}' if t % 2 == 0 else f'v_and_b32 v{T+2*t+hf}, 0xffff0000, v{src}')
        a(f'v_pk_fma_f32 {pr(T+2*t)}, {pr(T+2*t)}, {pr(F+2*t)}, {pr(X+2*t)}')
        a(f'v_cvt_pk_bf16_f32 v{Q+t}, v{T+2*t}, v{T+2*t+1}')
        so = '0' if t < 4 else 's18'
        if OPT['ox4']:
            a(f'ds_write_b32 v19, v{Q+t} offset:{72*t}')
        else:
            a(f'buffer_store_dword v{Q+t}, v{AD+t}, s[36:39], {so} offen offset:{1280*(t%4)}')
    if OPT['ox4']:
        a(f'''
        ds_read2_b64 v[{Y}:{Y+3}], v18 offset0:0 offset1:1
        ds_read2_b64 v[{Y+4}:{Y+7}], v18 offset0:{16*72//8} offset1:{16*72//8+1}
        s_waitcnt lgkmcnt(1)
        buffer_store_dwordx4 v[{Y}:{Y+3}], v16, s[36:39], 0 offen {OPT["out"]}
        s_waitcnt lgkmcnt(0)
        buffer_store_dwordx4 v[{Y+4}:{Y+7}], v17, s[36:39], 0 offen {OPT["out"]}
        ''')
    a('s_endpgm')


LX, LW, LF, LA = 72, 84, 96, 120
HD, HX = 40, 56


def ln_head(a):
    a(f'''
    s_lshl_b32 s{S_RI}, s{S_TT}, 2
    s_add_u32 s{S_RI}, s{S_RI}, s{S_G}
    s_lshl_b32 s18, s{S_RI}, 3
    s_lshl_b32 s19, s3, 1
    s_add_u32 s18, s18, s19
    v_and_b32 v1, 63, v0
    v_lshrrev_b32 v2, 5, v1
    v_add_u32 v2, s18, v2
    v_and_b32 v3, 31, v1
    v_lshlrev_b32 v4, 4, v3
    v_lshlrev_b32 v5, 3, v3
    v_mul_u32_u24 v6, 1280, v2
    v_add_u32 v7, v6, v5
    v_add_u32 v6, v6, v4
    v_mov_b32 v12, 0
    v_mov_b32 v13, 0
    v_mov_b32 v14, 0
    v_mov_b32 v15, 0
    v_mov_b32 v11, {L_CNT}
    s_waitcnt lgkmcnt(0)
    ''')
    a.srd(20, 4, NB)
    a(f'''
    buffer_load_dwordx4 v[{LX}:{LX+3}], v6, s[20:23], 0 offen
    buffer_load_dwordx4 v[{LX+4}:{LX+7}], v6, s[20:23], 0 offen offset:512
    buffer_load_dwordx2 v[{LX+8}:{LX+9}], v7, s[20:23], 0 offen offset:1024
    ''')
    a.srd(24, 44, 1280)
    if OPT['wre']:
        a(wr_loads())


def wr_loads():
    return f'''
    buffer_load_dwordx4 v[{LW}:{LW+3}], v4, s[24:27], 0 offen
    buffer_load_dwordx4 v[{LW+4}:{LW+7}], v4, s[24:27], 0 offen offset:512
    buffer_load_dwordx2 v[{LW+8}:{LW+9}], v5, s[24:27], 0 offen offset:1024
    '''


def ln_role(a):
    A = LA
    a(f'''
    ds_write_b128 v11, v[12:15]
    ds_write_b128 v11, v[12:15] offset:16
    ds_write_b128 v11, v[12:15] offset:32
    ds_write_b128 v11, v[12:15] offset:48
    ''')
    a.srd(60, 54, WS_SIZE)
    a(f'''
    s_waitcnt lgkmcnt(0)
    s_barrier
    s_load_dword s{S_EP}, s[54:55], {WS_E}
    {'' if OPT['wre'] else wr_loads()}
    v_mov_b32 v18, 1
    s_mov_b32 s{ONES}, 0x3f803f80
    s_mov_b32 s41, {INV640}
    s_waitcnt vmcnt(3)
    ;STAMP Lq
    v_dot2_f32_bf16 v{A}, v{LX}, s{ONES}, 0
    ''')
    for i in range(1, 10):
        a(f'v_dot2_f32_bf16 v{A}, v{LX+i}, s{ONES}, v{A}')
    for i in range(3):
        unpack(a, LF + 2 * i, LX + i)
    for n, sh in enumerate((8, 4, 2, 1)):
        a(f'v_add_f32_dpp v{A}, v{A}, v{A} row_ror:{sh} {DPP}')
        unpack(a, LF + 2 * (3 + n), LX + 3 + n)
    a(f'v_mov_b32 v{A+1}, v{A}')
    unpack(a, LF + 14, LX + 7)
    a(f'v_permlane16_swap_b32 v{A}, v{A+1}')
    unpack(a, LF + 16, LX + 8)
    a(f'v_add_f32 v{A}, v{A}, v{A+1}')
    unpack(a, LF + 18, LX + 9)
    a(f'v_mul_f32 v{A}, s41, v{A}')
    rnd(a, A + 2, A)
    a(f'v_sub_f32 v{A}, v{A}, v{A+2}')
    for i in range(10):
        a(f'v_pk_add_f32 {pr(LF+2*i)}, {pr(LF+2*i)}, {pr(A+2)} {BC} {NEG}')
    a(f'v_pk_mul_f32 {pr(A+4)}, {pr(LF)}, {pr(LF)}')
    for i in range(1, 10):
        a(f'v_pk_fma_f32 {pr(A+4)}, {pr(LF+2*i)}, {pr(LF+2*i)}, {pr(A+4)}')
    a(f'v_add_f32 v{A+4}, v{A+4}, v{A+5}')
    cv = [f'v_cvt_pk_bf16_f32 v{LX+i}, v{LF+2*i}, v{LF+2*i+1}' for i in range(10)]
    a(cv.pop(0) + '\n' + cv.pop(0))
    for sh in (8, 4, 2, 1):
        a(f'v_add_f32_dpp v{A+4}, v{A+4}, v{A+4} row_ror:{sh} {DPP}')
        a(cv.pop(0) + '\n' + cv.pop(0))
    a(f'v_mov_b32 v{A+1}, v{A+4}')
    unpack(a, LF, LX)
    a(f'''
    v_permlane16_swap_b32 v{A+4}, v{A+1}
    v_add_f32 v{A+4}, v{A+4}, v{A+1}
    v_mul_f32 v{A+4}, s41, v{A+4}
    v_fma_f32 v{A+4}, -v{A}, v{A}, v{A+4}
    v_max_f32 v{A+4}, 0, v{A+4}
    ''')
    rnd(a, A + 4, A + 4)
    a(f'v_add_f32 v{A+4}, {EPS}, v{A+4}')
    rnd(a, A + 4, A + 4)
    a(f'v_sqrt_f32 v{A+4}, v{A+4}')
    unpack(a, LF + 2, LX + 1)
    rnd(a, A + 4, A + 4)
    a(f'v_rcp_f32 v{A+6}, v{A+4}')
    for i in range(2, 10):
        unpack(a, LF + 2 * i, LX + i)
    for i in range(10):
        a(f'v_pk_mul_f32 {pr(LF+2*i)}, {pr(LF+2*i)}, {pr(A+6)} {BC}')
    for i in range(10):
        a(f'v_cvt_pk_bf16_f32 v{LX+i}, v{LF+2*i}, v{LF+2*i+1}')
    a(f'''
    s_waitcnt vmcnt(0) lgkmcnt(0)
    s_add_u32 s{S_EP}, s{S_EP}, 1
    v_mov_b32 v17, s{S_EP}
    s_mov_b64 exec, 1
    ds_write_b32 v11, v17 offset:{W_EP}
    ds_write_b32 v11, v18 offset:{W_EPN}
    s_mov_b64 exec, -1
    v_dot2_f32_bf16 v{A+6}, v{LX}, v{LW}, 0
    ''')
    for i in range(1, 10):
        a(f'v_dot2_f32_bf16 v{A+6}, v{LX+i}, v{LW+i}, v{A+6}')
    fill = [f'v_lshrrev_b32 v{A+2}, 16, v{A+2}', f'v_or_b32 v{LF}, v{A+2}, v{A+4}', f'v_and_b32 v{LF+4}, 7, v2',
            f'v_lshlrev_b32 v{LF+4}, 3, v{LF+4}', f'v_mov_b32 v{LF+1}, s{S_EP}', f'v_mov_b32 v{LF+3}, s{S_EP}',
            f'v_lshlrev_b32 v{LF+6}, 4, v1', f'v_sub_u32 v{A+7}, 2047, v2', f's_lshl_b32 s40, s{S_RI}, 7', f's_add_u32 s40, s40, {WS_RI}',
            's_nop 0']
    a('\n'.join(fill[:3]))
    fill = fill[3:]
    for sh in (8, 4, 2, 1):
        a(f'v_add_f32_dpp v{A+6}, v{A+6}, v{A+6} row_ror:{sh} {DPP}')
        a(fill.pop(0) + '\n' + fill.pop(0))
    a(f'''
    v_mov_b32 v{A+1}, v{A+6}
    v_permlane16_swap_b32 v{A+6}, v{A+1}
    v_add_f32 v{A+6}, v{A+6}, v{A+1}
    v_add_f32 v{A+6}, 0, v{A+6}
    v_cvt_pk_bf16_f32 v{A+6}, v{A+6}, v{A+6}
    v_ashrrev_i32 v{A+1}, 31, v{A+6}
    v_or_b32 v{A+1}, 0x80000000, v{A+1}
    v_xor_b32 v{A+6}, v{A+6}, v{A+1}
    v_and_b32 v{A+6}, 0xffff0000, v{A+6}
    v_or_b32 v{LF+2}, v{A+6}, v{A+7}
    s_mov_b32 exec_lo, 1
    s_mov_b32 exec_hi, 1
    ds_write_b64 v{LF+4}, v[{LF+2}:{LF+3}] offset:{L_RI}
    ds_write_b64 v{LF+4}, v[{LF}:{LF+1}] offset:{L_RI+64}
    s_mov_b32 exec_hi, 0
    ds_add_rtn_u32 v18, v11, v18 offset:{W_RI}
    s_mov_b64 exec, 0xff
    ds_read_b128 v[{LF+12}:{LF+15}], v{LF+6} offset:{L_RI}
    s_waitcnt lgkmcnt(0)
    v_readfirstlane_b32 s41, v18
    s_cmp_eq_u32 s41, 3
    s_cselect_b32 s40, s40, 0x80000000
    buffer_store_dwordx4 v[{LF+12}:{LF+15}], v{LF+6}, {WS}, s40 offen sc1
    ;STAMP Lri
    s_mov_b64 exec, -1
    ''')


def lds_schedule(a, ops):
    issued, pos, done = 0, {}, 0
    for o in ops:
        if o[0] == 'ld':
            a(o[1])
            issued += 1
            pos[o[2]] = issued
        elif o[0] == 'raw':
            a(o[1])
        else:
            needp = max(pos[k] for k in o[2])
            if needp > done:
                n = min(issued - needp, 15)
                a(f's_waitcnt lgkmcnt({n})')
                done = issued - n
            a(o[1])


def conv_role(a):
    AA, GA = 136, 140
    ACC, AF, GF = 8, 40, 72
    a(f'''
    s_mul_i32 s18, s{S_X}, 80
    s_lshl_b32 s19, s{S_J}, 2
    s_add_u32 s19, s19, s3
    s_add_u32 s64, s18, s19
    s_lshl_b32 s65, s64, 12
    v_lshlrev_b32 v8, 4, v1
    ''')
    a.srd(28, 12, NB)
    if OPT['hgate']:
        a.lds_wait(11, 16, W_TST if OPT['hgate'] == 1 else W_TFL, 5)
    for m in range(4):
        a(f'buffer_load_dwordx4 v[{HD+4*m}:{HD+4*m+3}], v8, s[28:31], s65 offen offset:{1024*m}')
    a(f'''
    s_mul_i32 s66, s64, {RS}
    s_mul_i32 s67, s3, {CW_LDS}
    s_lshl_b32 s40, s64, 1
    s_and_b32 s40, s40, 0xfffffffc
    s_add_u32 s14, s14, s40
    s_addc_u32 s15, s15, 0
    s_load_dword s68, s[14:15], 0
    v_add_u32 v9, s67, v8
    s_mov_b64 exec, 0x3fffffff
    ds_write_b128 v9, v[12:15] offset:{U_OFF+4096}
    s_mov_b64 exec, 3
    ds_write_b128 v9, v[12:15] offset:{H0_OFF}
    ds_write_b128 v9, v[12:15] offset:{H1_OFF}
    s_mov_b64 exec, -1
    v_mov_b32 v{GA+3}, {L_CNT}
    v_and_b32 v10, 15, v1
    v_lshrrev_b32 v11, 4, v1
    v_and_b32 v16, 1, v10
    v_add_u32 v{AA}, v10, v16
    v_lshlrev_b32 v{AA}, 1, v{AA}
    v_lshl_add_u32 v{AA}, v11, 4, v{AA}
    v_xor_b32 v16, 1, v16
    v_mul_u32_u24 v16, {H1_OFF}, v16
    v_add3_u32 v{AA}, v{AA}, v16, s67
    v_add_u32 v{AA+1}, 1024, v{AA}
    v_add_u32 v{AA+2}, 2048, v{AA}
    v_add_u32 v{AA+3}, 3072, v{AA}
    v_lshlrev_b32 v{GA}, 5, v10
    v_sub_u32 v{GA}, {U_OFF+480}, v{GA}
    v_lshl_add_u32 v{GA}, v11, 4, v{GA}
    v_add_u32 v{GA}, s67, v{GA}
    v_lshlrev_b32 v{GA+1}, 5, v10
    v_lshl_add_u32 v{GA+2}, v11, 3, v{GA+1}
    v_sub_u32 v{GA+2}, {U_OFF+2*2044-3584}, v{GA+2}
    v_add_u32 v{GA+2}, s67, v{GA+2}
    v_and_b32 v16, 1, v11
    v_lshl_add_u32 v{GA+1}, v16, 9, v{GA+1}
    v_lshrrev_b32 v16, 1, v11
    v_lshl_add_u32 v{GA+1}, v16, 4, v{GA+1}
    v_mov_b32 v12, 1
    s_lshr_b32 s43, s64, 5
    s_lshl_b32 s43, s43, 13
    s_add_u32 s43, s43, {WS_F1}
    v_lshlrev_b32 v19, 7, v1
    s_waitcnt vmcnt(0)
    ;STAMP Ch
    ''')
    for m in range(4):
        a(f'v_mov_b32_dpp v{HX+m}, v{HD+4*m} wave_shl:1 {DPP}')
    for m in range(3):
        a(f'v_readlane_b32 s{40+m}, v{HD+4*m+4}, 0')
    for m in range(3):
        a(f'v_writelane_b32 v{HX+m}, s{40+m}, 63')
    for m in range(4):
        a(f'ds_write_b128 v9, v[{HD+4*m}:{HD+4*m+3}] offset:{H0_OFF+32+1024*m}')
        T = 20 + 4 * m
        for d in range(4):
            hi = HD + 4 * m + d + 1 if d < 3 else HX + m
            a(f'v_alignbyte_b32 v{T+d}, v{hi}, v{HD+4*m+d}, 2')
        a(f'ds_write_b128 v9, v[{T}:{T+3}] offset:{H1_OFF+32+1024*m}')
    a(f'''
    v_lshlrev_b32 v16, 16, v{HD}
    s_mov_b64 exec, 1
    ds_write_b32 v9, v16 offset:{H1_OFF+28}
    s_mov_b64 exec, -1
    ''')

    def ldA(g, rho):
        o = 128 * (g & 1) + 16 * rho
        r = AF + 4 * g
        return [('ld', f'ds_read2_b32 v[{r}:{r+1}], v{AA+g//2} offset0:{o} offset1:{o+1}', ('A0', g, rho)),
                ('ld', f'ds_read2_b32 v[{r+2}:{r+3}], v{AA+g//2} offset0:{o+2} offset1:{o+3}', ('A', g, rho))]

    def greg(d, rho):
        return GF + 4 * d + 32 * (rho & 1)

    def ldG(d, rho):
        r = greg(d, rho)
        return [('ld', f'ds_read_b128 v[{r}:{r+3}], v{GA} offset:{512*(7-d)+64*rho}', ('G', d, rho))]
    for g in range(7, -1, -1):
        for o in ldA(g, 0):
            a(o[1])
    a(f's_add_u32 s40, s66, {WS_UR}\ns_add_u32 m0, s67, {U_OFF}')
    o, e = a.lab('CO'), a.lab('CE')
    a(f's_cmp_lg_u32 s3, 0\ns_cbranch_scc1 {o}')
    a.lds_wait(GA + 3, 17, W_TFL, 5)
    l = a.spin_begin('CF')
    a(f'buffer_load_dword v17, v19, {WS}, s43 offen sc1\ns_waitcnt vmcnt(0)')
    a.tagcheck(18, [17])
    a.spin_end_exec(l)
    a(f'ds_write_b32 v{GA+3}, v12 offset:{W_CF}\ns_branch {e}')
    a.label(o)
    a.lds_wait(GA + 3, 17, W_CF, 1)
    a.label(e)
    a(';STAMP Cfl')
    for m in (3, 2, 1, 0):
        a(f'buffer_load_dwordx4 v8, {WS}, s40 offen offset:{1024*m} sc1 lds')
    if OPT['prio']:
        a(f's_setprio {OPT["prio"]}')
    a(f'''
    s_lshr_b32 s42, s64, 2
    s_lshl_b32 s42, s42, 7
    s_add_u32 s42, s42, {WS_F2}
    s_lshr_b32 s43, s64, 5
    s_lshl_b32 s43, s43, 10
    s_add_u32 s43, s43, {WS_HN}
    s_and_b32 s41, s64, 31
    s_cmp_eq_u32 s41, 31
    s_cselect_b32 s43, s43, 0x80000000
    v_mov_b32 v{GA+4}, 1
    v_mov_b32 v{GA+5}, s{S_EP}
    v_mov_b32 v{GA+6}, 0
    v_mov_b32 v12, -1
    v_mov_b32 v13, -1
    v_mov_b32 v14, -1
    v_mov_b32 v15, -1
    s_and_b32 s41, s64, 1
    s_lshl_b32 s41, s41, 4
    s_waitcnt lgkmcnt(0)
    s_lshr_b32 s68, s68, s41
    s_and_b32 s68, s68, 0xffff
    s_lshl_b32 s69, s68, 16
    s_add_u32 s40, s66, {WS_Y2}
    s_waitcnt vmcnt(0)
    ;STAMP C1
    ''')
    ops = []
    for d in range(8):
        ops += ldG(d, 0)
    clr = [('raw', f'buffer_store_dwordx4 v[12:15], v{GA+7}, {WS}, s40 offen offset:{1024*m} sc1') for m in range(4)]
    a(f'v_mov_b32 v{GA+7}, v8')
    first, pend, nm = set(), [], 0
    a(f'v_mov_b32 v{GA+8}, v19')
    for rho in range(8):
        nxt = rho + 1 < 8
        if rho == OPT['ycr']:
            ops.append(('ld', f's_waitcnt vmcnt(0)\ns_mov_b64 exec, 1\nds_add_rtn_u32 v{GA+4}, v{GA+3}, v{GA+4} offset:{W_YC}\ns_mov_b64 exec, -1', 'yc'))
        if rho == OPT['ycr'] + 1:
            ops.append(('mfma', f'v_readfirstlane_b32 s41, v{GA+4}\ns_cmp_eq_u32 s41, 3\ns_cselect_b32 s42, s42, 0x80000000\ns_mov_b64 exec, 1\nbuffer_store_dword v{GA+5}, v{GA+6}, {WS}, s42 offen sc1\ns_mov_b64 exec, -1', ['yc']))
        for g in range(7, -1, -1):
            for d in range(8 - g):
                i = g + d
                c = f'v[{ACC+4*i}:{ACC+4*i+3}]' if i in first else '0'
                first.add(i)
                keys = [('G', d, rho)] + ([('A', g, rho)] if rho else [])
                r = greg(d, rho)
                ops.append(('mfma', f'v_mfma_f32_16x16x32_bf16 v[{ACC+4*i}:{ACC+4*i+3}], v[{AF+4*g}:{AF+4*g+3}], v[{r}:{r+3}], {c}', keys))
                if pend:
                    ops.append(pend.pop(0))
                nm += 1
                if nm == 288 - OPT['hpos'] and OPT['hpos'] >= 0:
                    ops.append(('raw', f's_mov_b64 exec, 0xff\nbuffer_store_dword v{GA+5}, v19, {WS}, s43 offen sc1\ns_mov_b64 exec, -1'.replace('v19', f'v{GA+8}')))
                if rho == 0 and g == 4 and clr:
                    ops.append(clr.pop(0))
                slot = {(4, 3): 0, (3, 3): 1, (2, 3): 2, (2, 5): 3, (1, 3): 4, (1, 5): 5, (0, 3): 6, (0, 5): 7}.get((g, d))
                if nxt and slot is not None:
                    ops += ldG(slot, rho + 1)
                if not nxt and g <= 1 and d < 4:
                    n = (1 - g) * 4 + d
                    ops.append(('ld', f'ds_read_b64 v[{72+2*n}:{73+2*n}], v{GA+2} offset:{512*(7-n)}', ('U', n)))
            if nxt:
                pend += ldA(g, rho + 1)
    lds_schedule(a, ops)
    UU, T, OUT = 72, 40, 88
    a('s_waitcnt lgkmcnt(0)\n;STAMP C2')

    def dots(i):
        for r in range(4):
            src = UU + 2 * i + (1 if r < 2 else 0)
            sel = 's69' if r % 2 == 0 else 's68'
            a(f'v_dot2_f32_bf16 v{T+4*i+r}, v{src}, {sel}, v{ACC+4*i+r}')

    def cvts(i):
        a(f'v_cvt_pk_bf16_f32 v{OUT+2*i}, v{T+4*i}, v{T+4*i+1}')
        a(f'v_cvt_pk_bf16_f32 v{OUT+2*i+1}, v{T+4*i+2}, v{T+4*i+3}')

    def put(p):
        a(f'v_permlane16_swap_b32 v{OUT+4*p}, v{OUT+4*p+2}')
        a(f'v_permlane16_swap_b32 v{OUT+4*p+1}, v{OUT+4*p+3}')
        a(f'buffer_store_dwordx4 v[{OUT+4*p}:{OUT+4*p+3}], v{GA+1}, {WS}, s40 offen offset:{1024*p} sc1')
    dots(0)
    dots(1)
    for p in range(4):
        if p < 3:
            dots(2 * p + 2)
        cvts(2 * p)
        cvts(2 * p + 1)
        if p < 3:
            dots(2 * p + 3)
        put(p)
    a('s_endpgm')


SORT8 = [(0, 1), (2, 3), (4, 5), (6, 7), (0, 2), (1, 3), (4, 6), (5, 7), (1, 2), (5, 6), (0, 4), (3, 7), (1, 5), (2, 6), (1, 4), (3, 6), (2, 4), (3, 5), (3, 4)]
M_ODD16, M_HI32, M_B1, M_B0 = 40, 42, 72, 74


def silu(a, regs, tmp):
    for op in (f'v_mul_f32 v{{t}}, {NLOG2E}, v{{r}}', 'v_exp_f32 v{t}, v{t}', 'v_add_f32 v{t}, 1.0, v{t}', 'v_rcp_f32 v{t}, v{t}', 'v_mul_f32 v{r}, v{r}, v{t}'):
        for r, t in zip(regs, tmp):
            a(op.format(r=r, t=t))


def clean8(a, v, t):
    a(f'''
    v_max_u32_dpp v{t}, v{v}, v{v} row_shl:4 row_mask:0xf bank_mask:0x5
    v_min_u32_dpp v{t}, v{v}, v{v} row_shr:4 row_mask:0xf bank_mask:0xa
    v_max_u32_dpp v{v}, v{t}, v{t} quad_perm:[2,3,0,1] {DPP}
    v_min_u32_dpp v{t}, v{t}, v{t} quad_perm:[2,3,0,1] {DPP}
    v_cndmask_b32 v{v}, v{v}, v{t}, s[{M_B1}:{M_B1+1}]
    v_max_u32_dpp v{t}, v{v}, v{v} quad_perm:[1,0,3,2] {DPP}
    v_min_u32_dpp v{v}, v{v}, v{v} quad_perm:[1,0,3,2] {DPP}
    v_cndmask_b32 v{v}, v{t}, v{v}, s[{M_B0}:{M_B0+1}]
    ''')


def merge_rows(a, v, t):
    for swap, mask in (('v_permlane16_swap_b32', M_ODD16), ('v_permlane32_swap_b32', M_HI32)):
        a(f'''
        v_mov_b32_dpp v{t}, v{v} row_half_mirror {DPP}
        v_mov_b32_dpp v{t+1}, v{v} row_half_mirror {DPP}
        {swap} v{t}, v{t+1}
        v_cndmask_b32 v{t}, v{t+1}, v{t}, s[{mask}:{mask+1}]
        v_max_u32 v{v}, v{v}, v{t}
        ''')
        clean8(a, v, t)


def ffn_role(a):
    a(f'''
    s_sub_u32 s65, s{S_J}, 20
    s_mul_i32 s64, s{S_X}, 12
    s_add_u32 s64, s64, s65
    v_lshrrev_b32 v8, 1, v1
    v_mul_u32_u24 v8, 3072, v8
    v_and_b32 v9, 1, v1
    v_lshl_add_u32 v8, v9, 4, v8
    s_mul_i32 s40, s3, {160*3072}
    s_lshl_b32 s41, s64, 5
    s_add_u32 s67, s40, s41
    s_mul_i32 s68, s3, 5120
    s_mul_i32 s59, s64, {16*1280}
    s_mul_i32 s41, s3, 320
    s_add_u32 s59, s59, s41
    v_and_b32 v2, 15, v1
    v_lshrrev_b32 v3, 4, v1
    v_lshlrev_b32 v10, 4, v2
    v_lshl_add_u32 v10, v3, 7, v10
    s_mul_i32 s66, s64, {PF}
    s_mul_i32 s41, s3, 5120
    s_add_u32 s66, s66, s41
    s_add_u32 s66, s66, {WS_P}
    s_lshl_b32 s18, s3, 13
    s_add_u32 s18, s18, {WS_RI}
    s_add_u32 s19, s18, 4096
    v_lshrrev_b32 v4, 2, v1
    v_and_b32 v5, 3, v1
    v_lshlrev_b32 v5, 4, v5
    v_lshl_add_u32 v4, v4, 7, v5
    s_mov_b32 s41, 0xcccd
    ''')
    a.srd(28, 46, 640 * 3072)
    a.srd(32, 48, 640 * 3072)
    a.srd(36, 50, 1536 * 1280)
    DA = 104
    for c in range(5):
        a(f'''
        v_add_u32 v{DA+c}, {64*c}, v1
        v_mul_u32_u24 v9, s41, v{DA+c}
        v_lshrrev_b32 v9, 20, v9
        v_mul_u32_u24 v9, {1280-320}, v9
        v_lshl_add_u32 v{DA+c}, v{DA+c}, 4, v9
        ''')
    a(f'''
    s_mov_b32 s{M_ODD16}, 0xffff0000
    s_mov_b32 s{M_ODD16+1}, 0xffff0000
    s_mov_b32 s{M_HI32}, 0
    s_mov_b32 s{M_HI32+1}, -1
    s_mov_b32 s{M_B1}, 0xcccccccc
    s_mov_b32 s{M_B1+1}, 0xcccccccc
    s_mov_b32 s{M_B0}, 0xaaaaaaaa
    s_mov_b32 s{M_B0+1}, 0xaaaaaaaa
    s_mov_b32 s76, 0x00010001
    s_mov_b32 s77, 0x00010001
    v_mov_b32 v34, 0
    v_mov_b32 v12, 1
    ''')
    D = []
    for c in range(5):
        D.append(f's_add_u32 m0, s68, {L_G + 1024*c}\ns_add_u32 s69, s67, {c*32*3072}\nbuffer_load_dwordx4 v8, s[28:31], s69 offen lds')
        D.append(f's_add_u32 m0, s68, {L_U + 1024*c}\ns_nop 0\nbuffer_load_dwordx4 v8, s[32:35], s69 offen lds')
    DN = [f's_add_u32 m0, s68, {L_D + 1024*c}\ns_nop 0\nbuffer_load_dwordx4 v{DA+c}, s[36:39], s59 offen lds' for c in range(5)]
    if OPT['ddn']:
        D, DN = D + DN, []
    if OPT['tdma']:
        D, DN = [], []
    a.lds_wait(11, 9, W_TFL if OPT['fgate'] else W_TST, 5)
    for _ in range(min(len(D), OPT['dmas'])):
        a(D.pop(0))
    KG = 16
    def fkl():
        for i in range(4):
            a(f'buffer_load_dwordx4 v[{KG+4*i}:{KG+4*i+3}], v4, {WS}, s{18+i//2} offen offset:{2048*(i%2)} sc1')
    e = a.lab('FK0')
    if OPT['fke']:
        fkl()
        a.lds_add(11, 12, W_FK)
        a('s_waitcnt vmcnt(0)')
        a.tagcheck(32, [KG + 2 * i + 1 for i in range(8)])
        a(f's_cbranch_vccz {e}\ns_mov_b64 exec, vcc')
    l = a.spin_begin('FK')
    fkl()
    a('s_waitcnt vmcnt(0)')
    a.tagcheck(32, [KG + 2 * i + 1 for i in range(8)])
    a.spin_end_exec(l)
    a.label(e)
    a(';STAMP F0')
    if OPT['tdma'] and not OPT['fke']:
        a.lds_add(11, 12, W_FK)
    key = [KG + 2 * i for i in range(8)]
    spare = KG + 1
    for n, (i, j) in enumerate(SORT8):
        a(f'v_max_u32 v{spare}, v{key[i]}, v{key[j]}\nv_min_u32 v{key[j]}, v{key[i]}, v{key[j]}')
        key[i], spare = spare, key[i]
        if n % 2 == 1 and len(D) > 8:
            a(D.pop(0))
    for rd in range(8):
        a(f'v_max_u32_dpp v33, v{key[0]}, v{key[0]} row_ror:8 {DPP}')
        if D:
            a(D.pop(0))
        for sh in (4, 2, 1):
            a(f'v_max_u32_dpp v33, v33, v33 row_ror:{sh} {DPP}')
        if rd < 7:
            a(f'v_cmp_eq_u32 vcc, v33, v{key[0]}')
        a('v_cndmask_b32 v34, v34, v33, s[76:77]\ns_lshl_b64 s[76:77], s[76:77], 1')
        for i in range(7 - rd):
            a(f'v_cndmask_b32 v{key[i]}, v{key[i]}, v{key[i+1]}, vcc')
    assert not D
    merge_rows(a, 34, 32)
    a(f'''
    s_lshl_b32 s76, s3, 5
    s_add_u32 s76, s76, {L_CAND}
    v_lshl_add_u32 v35, v1, 2, s76
    v_and_b32 v36, 7, v1
    v_lshlrev_b32 v36, 2, v36
    v_lshl_add_u32 v36, v3, 5, v36
    s_mov_b64 exec, 0xff
    ds_write_b32 v35, v34
    s_mov_b64 exec, 1
    ds_add_u32 v11, v12 offset:{W_S0}
    s_mov_b64 exec, -1
    ;STAMP Fex
    ''')
    a.lds_wait(11, 35, W_S0, 4)
    a(f'''
    ds_read_b32 v34, v36 offset:{L_CAND}
    s_mul_i32 s76, s3, 320
    v_lshl_add_u32 v36, v3, 4, s76
    v_bfe_u32 v37, v1, 3, 1
    v_lshl_add_u32 v36, v37, 6, v36
    s_mov_b32 s77, {WS_RI+64}
    s_waitcnt lgkmcnt(0)
    ''')
    merge_rows(a, 34, 32)
    XP = 40
    a(f'''
    ;STAMP F1
    v_and_b32 v35, 0x7ff, v34
    v_sub_u32 v35, 2047, v35
    v_mul_u32_u24 v37, 1280, v35
    v_add_u32 v36, v36, v37
    buffer_load_dwordx4 v[{XP}:{XP+3}], v36, s[20:23], 0 offen
    buffer_load_dwordx4 v[{XP+4}:{XP+7}], v36, s[20:23], 0 offen offset:128
    buffer_load_dwordx4 v[{XP+8}:{XP+11}], v36, s[20:23], 0 offen offset:256
    v_and_b32 v37, 0x7f8, v35
    v_add_u32 v37, v37, v35
    v_lshlrev_b32 v37, 3, v37
    buffer_load_dwordx2 v[38:39], v37, {WS}, s77 offen sc1
    ''')
    a(f'''
    v_lshlrev_b32 v15, 2, v1
    v_mov_b32_dpp v52, v34 quad_perm:[0,2,0,2] {DPP}
    v_mov_b32_dpp v54, v34 quad_perm:[1,3,1,3] {DPP}
    v_mov_b32 v53, s{S_EP}
    v_mov_b32 v55, s{S_EP}
    s_mov_b64 exec, 0xff
    ds_write_b32 v15, v34 offset:{L_SLOT}
    ds_write_b32 v11, v12 offset:{W_DMA}
    v_lshrrev_b32 v15, 2, v1
    v_lshlrev_b32 v15, 5, v15
    v_and_b32 v32, 1, v1
    v_lshl_add_u32 v15, v32, 4, v15
    s_lshl_b32 s76, s{S_X}, 7
    s_add_u32 s76, s76, {WS_IDX}
    s_or_b32 s40, s65, s3
    s_cmp_eq_u32 s40, 0
    s_cselect_b32 s76, s76, 0x80000000
    s_mov_b64 exec, 0x33
    buffer_store_dwordx4 v[52:55], v15, {WS}, s76 offen sc1
    s_or_b32 s40, s64, s3
    s_cmp_eq_u32 s40, 0
    s_cselect_b32 s76, {WS_E}, 0x80000000
    s_mov_b64 exec, 1
    buffer_store_dword v53, v15, {WS}, s76 offen sc1
    s_mov_b64 exec, -1
    ''')
    for o in DN:
        a(o)
    WA = 72
    a(f'''
    v_lshrrev_b32 v4, 2, v2
    v_and_b32 v5, 3, v2
    v_lshlrev_b32 v6, 5, v4
    v_lshl_add_u32 v6, v5, 3, v6
    v_lshl_add_u32 v6, v3, 8, v6
    v_add_u32 v6, s68, v6
    v_lshl_add_u32 v13, v3, 2, v4
    v_mul_u32_u24 v13, 320, v13
    v_lshl_add_u32 v13, v5, 3, v13
    v_add_u32 v13, s68, v13
    v_lshlrev_b32 v14, 4, v1
    v_add_u32 v7, s68, v14
    s_waitcnt vmcnt({len(DN)+2})
    ''')
    e = a.lab('FS0')
    a.tagcheck(32, [39])
    a(f's_cbranch_vccz {e}')
    l = a.spin_begin('FS')
    a(f'buffer_load_dwordx2 v[38:39], v37, {WS}, s77 offen sc1\ns_waitcnt vmcnt(0)')
    a.tagcheck(32, [39])
    a.spin_end_vcc(l)
    a.label(e)
    a(';STAMP Fx')
    if OPT['tdma']:
        a.lds_wait(11, 32, W_GU, 4)
    a(';STAMP Fgd')
    frag = []
    for c in (0, 2, 4, 1, 3):
        for mt, base in enumerate((L_G, L_U)):
            r = WA + 8 * c + 4 * mt
            frag.append(f'ds_read_b64_tr_b16 v[{r}:{r+1}], v6 offset:{base+1024*c}')
            frag.append(f'ds_read_b64_tr_b16 v[{r+2}:{r+3}], v6 offset:{base+1024*c+128}')
    XF = 112
    a('v_and_b32 v39, 0xffff0000, v38\nv_lshlrev_b32 v38, 16, v38\nv_rcp_f32 v60, v39')
    for i in range(12):
        unpack(a, XF + 2 * i, XP + i)
        a(frag.pop(0))
    for i in range(12):
        a(f'v_pk_add_f32 {pr(XF+2*i)}, {pr(XF+2*i)}, {pr(38)} {BC} {NEG}')
        if frag:
            a(frag.pop(0))
    for i in range(12):
        a(f'v_cvt_pk_bf16_f32 v{XP+i}, v{XF+2*i}, v{XF+2*i+1}')
    for i in range(12):
        unpack(a, XF + 2 * i, XP + i)
    for i in range(12):
        a(f'v_pk_mul_f32 {pr(XF+2*i)}, {pr(XF+2*i)}, {pr(60)} {BC}')
    for i in range(12):
        a(f'v_cvt_pk_bf16_f32 v{XP+i}, v{XF+2*i}, v{XF+2*i+1}')
    a(';STAMP Fxn\nv_mov_b32 v39, v60')
    XO = 52
    for i in range(8):
        a(f'v_mov_b32_dpp v{XO+i}, v{XP+i} row_ror:8 {DPP}')
    a('s_waitcnt lgkmcnt(0)')
    for c in (0, 2, 4, 1, 3):
        xr = XP + 4 * (c // 2) if c % 2 == 0 else XO + 4 * (c // 2)
        for mt in range(2):
            acc = 60 + 4 * mt
            r = WA + 8 * c + 4 * mt
            cc = '0' if c == 0 else f'v[{acc}:{acc+3}]'
            a(f'v_mfma_f32_16x16x32_bf16 v[{acc}:{acc+3}], v[{r}:{r+3}], v[{xr}:{xr+3}], {cc}')
    WDN, R, O = 112, 72, 72
    a(f'''
    s_mov_b32 s40, 0x07060503
    s_mov_b32 s41, 0x07060502
    s_mov_b32 s43, 0x07060501
    ds_write_b128 v7, v[60:63] offset:{L_G}
    ds_write_b128 v7, v[64:67] offset:{L_G+1024}
    s_mov_b64 exec, 1
    ds_add_u32 v11, v12 offset:{W_S1}
    s_mov_b64 exec, -1
    ;STAMP Fm1
    s_waitcnt vmcnt(0)
    ;STAMP Fdma
    ''')
    if OPT['tdma']:
        a.lds_wait(11, 32, W_DN, 4)
    for nt in range(10):
        a(f'ds_read_b64_tr_b16 v[{WDN+2*nt}:{WDN+2*nt+1}], v13 offset:{L_D+32*nt}')
    a.lds_wait(11, 32, W_S1, 4)
    a(';STAMP Fs1')
    for w in range(4):
        for mt in range(2):
            a(f'ds_read_b128 v[{R+8*w+4*mt}:{R+8*w+4*mt+3}], v14 offset:{L_G+5120*w+1024*mt}')
    a('s_waitcnt lgkmcnt(0)')
    for i in range(4):
        a(f'v_pk_add_f32 {pr(R+2*i)}, {pr(R+2*i)}, {pr(R+8+2*i)}')
        a(f'v_pk_add_f32 {pr(R+16+2*i)}, {pr(R+16+2*i)}, {pr(R+24+2*i)}')
    for i in range(4):
        a(f'v_pk_add_f32 {pr(R+2*i)}, {pr(R+2*i)}, {pr(R+16+2*i)}')
    for i in range(4):
        a(f'v_cvt_pk_bf16_f32 v{R+8+i}, v{R+2*i}, v{R+2*i+1}')
    for i in range(4):
        unpack(a, R + 2 * i, R + 8 + i)
    silu(a, range(R, R + 4), range(R + 8, R + 12))
    for i in range(2):
        a(f'v_cvt_pk_bf16_f32 v{R+8+i}, v{R+2*i}, v{R+2*i+1}')
    for i in range(2):
        unpack(a, R + 2 * i, R + 8 + i)
    for i in range(2):
        a(f'v_pk_mul_f32 {pr(R+2*i)}, {pr(R+2*i)}, {pr(R+4+2*i)}')
    for i in range(2):
        a(f'v_cvt_pk_bf16_f32 v{60+i}, v{R+2*i}, v{R+2*i+1}')
    a(';STAMP Fgu')
    for nt in range(10):
        a(f'v_mfma_f32_16x16x16_bf16 v[{O+4*nt}:{O+4*nt+3}], v[{WDN+2*nt}:{WDN+2*nt+1}], v[60:61], 0')
    a('s_mov_b32 exec_lo, 0x00ff00ff\ns_mov_b32 exec_hi, 0x00ff00ff')
    for nt in range(10):
        for d, sr in enumerate((40, 41, 43)):
            a(f'v_perm_b32 v{O+4*nt+d}, v{O+4*nt+d}, v{O+4*nt+3}, s{sr}')
        a(f'v_mov_b32 v{O+4*nt+3}, s{S_EP}')
        if nt == 8:
            a('s_add_u32 s66, s66, 4096')
        a(f'buffer_store_dwordx4 v[{O+4*nt}:{O+4*nt+3}], v10, {WS}, s66 offen offset:{512*(nt%8)} sc1')
    a(f'''
    s_mov_b64 exec, -1
    ;STAMP F2
    s_cmp_ge_u32 s64, 80
    s_cbranch_scc1 K_END
    s_cmp_ge_u32 s3, 2
    s_cbranch_scc1 K_END
    ''')
    PR = 40
    a(f'''
    s_lshl_b32 s42, s64, 1
    s_add_u32 s42, s42, s3
    s_lshl_b32 s50, s42, 7
    v_mov_b32 v6, {WS_F2}
    buffer_load_dword v16, v6, {WS}, s50 offen sc1
    v_lshrrev_b32 v4, 3, v1
    v_and_b32 v15, 7, v1
    v_mul_u32_u24 v5, {PF}, v4
    v_lshl_add_u32 v5, v15, 4, v5
    s_add_u32 s40, s50, {WS_P}
    v_add_u32 v5, s40, v5
    v_and_b32 v4, 3, v4
    s_lshl_b32 s42, s42, 2
    v_add_u32 v8, s42, v4
    v_mul_u32_u24 v9, 1280, v35
    v_lshl_add_u32 v9, v8, 1, v9
    buffer_load_ushort v12, v9, s[20:23], 0 offen
    v_lshlrev_b32 v13, 1, v35
    v_and_b32 v13, 0xfffffffc, v13
    v_mul_u32_u24 v8, {RS}, v8
    v_add3_u32 v8, v8, v13, s47
    v_cmp_eq_u32 s[72:73], 1, v4
    v_cmp_eq_u32 s[74:75], 2, v4
    v_cmp_eq_u32 s[76:77], 3, v4
    v_ashrrev_i32 v20, 31, v34
    v_not_b32 v20, v20
    v_or_b32 v20, 0x80000000, v20
    v_xor_b32 v20, v20, v34
    v_and_b32 v20, 0xffff0000, v20
    v_mul_f32 v20, {NLOG2E}, v20
    v_exp_f32 v20, v20
    v_and_b32 v23, 1, v35
    v_xor_b32 v23, 1, v23
    v_lshlrev_b32 v23, 4, v23
    v_add_f32 v20, 1.0, v20
    v_rcp_f32 v20, v20
    s_or_b64 s[74:75], s[74:75], s[76:77]
    '''.replace('v_add3_u32 v8, v8, v13, s47', f's_mov_b32 s47, {WS_Y2}\nv_add3_u32 v8, v8, v13, s47'))
    a.srd(24, 52, NB)
    for i in range(12):
        a(f's_mov_b32 s{28+i}, {i*8*PF}')
    rnd(a, 20, 20)
    e = a.lab('RG0')
    a('s_waitcnt vmcnt(0)\nv_lshlrev_b32 v21, 16, v12\nv_sub_f32 v22, v21, v38')
    rnd(a, 22, 22)
    a('v_mul_f32 v22, v39, v22')
    rnd(a, 22, 22)
    a.tagcheck(18, [16])
    a(f's_cbranch_vccz {e}')
    l = a.spin_begin('RG')
    a(f'buffer_load_dword v16, v6, {WS}, s50 offen sc1\ns_waitcnt vmcnt(0)')
    a.tagcheck(18, [16])
    a.spin_end_vcc(l, 2)
    a.label(e)
    a(';STAMP Rg\ns_mov_b32 s40, 0x04000c0c\ns_mov_b32 s41, 0x0706000c')
    if OPT['rpsl']:
        a(f's_sleep {OPT["rpsl"]}')
    l = a.spin_begin('RP')
    for i in range(12):
        a(f'buffer_load_dwordx4 v[{PR+4*i}:{PR+4*i+3}], v5, {WS}, s{28+i} offen sc1')
    a('s_waitcnt vmcnt(0)')
    a.tagcheck(18, [PR + 4 * i + 3 for i in range(12)])
    a.spin_end_exec(l)
    a(f';STAMP F3\ns_mov_b32 exec_hi, 0\nbuffer_load_dword v13, v8, {WS}, 0 offen sc1\ns_mov_b32 exec_hi, -1')
    for i in range(12):
        a(f'v_perm_b32 v{PR+4*i+3}, v{PR+4*i}, v{PR+4*i+1}, s40')
    for i in range(12):
        a(f'v_perm_b32 v{PR+4*i+3}, v{PR+4*i+3}, v{PR+4*i+2}, s41')
    for n in (24, 12):
        for i in range(0, n, 2):
            a(f'v_pk_add_f32 {pr(PR+i)}, {pr(PR+i)}, {pr(PR+n+i)}')
    for st in (4, 8):
        for i in (0, 2):
            a(f'v_pk_add_f32 {pr(PR+i)}, {pr(PR+i)}, {pr(PR+st+i)}')
    for i in range(4):
        a(f'v_add_f32_dpp v{PR+i}, v{PR+i}, v{PR+i} row_ror:8 {DPP}')
    for i in range(4):
        a(f'v_mov_b32 v{PR+4+i}, v{PR+i}')
    for i in range(4):
        a(f'v_permlane16_swap_b32 v{PR+i}, v{PR+4+i}')
    for i in (0, 2):
        a(f'v_pk_add_f32 {pr(PR+i)}, {pr(PR+i)}, {pr(PR+4+i)}')
    a(f'''
    v_cndmask_b32 v{PR}, v{PR}, v{PR+1}, s[72:73]
    v_cndmask_b32 v{PR+2}, v{PR+2}, v{PR+3}, s[76:77]
    v_cndmask_b32 v{PR}, v{PR}, v{PR+2}, s[74:75]
    v_mov_b32 v{PR+1}, v{PR}
    v_permlane32_swap_b32 v{PR}, v{PR+1}
    v_add_f32 v{PR}, v{PR}, v{PR+1}
    ''')
    rnd(a, PR, PR)
    a(f'v_mul_f32 v{PR}, v{PR}, v20')
    rnd(a, PR, PR)
    a(f'v_add_f32 v{PR}, v{PR}, v22')
    rnd(a, PR, PR)
    silu(a, [PR], [PR + 1])
    e = a.lab('RY0')
    a(';STAMP Rs')
    a(f'v_mul_f32 v22, v22, v{PR}\ns_mov_b32 exec_hi, 0\ns_waitcnt vmcnt(0)\nv_cmp_eq_u32 vcc, -1, v13\ns_cbranch_vccz {e}')
    l = a.spin_begin('RY')
    a(f'buffer_load_dword v13, v8, {WS}, 0 offen sc1\ns_waitcnt vmcnt(0)\nv_cmp_eq_u32 vcc, -1, v13')
    a.spin_end_vcc(l, 2)
    a.label(e)
    a(f'''
    ;STAMP Ry
    v_lshlrev_b32 v13, v23, v13
    v_and_b32 v13, 0xffff0000, v13
    v_fma_f32 v22, v22, v13, v21
    v_cvt_pk_bf16_f32 v22, v22, v22
    buffer_store_short v22, v9, s[24:27], 0 offen
    s_endpgm
    ''')


def kernel():
    a = K()
    a.label('K_FIRST')
    a(f'''
    s_cmp_ge_u32 s2, 256
    s_cbranch_scc1 K_END
    s_load_dwordx8 s[4:11], s[0:1], 0
    s_load_dwordx4 s[12:15], s[0:1], 32
    s_load_dwordx8 s[44:51], s[0:1], 56
    s_load_dwordx2 s[52:53], s[0:1], 88
    s_load_dwordx2 s[54:55], s[0:1], 104
    v_lshrrev_b32 v1, 6, v0
    s_and_b32 s{S_X}, s2, 7
    v_readfirstlane_b32 s3, v1
    s_lshr_b32 s{S_J}, s2, 3
    s_cmp_lg_u32 s3, 0
    s_cbranch_scc1 K_NOPF
    s_getpc_b64 s[20:21]
    K_PC:
    s_sub_u32 s20, s20, K_PC-K_FIRST
    s_subb_u32 s21, s21, 0
    s_mov_b32 s22, K_END-K_FIRST
    s_mov_b32 s23, 0x20000
    s_lshl_b32 s24, s{S_J}, 10
    v_lshlrev_b32 v1, 7, v0
    s_mov_b64 exec, 0xff
    buffer_load_dword v{PFV}, v1, s[20:23], s24 offen
    s_mov_b64 exec, -1
    K_NOPF:
    s_and_b32 s{S_G}, s{S_J}, 3
    s_and_b32 s{S_TT}, s{S_J}, 24
    s_add_u32 s{S_TT}, s{S_TT}, s{S_X}
    s_lshl_b32 s{S_TT}, s{S_TT}, 1
    s_bfe_u32 s18, s{S_J}, 0x10002
    s_add_u32 s{S_TT}, s{S_TT}, s18
    ''')
    if OPT['lfirst']:
        a('s_cmp_ge_u32 s3, 4\ns_cbranch_scc1 K_T')
        ln_head(a)
        a('s_branch K_L')
        a.label('K_T')
        tile_role(a)
        a.label('K_L')
    else:
        a('s_cmp_lt_u32 s3, 4\ns_cbranch_scc1 K_L')
        tile_role(a)
        a.label('K_L')
        ln_head(a)
    ln_role(a)
    a(f's_cmp_ge_u32 s{S_J}, 20\ns_cbranch_scc1 K_FFN')
    conv_role(a)
    a.label('K_FFN')
    ffn_role(a)
    a.label('K_END')
    a('s_endpgm')
    return a


def single_module(body):
    s = HDR + f'; @launch grid=(256,1,1) block=(576,1,1) lds={LDS_BYTES}\n'
    s += f'.amdgcn_target "amdgcn-amd-amdhsa--gfx950"\n.text\n.p2align 12\n.globl {KNAME}\n.p2align 8\n.type {KNAME},@function\n{KNAME}:\n{body}'
    nv, ns, na = max_regs(body)
    s += '.section .rodata,"a"\n' + KD.format(name=KNAME, vgpr=nv, sgpr=ns, acc=(nv + 3) // 4 * 4)
    return s


if __name__ == '__main__':
    out = sys.argv[1]
    rep = []
    for o in sys.argv[2:]:
        if '=' in o:
            k_, v_ = o.split('=')
            OPT[k_] = int(v_) if v_.lstrip('-').isdigit() else v_.replace('+', ' ')
    k = kernel()
    if 'diag' in sys.argv[2:]:
        import diag
        diag.CYC = 'cyc' in sys.argv
        sel = [o for o in sys.argv[2:] if o.startswith('@')]
        diag.instrument(k, 0, {n: i for g in sel for i, n in enumerate(g[1:].split(','))})
    k.lines = [l for l in k.lines if not l.startswith(';STAMP')]
    body = k.text(rep)
    assert not re.search(r'op_sel:\[[01,]*1', body), 'crossed low-half op_sel is unsafe beside MFMA'
    open(out, 'w').write(single_module(body))
    print('wrote', out, 'regs', max_regs(body), 'nops', len(rep), sum(n for n, _ in rep), 'lines', body.count('\n'))
```

```python
import sys, re
from asmlib import *

KNAME = 'recurrent_scan__ssm_conv_h3__moe_arch_mod__prompt_kernel'
HDR = open('recurrent_scan__ssm_conv_h3__moe_arch_mod__prompt.s.ref').read().split('; Override launch')[0]

NB = 2048 * 1280
RS = 4224
WS_E = 0
WS_IDX = 4096
WS_RI = 64 << 10
WS_F2 = 128 << 10
WS_HN = 256 << 10
WS_F1 = 512 << 10
WS_UR = 1 << 20
WS_Y2 = 4 << 20
WS_P = 8 << 20
WS_SIZE = 16 << 20
PTOK = 2560
PF = 8 * PTOK
NLOG2E = 0xbfb8aa3b
INV640 = 0x3acccccd
EPS = 0x3727c5ac
SPIN = 100000

H0_OFF, H1_OFF, U_OFF, CW_LDS = 0, 4160, 8288, 12864
L_G, L_U, L_D, L_MISC = 0, 20480, 40960, 61440
L_CNT, L_CAND, L_SLOT, L_RI, L_TP = L_MISC, L_MISC + 64, L_MISC + 192, L_MISC + 320, L_MISC + 512
LDS_BYTES = L_TP + 5 * 2304
W_S0, W_S1, W_EPN, W_EP, W_RI, W_TST, W_TFL, W_CF, W_FK, W_YC, W_DMA = 0, 4, 12, 16, 20, 24, 32, 36, 40, 44, 48
W_GU, W_DN = 52, 56

OPT = dict(sleep=1, rpsl=16, prio=1, out='sc1', pfat=2, hgate=1, qgate=2, fgate=1, dmas=10, ddn=0, qe=0, hpos=-1, ycr=2, tprio=0, lfirst=1, wre=1, tdma=2, ox4=0, fke=1, thsl=2, tq=2, dnpf=0, cfe=0, ylds=0)

S_X, S_J, S_EP, S_CNT, ONES = 16, 17, 56, 57, 58
S_G, S_TT, S_RI = 74, 75, 76
C_NL2E, C_ONE = 70, 72
WS = 's[60:63]'
PFV = 71


class K(Asm):
    def __init__(self):
        super().__init__()
        self.n = 0

    def lab(self, p):
        self.n += 1
        return f'{p}_{self.n}'

    def spin_begin(self, p):
        l = self.lab(p)
        self(f's_mov_b32 s{S_CNT}, 0')
        self.label(l)
        return l

    def _tail(self, l, slp):
        self(f'''
        {f's_sleep {slp}' if slp else ''}
        s_add_u32 s{S_CNT}, s{S_CNT}, 1
        s_cmp_lt_u32 s{S_CNT}, {SPIN}
        s_cbranch_scc1 {l}
        ''')
        self.label(l + '_x')

    def spin_end_vcc(self, l, slp=None):
        self(f's_cbranch_vccz {l}_x')
        self._tail(l, OPT['sleep'] if slp is None else slp)

    def spin_end_exec(self, l, restore='-1', slp=None):
        self(f's_and_b64 exec, exec, vcc\ns_cbranch_execz {l}_x')
        self._tail(l, OPT['sleep'] if slp is None else slp)
        self(f's_mov_b64 exec, {restore}')

    def lds_wait(self, vaddr, vtmp, word, count, slp=0):
        l = self.spin_begin('LW')
        self(f'ds_read_b32 v{vtmp}, v{vaddr} offset:{word}\ns_waitcnt lgkmcnt(0)\nv_cmp_gt_u32 vcc, {count}, v{vtmp}')
        self.spin_end_vcc(l, slp)

    def lds_add(self, vaddr, vone, word):
        self(f's_mov_b64 exec, 1\nds_add_u32 v{vaddr}, v{vone} offset:{word}\ns_mov_b64 exec, -1')

    def maxtree(self, d, regs):
        regs = list(regs)
        self(f'v_max3_u32 v{d}, v{regs[0]}, v{regs[1]}, v{regs[2]}')
        regs = regs[3:]
        while len(regs) >= 2:
            self(f'v_max3_u32 v{d}, v{d}, v{regs[0]}, v{regs[1]}')
            regs = regs[2:]
        if regs:
            self(f'v_max_u32 v{d}, v{d}, v{regs[0]}')

    def tagcheck(self, d, regs):
        regs = list(regs)
        if len(regs) == 1:
            self(f'v_cmp_ne_u32 vcc, s{S_EP}, v{regs[0]}')
            return
        self.maxtree(d, regs)
        r = regs
        self(f'v_min3_u32 v{d+1}, v{r[0]}, v{r[1]}, v{r[2]}')
        r = r[3:]
        while len(r) >= 2:
            self(f'v_min3_u32 v{d+1}, v{d+1}, v{r[0]}, v{r[1]}')
            r = r[2:]
        if r:
            self(f'v_min_u32 v{d+1}, v{d+1}, v{r[0]}')
        self(f'v_xor_b32 v{d}, s{S_EP}, v{d}\nv_xor_b32 v{d+1}, s{S_EP}, v{d+1}\nv_or_b32 v{d}, v{d}, v{d+1}\nv_cmp_ne_u32 vcc, 0, v{d}')


def rnd(a, d, s):
    a(f'v_cvt_pk_bf16_f32 v{d}, v{s}, v{s}\nv_and_b32 v{d}, 0xffff0000, v{d}')


def unpack(a, d, s):
    a(f'v_lshlrev_b32 v{d}, 16, v{s}\nv_and_b32 v{d+1}, 0xffff0000, v{s}')


def pr(r):
    return f'v[{r}:{r+1}]'


DPP = 'row_mask:0xf bank_mask:0xf'
BC = 'op_sel_hi:[1,0]'
NEG = 'neg_lo:[0,1] neg_hi:[0,1]'


def rows8(a, op, reg0, vaddr, srd, mods=''):
    for i in range(8):
        so = '0' if i < 4 else 's18'
        a(f'{op} v{reg0+i}, v{vaddr}, {srd}, {so} offen offset:{1280*(i%4)} {mods}')


def weight_prefetch(a, vb, sb):
    a(f'''
    s_mul_i32 s40, s{S_J}, 60
    v_min_u32 v{vb}, 59, v0
    v_add_u32 v{vb}, s40, v{vb}
    s_mov_b32 s40, 0x5556
    v_mul_u32_u24 v{vb+1}, s40, v{vb}
    v_lshrrev_b32 v{vb+1}, 16, v{vb+1}
    s_cmp_eq_u32 s3, 0
    s_cselect_b32 s{sb}, s46, s48
    s_cselect_b32 s{sb+1}, s47, s49
    s_cmp_eq_u32 s3, 2
    s_cselect_b32 s{sb}, s50, s{sb}
    s_cselect_b32 s{sb+1}, s51, s{sb+1}
    s_cselect_b32 s40, 0, {3072-384}
    s_cselect_b32 s41, 640, 1
    s_mul_i32 s41, s41, s{S_X}
    s_mul_i32 s41, s41, 384
    s_cmp_ge_u32 s3, {3 if OPT['dnpf'] else 2}
    s_cselect_b32 s{sb+2}, 0, {640*3072}
    s_mov_b32 s{sb+3}, 0x20000
    v_mul_u32_u24 v{vb+1}, s40, v{vb+1}
    v_lshl_add_u32 v{vb}, v{vb}, 7, v{vb+1}
    buffer_load_dword v{vb+2}, v{vb}, s[{sb}:{sb+3}], s41 offen
    ''')


def tile_role(a):
    KK, VV, W, WF, KF, S, P = 8, 20, 28, 32, 40, 64, 80
    a(f'''
    s_sub_u32 s3, s3, 4
    s_mul_i32 s18, s{S_G}, 160
    s_lshl_b32 s19, s3, 5
    s_add_u32 s64, s18, s19
    s_lshl_b32 s19, s{S_TT}, 5
    v_and_b32 v0, 63, v0
    v_and_b32 v1, 15, v0
    v_lshrrev_b32 v2, 4, v0
    v_lshl_add_u32 v1, v1, 1, s64
    v_lshl_add_u32 v2, v2, 3, s19
    v_mul_u32_u24 v3, 1280, v2
    v_lshl_add_u32 v3, v1, 1, v3
    v_subrev_u32 v4, 3840, v3
    v_cmp_eq_u32 vcc, 0, v2
    v_mov_b32 v5, 0x80000000
    v_cndmask_b32 v4, v4, v5, vcc
    v_lshlrev_b32 v5, 3, v1
    s_mov_b32 s18, 5120
    s_mov_b32 s22, {NB}
    s_mov_b32 s23, 0x20000
    s_mov_b32 s26, {NB}
    s_mov_b32 s27, 0x20000
    s_mov_b32 s30, {640*8}
    s_mov_b32 s31, 0x20000
    s_waitcnt lgkmcnt(0)
    ;STAMP Targ
    s_mov_b64 s[20:21], s[6:7]
    ''')
    rows8(a, 'buffer_load_dword', KK + 3, 3, 's[20:23]')
    for i in range(3):
        a(f'buffer_load_dword v{KK+i}, v4, s[20:23], 0 offen offset:{1280*i}')
    a(f's_mov_b64 s[28:29], s[10:11]\ns_mov_b64 s[24:25], s[8:9]\nbuffer_load_dwordx4 v[{W}:{W+3}], v5, s[28:31], 0 offen')
    rows8(a, 'buffer_load_dword', VV, 3, 's[24:27]')
    a(';STAMP Tiss\ns_barrier')
    a.srd(32, 4, NB)
    QE = 98
    E = 8 * OPT['qe'] + (1 if OPT['pfat'] == 2 else 0)
    if OPT['qe']:
        rows8(a, 'buffer_load_dword', QE, 3, 's[32:35]')
    if OPT['pfat'] == 2:
        weight_prefetch(a, 95, 76)
    a.srd(36, 52, NB)
    a.srd(60, 54, WS_SIZE)
    a(f'''
    s_mul_i32 s67, s64, {RS}
    s_lshl_b32 s40, s{S_TT}, 6
    s_sub_u32 s65, s67, s40
    s_add_u32 s65, s65, {WS_UR + 63*64}
    s_add_u32 s66, s65, {16*RS}
    s_add_u32 s67, s67, s40
    s_add_u32 s67, s67, {WS_Y2}
    s_add_u32 s68, s67, {16*RS}
    v_lshrrev_b32 v6, 2, v0
    v_and_b32 v90, 3, v0
    v_mul_u32_u24 v6, {RS}, v6
    v_lshl_add_u32 v6, v90, 4, v6
    s_mul_i32 s40, s3, 2304
    s_add_u32 s40, s40, {L_TP}
    v_lshrrev_b32 v91, 3, v0
    v_add_u32 v91, v91, v0
    v_lshl_add_u32 v91, v91, 4, s40
    v_and_b32 v90, 15, v0
    v_mul_u32_u24 v90, 144, v90
    v_lshrrev_b32 v93, 4, v0
    v_lshl_add_u32 v94, v93, 4, v90
    v_add_u32 v94, s40, v94
    v_sub_u32 v93, 3, v93
    v_lshl_add_u32 v90, v93, 4, v90
    v_add_u32 v90, s40, v90
    v_mov_b32 v92, {L_CNT}
    v_mov_b32 v93, 1
    v_lshlrev_b32 v5, 4, v2
    v_add_u32 v5, {WS_RI+64}, v5
    s_lshl_b32 s40, s64, 1
    s_add_u32 s40, s40, s{S_TT}
    s_lshl_b32 s40, s40, 7
    s_add_u32 s40, s40, {WS_F1}
    v_mov_b32 v89, s40
    s_mov_b32 s{C_NL2E}, {NLOG2E}
    s_mov_b32 s{C_NL2E+1}, {NLOG2E}
    s_mov_b32 s{C_ONE}, 1.0
    s_mov_b32 s{C_ONE+1}, 1.0
    s_waitcnt vmcnt({8+E})
    ;STAMP Tk
    ''')
    for j in range(4):
        for hf in range(2):
            src = W + 2 * hf + j // 2
            a(f'v_lshlrev_b32 v{WF+2*j+hf}, 16, v{src}' if j % 2 == 0 else f'v_and_b32 v{WF+2*j+hf}, 0xffff0000, v{src}')
    for i in range(11):
        unpack(a, KF + 2 * i, KK + i)
    for t in range(8):
        a(f'v_pk_mul_f32 {pr(S+2*t)}, {pr(KF+2*t)}, {pr(WF+6)}')
    for j in (2, 1, 0):
        for t in range(8):
            a(f'v_pk_fma_f32 {pr(S+2*t)}, {pr(KF+2*(t+3-j))}, {pr(WF+2*j)}, {pr(S+2*t)}')
    a(f's_waitcnt vmcnt({E})\n;STAMP Tv')
    for t in range(8):
        unpack(a, KF + 2 * t, VV + t)
    for t in range(8):
        a(f'v_pk_mul_f32 {pr(S+2*t)}, {pr(S+2*t)}, {pr(KF+2*t)}')
    for hf in range(2):
        for m in range(4):
            a(f'v_cvt_pk_bf16_f32 v{P+4*hf+m}, v{S+2*(7-2*m)+hf}, v{S+2*(6-2*m)+hf}')
        a(f'ds_write_b128 v90, v[{P+4*hf}:{P+4*hf+3}] offset:{64*hf}')
    a(f'ds_read_b128 v[{S}:{S+3}], v91\nds_read_b128 v[{S+4}:{S+7}], v91 offset:1152')
    for hf in range(2):
        a(f's_waitcnt lgkmcnt({1-hf})\nbuffer_store_dwordx4 v[{S+4*hf}:{S+4*hf+3}], v6, {WS}, s{65+hf} offen sc1')
    a(';STAMP T1')
    Q, ST, X, F, T = 8, 16, 32, 48, 64

    def stl():
        for i in range(4):
            a(f'buffer_load_dwordx4 v[{ST+4*i}:{ST+4*i+3}], v5, {WS}, 0 offen offset:{16*i} sc1')
    ste = OPT['qgate'] < 0
    a.lds_add(92, 93, W_TST)
    a.lds_wait(92, 88, W_EPN, 1)
    if ste:
        a.lds_wait(92, 88, W_TST, 5)
        stl()
    a(f'''
    ds_read_b32 v88, v92 offset:{W_EP}
    s_waitcnt vmcnt({4 if ste else 0}) lgkmcnt(0)
    ;STAMP Tack
    s_mov_b64 exec, 1
    buffer_store_dword v88, v89, {WS}, 0 offen sc1
    ds_add_u32 v92, v93 offset:{W_TFL}
    s_mov_b64 exec, -1
    v_readfirstlane_b32 s{S_EP}, v88
    ''')
    if OPT['qgate'] > 0:
        a.lds_wait(92, 88, W_TST if OPT['qgate'] == 1 else W_TFL, 5)
    if OPT['tdma']:
        e, w4 = a.lab('TD'), a.lab('TD')
        a(f'''
        s_cmp_lt_u32 s{S_J}, 20
        s_cbranch_scc1 {e}
        s_cmp_eq_u32 s3, 4
        s_cbranch_scc1 {w4}
        s_sub_u32 s40, s{S_J}, 20
        s_mul_i32 s41, s{S_X}, 12
        s_add_u32 s40, s40, s41
        v_lshrrev_b32 v8, 1, v0
        v_mul_u32_u24 v8, 3072, v8
        v_and_b32 v9, 1, v0
        v_lshl_add_u32 v8, v9, 4, v8
        s_mul_i32 s41, s3, {160*3072}
        s_lshl_b32 s42, s40, 5
        s_add_u32 s41, s41, s42
        s_mul_i32 s42, s3, 5120
        s_mul_i32 s40, s40, {16*1280}
        s_mul_i32 s43, s3, 320
        s_add_u32 s40, s40, s43
        s_mov_b32 s43, 0xcccd
        ''')
        a.srd(20, 46, 640 * 3072)
        a.srd(24, 48, 640 * 3072)
        a.srd(28, 50, 1536 * 1280)
        for c in range(5):
            a(f'''
            v_add_u32 v{10+c}, {64*c}, v0
            v_mul_u32_u24 v9, s43, v{10+c}
            v_lshrrev_b32 v9, 20, v9
            v_mul_u32_u24 v9, {1280-320}, v9
            v_lshl_add_u32 v{10+c}, v{10+c}, 4, v9
            ''')
        if OPT['tq'] == 2:
            stl()
            rows8(a, 'buffer_load_dword', QE, 3, 's[32:35]')
        a.lds_wait(92, 88, W_FK, 4)
        for c in range(5):
            a(f's_add_u32 m0, s42, {L_G + 1024*c}\ns_nop 0\nbuffer_load_dwordx4 v8, s[20:23], s41 offen lds')
            a(f's_add_u32 m0, s42, {L_U + 1024*c}\ns_nop 0\nbuffer_load_dwordx4 v8, s[24:27], s41 offen lds\ns_add_u32 s41, s41, {32*3072}')
        if OPT['tq'] == 1:
            stl()
            rows8(a, 'buffer_load_dword', QE, 3, 's[32:35]')
        if OPT['tdma'] == 2:
            a.lds_wait(92, 88, W_DMA, 1)
        for c in range(5):
            a(f's_add_u32 m0, s42, {L_D + 1024*c}\ns_nop 0\nbuffer_load_dwordx4 v{10+c}, s[28:31], s40 offen lds')
        a('s_waitcnt vmcnt(5)')
        a.lds_add(92, 93, W_GU)
        a('s_waitcnt vmcnt(0)')
        a.lds_add(92, 93, W_DN)
        skipq = a.lab('TD')
        if OPT['tq']:
            a(f's_branch {skipq}')
        a.label(w4)
        if OPT['tq'] == 0:
            a.lds_wait(92, 88, W_DN, 4, 2)
        elif OPT['tq'] == 1:
            a.lds_wait(92, 88, W_FK, 4, 2)
            a('s_sleep 8')
        a.label(e)
    if ste:
        for t in range(8):
            unpack(a, X + 2 * t, QE + t)
        a('s_waitcnt vmcnt(1)')
    else:
        stl()
        if OPT['qe']:
            for t in range(8):
                unpack(a, X + 2 * t, QE + t)
        else:
            rows8(a, 'buffer_load_dword', QE, 3, 's[32:35]')
        a('s_waitcnt vmcnt(0)')
    if OPT['tdma'] and OPT['tq']:
        a.label(skipq)
    e = a.lab('TS0')
    a.tagcheck(T + 8, [ST + 2 * i + 1 for i in range(8)])
    a(f's_cbranch_vccz {e}\ns_mov_b64 exec, vcc')
    l = a.spin_begin('TS')
    stl()
    a('s_waitcnt vmcnt(0)')
    a.tagcheck(T + 8, [ST + 2 * i + 1 for i in range(8)])
    a.spin_end_exec(l)
    a.label(e)
    a(';STAMP Tst')
    if OPT['tprio']:
        a('s_setprio 3')
    if OPT['pfat'] == 0:
        weight_prefetch(a, 95, 76)
    for t in range(8):
        a(f'v_and_b32 v{T+2*t}, 0xffff0000, v{ST+2*t}\nv_lshlrev_b32 v{ST+2*t}, 16, v{ST+2*t}\nv_rcp_f32 v{T+2*t}, v{T+2*t}')
    if not OPT['qe']:
        for t in range(8):
            unpack(a, X + 2 * t, QE + t)
    for t in range(8):
        a(f'v_pk_add_f32 {pr(F+2*t)}, {pr(X+2*t)}, {pr(ST+2*t)} {BC} {NEG}')

    def round_pairs(base):
        for t in range(8):
            a(f'v_cvt_pk_bf16_f32 v{Q+t}, v{base+2*t}, v{base+2*t+1}')
        for t in range(8):
            unpack(a, base + 2 * t, Q + t)
    round_pairs(F)
    for t in range(8):
        a(f'v_pk_mul_f32 {pr(F+2*t)}, {pr(F+2*t)}, {pr(T+2*t)} {BC}')
    round_pairs(F)
    for t in range(8):
        a(f'v_pk_mul_f32 {pr(T+2*t)}, {pr(F+2*t)}, s[{C_NL2E}:{C_NL2E+1}]')
    for i in range(16):
        a(f'v_exp_f32 v{T+i}, v{T+i}')
    for t in range(8):
        a(f'v_pk_mul_f32 {pr(F+2*t)}, {pr(F+2*t)}, {pr(F+2*t)}')
        a(f'v_pk_add_f32 {pr(T+2*t)}, {pr(T+2*t)}, s[{C_ONE}:{C_ONE+1}]')
    for i in range(16):
        a(f'v_rcp_f32 v{T+i}, v{T+i}')
    for t in range(8):
        a(f'v_pk_mul_f32 {pr(F+2*t)}, {pr(F+2*t)}, {pr(T+2*t)}')
    a(';STAMP T2')
    if OPT['tprio']:
        a('s_setprio 0')
    if OPT['pfat'] == 1:
        weight_prefetch(a, 95, 76)
    AD, Y = 16, 80
    if OPT['ox4']:
        a(f'''
        v_lshrrev_b32 v24, 2, v0
        v_and_b32 v25, 3, v0
        s_lshl_b32 s40, s{S_TT}, 5
        v_add_u32 v26, s40, v24
        v_mul_u32_u24 v16, 1280, v26
        v_lshl_add_u32 v16, v25, 4, v16
        s_lshl_b32 s40, s64, 1
        v_add_u32 v16, s40, v16
        v_add_u32 v17, {16*1280}, v16
        s_mul_i32 s40, s3, 2304
        s_add_u32 s40, s40, {L_TP}
        v_mul_u32_u24 v18, 72, v24
        v_lshl_add_u32 v18, v25, 4, v18
        v_add_u32 v18, s40, v18
        v_lshrrev_b32 v19, 4, v0
        v_mul_u32_u24 v19, {8*72}, v19
        v_and_b32 v25, 15, v0
        v_lshl_add_u32 v19, v25, 2, v19
        v_add_u32 v19, s40, v19
        ''')
    else:
        for t in range(8):
            a(f'v_mov_b32 v{AD+t}, v3')
    o, e = a.lab('TO'), a.lab('TE')
    a(f'''
    v_and_b32 v8, 7, v0
    v_lshlrev_b32 v13, 3, v8
    v_lshlrev_b32 v8, 2, v8
    v_lshlrev_b32 v9, 7, v0
    s_lshl_b32 s41, s64, 5
    s_add_u32 s41, s41, {WS_F2}
    s_lshl_b32 s40, s{S_X}, 7
    s_add_u32 s40, s40, {WS_IDX}
    s_lshl_b32 s42, s{S_TT}, 5
    s_sub_u32 s42, 2016, s42
    s_cmp_ge_u32 s{S_J}, 20
    s_cbranch_scc1 {o}
    ''')
    a.lds_wait(92, 11, W_YC, 4, 4)
    l = a.spin_begin('TI')
    a(f'buffer_load_dwordx2 v[10:11], v13, {WS}, s40 offen sc1\ns_waitcnt vmcnt(0)')
    a.tagcheck(14, [11])
    a.spin_end_vcc(l, 2)
    a(f's_branch {e}')
    a.label(o)
    a.lds_wait(92, 11, W_DMA, 1, 4)
    a(f'ds_read_b32 v10, v8 offset:{L_SLOT}\ns_waitcnt lgkmcnt(0)')
    a.label(e)
    e = a.lab('TM')
    a(f'''
    s_mov_b64 exec, 0xff
    buffer_load_dword v12, v9, {WS}, s41 offen sc1
    s_mov_b64 exec, -1
    v_and_b32 v10, 0x7ff, v10
    v_subrev_u32 v11, s42, v10
    v_cmp_gt_u32 vcc, 32, v11
    s_cbranch_vccz {e}
    v_sub_u32 v10, 2047, v10
    v_mov_b32 v7, 0
    ''')
    for k in range(8):
        a(f'v_readlane_b32 s{44+k}, v10, {k}')
    if OPT['ox4']:
        a('v_mov_b32 v8, 0x80000000\nv_add_u32 v27, 16, v26')
        for k in range(8):
            a(f'''
            v_cmp_eq_u32 vcc, s{44+k}, v26
            v_cmp_eq_u32 s[76:77], s{44+k}, v27
            v_cndmask_b32 v16, v16, v8, vcc
            v_cndmask_b32 v17, v17, v8, s[76:77]
            ''')
    else:
        for k in range(8):
            a(f'''
            v_sub_u32 v8, s{44+k}, v2
            v_cmp_gt_u32 vcc, 8, v8
            v_lshlrev_b32 v8, v8, 1
            v_cndmask_b32 v8, 0, v8, vcc
            v_or_b32 v7, v7, v8
            ''')
        for t in range(8):
            a(f'v_bfe_i32 v{AD+t}, v7, {t}, 1\nv_and_b32 v{AD+t}, 0x80000000, v{AD+t}\nv_or_b32 v{AD+t}, v{AD+t}, v3')
    a.label(e)
    e = a.lab('TF0')
    a('s_mov_b64 exec, 0xff\ns_waitcnt vmcnt(0)')
    a.tagcheck(14, [12])
    a(f's_and_b64 exec, exec, vcc\ns_cbranch_execz {e}')
    l = a.spin_begin('TF')
    a(f'buffer_load_dword v12, v9, {WS}, s41 offen sc1\ns_waitcnt vmcnt(0)')
    a.tagcheck(14, [12])
    a.spin_end_exec(l, slp=2)
    a.label(e)
    a('s_mov_b64 exec, -1')
    a(';STAMP Tix')
    if OPT['hpos'] < 0:
        a('s_mov_b32 exec_lo, 0\ns_mov_b32 exec_hi, 0x80000000')
        l = a.spin_begin('TH')
        a(f'buffer_load_dword v9, v6, {WS}, s68 offen offset:12 sc1\ns_waitcnt vmcnt(0)\nv_cmp_eq_u32 vcc, -1, v9')
        a.spin_end_exec(l, slp=OPT['thsl'])
    else:
        a(f's_lshr_b32 s40, s64, 2\ns_add_u32 s40, s40, s{S_X}\ns_lshl_b32 s40, s40, 7\nv_mov_b32 v8, {WS_HN}\ns_mov_b64 exec, 1')
        l = a.spin_begin('TH')
        a(f'buffer_load_dword v9, v8, {WS}, s40 offen sc1\ns_waitcnt vmcnt(0)')
        a.tagcheck(14, [9])
        a.spin_end_exec(l)
    a(';STAMP Th')
    l = a.spin_begin('TY')
    a(f'buffer_load_dwordx4 v[{Y}:{Y+3}], v6, {WS}, s67 offen sc1')
    a(f'buffer_load_dwordx4 v[{Y+4}:{Y+7}], v6, {WS}, s68 offen sc1')
    a('s_waitcnt vmcnt(0)')
    a.maxtree(8, range(Y, Y + 8))
    a('v_cmp_eq_u32 vcc, -1, v8')
    a.spin_end_exec(l)
    a(f''';STAMP T3
    ds_write_b128 v91, v[{Y}:{Y+3}]
    ds_write_b128 v91, v[{Y+4}:{Y+7}] offset:1152
    ds_read_b128 v[{Y}:{Y+3}], v94
    ds_read_b128 v[{Y+4}:{Y+7}], v94 offset:64
    s_waitcnt lgkmcnt(0)
    ''')
    for t in range(8):
        for hf in range(2):
            src = Y + 4 * hf + t // 2
            a(f'v_lshlrev_b32 v{T+2*t+hf}, 16, v{src}' if t % 2 == 0 else f'v_and_b32 v{T+2*t+hf}, 0xffff0000, v{src}')
        a(f'v_pk_fma_f32 {pr(T+2*t)}, {pr(T+2*t)}, {pr(F+2*t)}, {pr(X+2*t)}')
        a(f'v_cvt_pk_bf16_f32 v{Q+t}, v{T+2*t}, v{T+2*t+1}')
        so = '0' if t < 4 else 's18'
        if OPT['ox4']:
            a(f'ds_write_b32 v19, v{Q+t} offset:{72*t}')
        else:
            a(f'buffer_store_dword v{Q+t}, v{AD+t}, s[36:39], {so} offen offset:{1280*(t%4)}')
    if OPT['ox4']:
        a(f'''
        ds_read2_b64 v[{Y}:{Y+3}], v18 offset0:0 offset1:1
        ds_read2_b64 v[{Y+4}:{Y+7}], v18 offset0:{16*72//8} offset1:{16*72//8+1}
        s_waitcnt lgkmcnt(1)
        buffer_store_dwordx4 v[{Y}:{Y+3}], v16, s[36:39], 0 offen {OPT["out"]}
        s_waitcnt lgkmcnt(0)
        buffer_store_dwordx4 v[{Y+4}:{Y+7}], v17, s[36:39], 0 offen {OPT["out"]}
        ''')
    a('s_endpgm')


LX, LW, LF, LA = 72, 84, 96, 120
HD, HX = 40, 56


def ln_head(a):
    a(f'''
    s_lshl_b32 s{S_RI}, s{S_TT}, 2
    s_add_u32 s{S_RI}, s{S_RI}, s{S_G}
    s_lshl_b32 s18, s{S_RI}, 3
    s_lshl_b32 s19, s3, 1
    s_add_u32 s18, s18, s19
    v_and_b32 v1, 63, v0
    v_lshrrev_b32 v2, 5, v1
    v_add_u32 v2, s18, v2
    v_and_b32 v3, 31, v1
    v_lshlrev_b32 v4, 4, v3
    v_lshlrev_b32 v5, 3, v3
    v_mul_u32_u24 v6, 1280, v2
    v_add_u32 v7, v6, v5
    v_add_u32 v6, v6, v4
    v_mov_b32 v12, 0
    v_mov_b32 v13, 0
    v_mov_b32 v14, 0
    v_mov_b32 v15, 0
    v_mov_b32 v11, {L_CNT}
    s_waitcnt lgkmcnt(0)
    ''')
    a.srd(20, 4, NB)
    a(f'''
    buffer_load_dwordx4 v[{LX}:{LX+3}], v6, s[20:23], 0 offen
    buffer_load_dwordx4 v[{LX+4}:{LX+7}], v6, s[20:23], 0 offen offset:512
    buffer_load_dwordx2 v[{LX+8}:{LX+9}], v7, s[20:23], 0 offen offset:1024
    ''')
    a.srd(24, 44, 1280)
    if OPT['wre']:
        a(wr_loads())


def wr_loads():
    return f'''
    buffer_load_dwordx4 v[{LW}:{LW+3}], v4, s[24:27], 0 offen
    buffer_load_dwordx4 v[{LW+4}:{LW+7}], v4, s[24:27], 0 offen offset:512
    buffer_load_dwordx2 v[{LW+8}:{LW+9}], v5, s[24:27], 0 offen offset:1024
    '''


def ln_role(a):
    A = LA
    a(f'''
    ds_write_b128 v11, v[12:15]
    ds_write_b128 v11, v[12:15] offset:16
    ds_write_b128 v11, v[12:15] offset:32
    ds_write_b128 v11, v[12:15] offset:48
    ''')
    a.srd(60, 54, WS_SIZE)
    a(f'''
    s_waitcnt lgkmcnt(0)
    s_barrier
    s_load_dword s{S_EP}, s[54:55], {WS_E}
    {'' if OPT['wre'] else wr_loads()}
    v_mov_b32 v18, 1
    s_mov_b32 s{ONES}, 0x3f803f80
    s_mov_b32 s41, {INV640}
    s_waitcnt vmcnt(3)
    ;STAMP Lq
    v_dot2_f32_bf16 v{A}, v{LX}, s{ONES}, 0
    ''')
    for i in range(1, 10):
        a(f'v_dot2_f32_bf16 v{A}, v{LX+i}, s{ONES}, v{A}')
    for i in range(3):
        unpack(a, LF + 2 * i, LX + i)
    for n, sh in enumerate((8, 4, 2, 1)):
        a(f'v_add_f32_dpp v{A}, v{A}, v{A} row_ror:{sh} {DPP}')
        unpack(a, LF + 2 * (3 + n), LX + 3 + n)
    a(f'v_mov_b32 v{A+1}, v{A}')
    unpack(a, LF + 14, LX + 7)
    a(f'v_permlane16_swap_b32 v{A}, v{A+1}')
    unpack(a, LF + 16, LX + 8)
    a(f'v_add_f32 v{A}, v{A}, v{A+1}')
    unpack(a, LF + 18, LX + 9)
    a(f'v_mul_f32 v{A}, s41, v{A}')
    rnd(a, A + 2, A)
    a(f'v_sub_f32 v{A}, v{A}, v{A+2}')
    for i in range(10):
        a(f'v_pk_add_f32 {pr(LF+2*i)}, {pr(LF+2*i)}, {pr(A+2)} {BC} {NEG}')
    a(f'v_pk_mul_f32 {pr(A+4)}, {pr(LF)}, {pr(LF)}')
    for i in range(1, 10):
        a(f'v_pk_fma_f32 {pr(A+4)}, {pr(LF+2*i)}, {pr(LF+2*i)}, {pr(A+4)}')
    a(f'v_add_f32 v{A+4}, v{A+4}, v{A+5}')
    cv = [f'v_cvt_pk_bf16_f32 v{LX+i}, v{LF+2*i}, v{LF+2*i+1}' for i in range(10)]
    a(cv.pop(0) + '\n' + cv.pop(0))
    for sh in (8, 4, 2, 1):
        a(f'v_add_f32_dpp v{A+4}, v{A+4}, v{A+4} row_ror:{sh} {DPP}')
        a(cv.pop(0) + '\n' + cv.pop(0))
    a(f'v_mov_b32 v{A+1}, v{A+4}')
    unpack(a, LF, LX)
    a(f'''
    v_permlane16_swap_b32 v{A+4}, v{A+1}
    v_add_f32 v{A+4}, v{A+4}, v{A+1}
    v_mul_f32 v{A+4}, s41, v{A+4}
    v_fma_f32 v{A+4}, -v{A}, v{A}, v{A+4}
    v_max_f32 v{A+4}, 0, v{A+4}
    ''')
    rnd(a, A + 4, A + 4)
    a(f'v_add_f32 v{A+4}, {EPS}, v{A+4}')
    rnd(a, A + 4, A + 4)
    a(f'v_sqrt_f32 v{A+4}, v{A+4}')
    unpack(a, LF + 2, LX + 1)
    rnd(a, A + 4, A + 4)
    a(f'v_rcp_f32 v{A+6}, v{A+4}')
    for i in range(2, 10):
        unpack(a, LF + 2 * i, LX + i)
    for i in range(10):
        a(f'v_pk_mul_f32 {pr(LF+2*i)}, {pr(LF+2*i)}, {pr(A+6)} {BC}')
    for i in range(10):
        a(f'v_cvt_pk_bf16_f32 v{LX+i}, v{LF+2*i}, v{LF+2*i+1}')
    a(f'''
    s_waitcnt vmcnt(0) lgkmcnt(0)
    s_add_u32 s{S_EP}, s{S_EP}, 1
    v_mov_b32 v17, s{S_EP}
    s_mov_b64 exec, 1
    ds_write_b32 v11, v17 offset:{W_EP}
    ds_write_b32 v11, v18 offset:{W_EPN}
    s_mov_b64 exec, -1
    v_dot2_f32_bf16 v{A+6}, v{LX}, v{LW}, 0
    ''')
    for i in range(1, 10):
        a(f'v_dot2_f32_bf16 v{A+6}, v{LX+i}, v{LW+i}, v{A+6}')
    fill = [f'v_lshrrev_b32 v{A+2}, 16, v{A+2}', f'v_or_b32 v{LF}, v{A+2}, v{A+4}', f'v_and_b32 v{LF+4}, 7, v2',
            f'v_lshlrev_b32 v{LF+4}, 3, v{LF+4}', f'v_mov_b32 v{LF+1}, s{S_EP}', f'v_mov_b32 v{LF+3}, s{S_EP}',
            f'v_lshlrev_b32 v{LF+6}, 4, v1', f'v_sub_u32 v{A+7}, 2047, v2', f's_lshl_b32 s40, s{S_RI}, 7', f's_add_u32 s40, s40, {WS_RI}',
            's_nop 0']
    a('\n'.join(fill[:3]))
    fill = fill[3:]
    for sh in (8, 4, 2, 1):
        a(f'v_add_f32_dpp v{A+6}, v{A+6}, v{A+6} row_ror:{sh} {DPP}')
        a(fill.pop(0) + '\n' + fill.pop(0))
    a(f'''
    v_mov_b32 v{A+1}, v{A+6}
    v_permlane16_swap_b32 v{A+6}, v{A+1}
    v_add_f32 v{A+6}, v{A+6}, v{A+1}
    v_add_f32 v{A+6}, 0, v{A+6}
    v_cvt_pk_bf16_f32 v{A+6}, v{A+6}, v{A+6}
    v_ashrrev_i32 v{A+1}, 31, v{A+6}
    v_or_b32 v{A+1}, 0x80000000, v{A+1}
    v_xor_b32 v{A+6}, v{A+6}, v{A+1}
    v_and_b32 v{A+6}, 0xffff0000, v{A+6}
    v_or_b32 v{LF+2}, v{A+6}, v{A+7}
    s_mov_b32 exec_lo, 1
    s_mov_b32 exec_hi, 1
    ds_write_b64 v{LF+4}, v[{LF+2}:{LF+3}] offset:{L_RI}
    ds_write_b64 v{LF+4}, v[{LF}:{LF+1}] offset:{L_RI+64}
    s_mov_b32 exec_hi, 0
    ds_add_rtn_u32 v18, v11, v18 offset:{W_RI}
    s_mov_b64 exec, 0xff
    ds_read_b128 v[{LF+12}:{LF+15}], v{LF+6} offset:{L_RI}
    s_waitcnt lgkmcnt(0)
    v_readfirstlane_b32 s41, v18
    s_cmp_eq_u32 s41, 3
    s_cselect_b32 s40, s40, 0x80000000
    buffer_store_dwordx4 v[{LF+12}:{LF+15}], v{LF+6}, {WS}, s40 offen sc1
    ;STAMP Lri
    s_mov_b64 exec, -1
    ''')


def lds_schedule(a, ops):
    issued, pos, done = 0, {}, 0
    for o in ops:
        if o[0] == 'ld':
            a(o[1])
            issued += 1
            pos[o[2]] = issued
        elif o[0] == 'raw':
            a(o[1])
        else:
            needp = max(pos[k] for k in o[2])
            if needp > done:
                n = min(issued - needp, 15)
                a(f's_waitcnt lgkmcnt({n})')
                done = issued - n
            a(o[1])


def conv_role(a):
    AA, GA = 136, 140
    ACC, AF, GF = 8, 40, 72
    a(f'''
    s_mul_i32 s18, s{S_X}, 80
    s_lshl_b32 s19, s{S_J}, 2
    s_add_u32 s19, s19, s3
    s_add_u32 s64, s18, s19
    s_lshl_b32 s65, s64, 12
    v_lshlrev_b32 v8, 4, v1
    ''')
    a.srd(28, 12, NB)
    if OPT['hgate']:
        a.lds_wait(11, 16, W_TST if OPT['hgate'] == 1 else W_TFL, 5)
    for m in range(4):
        a(f'buffer_load_dwordx4 v[{HD+4*m}:{HD+4*m+3}], v8, s[28:31], s65 offen offset:{1024*m}')
    a(f'''
    s_mul_i32 s66, s64, {RS}
    s_mul_i32 s67, s3, {CW_LDS}
    s_lshl_b32 s40, s64, 1
    s_and_b32 s40, s40, 0xfffffffc
    s_add_u32 s14, s14, s40
    s_addc_u32 s15, s15, 0
    s_load_dword s68, s[14:15], 0
    v_add_u32 v9, s67, v8
    s_mov_b64 exec, 0x3fffffff
    ds_write_b128 v9, v[12:15] offset:{U_OFF+4096}
    s_mov_b64 exec, 3
    ds_write_b128 v9, v[12:15] offset:{H0_OFF}
    ds_write_b128 v9, v[12:15] offset:{H1_OFF}
    s_mov_b64 exec, -1
    v_mov_b32 v{GA+3}, {L_CNT}
    v_and_b32 v10, 15, v1
    v_lshrrev_b32 v11, 4, v1
    v_and_b32 v16, 1, v10
    v_add_u32 v{AA}, v10, v16
    v_lshlrev_b32 v{AA}, 1, v{AA}
    v_lshl_add_u32 v{AA}, v11, 4, v{AA}
    v_xor_b32 v16, 1, v16
    v_mul_u32_u24 v16, {H1_OFF}, v16
    v_add3_u32 v{AA}, v{AA}, v16, s67
    v_add_u32 v{AA+1}, 1024, v{AA}
    v_add_u32 v{AA+2}, 2048, v{AA}
    v_add_u32 v{AA+3}, 3072, v{AA}
    v_lshlrev_b32 v{GA}, 5, v10
    v_sub_u32 v{GA}, {U_OFF+480}, v{GA}
    v_lshl_add_u32 v{GA}, v11, 4, v{GA}
    v_add_u32 v{GA}, s67, v{GA}
    v_lshlrev_b32 v{GA+1}, 5, v10
    v_lshl_add_u32 v{GA+2}, v11, 3, v{GA+1}
    v_sub_u32 v{GA+2}, {U_OFF+2*2044-3584}, v{GA+2}
    v_add_u32 v{GA+2}, s67, v{GA+2}
    ''')
    if OPT['ylds']:
        a(f'''
        v_lshl_add_u32 v{GA+1}, v11, 3, v{GA+1}
        v_lshrrev_b32 v16, 2, v10
        v_lshl_add_u32 v{GA+1}, v16, 4, v{GA+1}
        v_add_u32 v{GA+1}, s67, v{GA+1}
        v_lshrrev_b32 v16, 3, v1
        v_add_u32 v16, v16, v1
        v_lshl_add_u32 v{GA+9}, v16, 4, s67
        ''')
    else:
        a(f'''
        v_and_b32 v16, 1, v11
        v_lshl_add_u32 v{GA+1}, v16, 9, v{GA+1}
        v_lshrrev_b32 v16, 1, v11
        v_lshl_add_u32 v{GA+1}, v16, 4, v{GA+1}
        ''')
    a(f'''
    v_mov_b32 v12, 1
    s_lshr_b32 s43, s64, 5
    s_lshl_b32 s43, s43, 13
    s_add_u32 s43, s43, {WS_F1}
    v_lshlrev_b32 v19, 7, v1
    s_waitcnt vmcnt(0)
    ;STAMP Ch
    ''')
    if OPT['cfe']:
        e = a.lab('CA')
        a(f'v_mov_b32 v17, 0\ns_cmp_lg_u32 s3, 0\ns_cbranch_scc1 {e}')
        a.lds_wait(GA + 3, 17, W_TFL, 5)
        a(f'buffer_load_dword v17, v19, {WS}, s43 offen sc1')
        a.label(e)
    for m in range(4):
        a(f'v_mov_b32_dpp v{HX+m}, v{HD+4*m} wave_shl:1 {DPP}')
    for m in range(3):
        a(f'v_readlane_b32 s{40+m}, v{HD+4*m+4}, 0')
    for m in range(3):
        a(f'v_writelane_b32 v{HX+m}, s{40+m}, 63')
    for m in range(4):
        a(f'ds_write_b128 v9, v[{HD+4*m}:{HD+4*m+3}] offset:{H0_OFF+32+1024*m}')
        T = 20 + 4 * m
        for d in range(4):
            hi = HD + 4 * m + d + 1 if d < 3 else HX + m
            a(f'v_alignbyte_b32 v{T+d}, v{hi}, v{HD+4*m+d}, 2')
        a(f'ds_write_b128 v9, v[{T}:{T+3}] offset:{H1_OFF+32+1024*m}')
    a(f'''
    v_lshlrev_b32 v16, 16, v{HD}
    s_mov_b64 exec, 1
    ds_write_b32 v9, v16 offset:{H1_OFF+28}
    s_mov_b64 exec, -1
    ''')

    def ldA(g, rho):
        o = 128 * (g & 1) + 16 * rho
        r = AF + 4 * g
        return [('ld', f'ds_read2_b32 v[{r}:{r+1}], v{AA+g//2} offset0:{o} offset1:{o+1}', ('A0', g, rho)),
                ('ld', f'ds_read2_b32 v[{r+2}:{r+3}], v{AA+g//2} offset0:{o+2} offset1:{o+3}', ('A', g, rho))]

    def greg(d, rho):
        return GF + 4 * d + 32 * (rho & 1)

    def ldG(d, rho):
        r = greg(d, rho)
        return [('ld', f'ds_read_b128 v[{r}:{r+3}], v{GA} offset:{512*(7-d)+64*rho}', ('G', d, rho))]
    for g in range(7, -1, -1):
        for o in ldA(g, 0):
            a(o[1])
    a(f's_add_u32 s40, s66, {WS_UR}\ns_add_u32 m0, s67, {U_OFF}')
    o, e = a.lab('CO'), a.lab('CE')
    a(f's_cmp_lg_u32 s3, 0\ns_cbranch_scc1 {o}')
    if OPT['cfe']:
        ok = a.lab('CK')
        a('s_waitcnt vmcnt(0)')
        a.tagcheck(18, [17])
        a(f's_cbranch_vccz {ok}\ns_mov_b64 exec, vcc')
    else:
        a.lds_wait(GA + 3, 17, W_TFL, 5)
    l = a.spin_begin('CF')
    a(f'buffer_load_dword v17, v19, {WS}, s43 offen sc1\ns_waitcnt vmcnt(0)')
    a.tagcheck(18, [17])
    a.spin_end_exec(l)
    if OPT['cfe']:
        a.label(ok)
    a(f'ds_write_b32 v{GA+3}, v12 offset:{W_CF}\ns_branch {e}')
    a.label(o)
    a.lds_wait(GA + 3, 17, W_CF, 1)
    a.label(e)
    a(';STAMP Cfl')
    for m in (3, 2, 1, 0):
        a(f'buffer_load_dwordx4 v8, {WS}, s40 offen offset:{1024*m} sc1 lds')
    if OPT['prio']:
        a(f's_setprio {OPT["prio"]}')
    a(f'''
    s_lshr_b32 s42, s64, 2
    s_lshl_b32 s42, s42, 7
    s_add_u32 s42, s42, {WS_F2}
    s_lshr_b32 s43, s64, 5
    s_lshl_b32 s43, s43, 10
    s_add_u32 s43, s43, {WS_HN}
    s_and_b32 s41, s64, 31
    s_cmp_eq_u32 s41, 31
    s_cselect_b32 s43, s43, 0x80000000
    v_mov_b32 v{GA+4}, 1
    v_mov_b32 v{GA+5}, s{S_EP}
    v_mov_b32 v{GA+6}, 0
    v_mov_b32 v12, -1
    v_mov_b32 v13, -1
    v_mov_b32 v14, -1
    v_mov_b32 v15, -1
    s_and_b32 s41, s64, 1
    s_lshl_b32 s41, s41, 4
    s_waitcnt lgkmcnt(0)
    s_lshr_b32 s68, s68, s41
    s_and_b32 s68, s68, 0xffff
    s_lshl_b32 s69, s68, 16
    s_add_u32 s40, s66, {WS_Y2}
    s_waitcnt vmcnt(0)
    ;STAMP C1
    ''')
    ops = []
    for d in range(8):
        ops += ldG(d, 0)
    clr = [('raw', f'buffer_store_dwordx4 v[12:15], v{GA+7}, {WS}, s40 offen offset:{1024*m} sc1') for m in range(4)]
    a(f'v_mov_b32 v{GA+7}, v8')
    first, pend, nm = set(), [], 0
    a(f'v_mov_b32 v{GA+8}, v19')
    for rho in range(8):
        nxt = rho + 1 < 8
        if rho == OPT['ycr']:
            ops.append(('ld', f's_waitcnt vmcnt(0)\ns_mov_b64 exec, 1\nds_add_rtn_u32 v{GA+4}, v{GA+3}, v{GA+4} offset:{W_YC}\ns_mov_b64 exec, -1', 'yc'))
        if rho == OPT['ycr'] + 1:
            ops.append(('mfma', f'v_readfirstlane_b32 s41, v{GA+4}\ns_cmp_eq_u32 s41, 3\ns_cselect_b32 s42, s42, 0x80000000\ns_mov_b64 exec, 1\nbuffer_store_dword v{GA+5}, v{GA+6}, {WS}, s42 offen sc1\ns_mov_b64 exec, -1', ['yc']))
        for g in range(7, -1, -1):
            for d in range(8 - g):
                i = g + d
                c = f'v[{ACC+4*i}:{ACC+4*i+3}]' if i in first else '0'
                first.add(i)
                keys = [('G', d, rho)] + ([('A', g, rho)] if rho else [])
                r = greg(d, rho)
                ops.append(('mfma', f'v_mfma_f32_16x16x32_bf16 v[{ACC+4*i}:{ACC+4*i+3}], v[{AF+4*g}:{AF+4*g+3}], v[{r}:{r+3}], {c}', keys))
                if pend:
                    ops.append(pend.pop(0))
                nm += 1
                if nm == 288 - OPT['hpos'] and OPT['hpos'] >= 0:
                    ops.append(('raw', f's_mov_b64 exec, 0xff\nbuffer_store_dword v{GA+5}, v19, {WS}, s43 offen sc1\ns_mov_b64 exec, -1'.replace('v19', f'v{GA+8}')))
                if rho == 0 and g == 4 and clr:
                    ops.append(clr.pop(0))
                slot = {(4, 3): 0, (3, 3): 1, (2, 3): 2, (2, 5): 3, (1, 3): 4, (1, 5): 5, (0, 3): 6, (0, 5): 7}.get((g, d))
                if nxt and slot is not None:
                    ops += ldG(slot, rho + 1)
                if not nxt and g <= 1 and d < 4:
                    n = (1 - g) * 4 + d
                    ops.append(('ld', f'ds_read_b64 v[{72+2*n}:{73+2*n}], v{GA+2} offset:{512*(7-n)}', ('U', n)))
            if nxt:
                pend += ldA(g, rho + 1)
    lds_schedule(a, ops)
    UU, T, OUT = 72, 40, 88
    a('s_waitcnt lgkmcnt(0)\n;STAMP C2')

    def dots(i):
        for r in range(4):
            src = UU + 2 * i + (1 if r < 2 else 0)
            sel = 's69' if r % 2 == 0 else 's68'
            a(f'v_dot2_f32_bf16 v{T+4*i+r}, v{src}, {sel}, v{ACC+4*i+r}')

    def cvts(i):
        a(f'v_cvt_pk_bf16_f32 v{OUT+2*i}, v{T+4*i}, v{T+4*i+1}')
        a(f'v_cvt_pk_bf16_f32 v{OUT+2*i+1}, v{T+4*i+2}, v{T+4*i+3}')

    def put(p):
        a(f'v_permlane16_swap_b32 v{OUT+4*p}, v{OUT+4*p+2}')
        a(f'v_permlane16_swap_b32 v{OUT+4*p+1}, v{OUT+4*p+3}')
        a(f'buffer_store_dwordx4 v[{OUT+4*p}:{OUT+4*p+3}], v{GA+1}, {WS}, s40 offen offset:{1024*p} sc1')
    if OPT['ylds']:
        RD = 104
        dots(0)
        for i in range(8):
            if i < 7:
                dots(i + 1)
            cvts(i)
            a(f'ds_write_b64 v{GA+1}, v[{OUT+2*i}:{OUT+2*i+1}] offset:{576*i}')
            if i % 2:
                p = i // 2
                a(f'ds_read_b128 v[{RD+4*p}:{RD+4*p+3}], v{GA+9} offset:{1152*p}')
            if i in (3, 5):
                p = i // 2 - 1
                a(f's_waitcnt lgkmcnt(3)\nbuffer_store_dwordx4 v[{RD+4*p}:{RD+4*p+3}], v{GA+7}, {WS}, s40 offen offset:{1024*p} sc1')
        for p in (2, 3):
            a(f's_waitcnt lgkmcnt({3 if p == 2 else 0})\nbuffer_store_dwordx4 v[{RD+4*p}:{RD+4*p+3}], v{GA+7}, {WS}, s40 offen offset:{1024*p} sc1')
        a('s_endpgm')
        return
    dots(0)
    dots(1)
    for p in range(4):
        if p < 3:
            dots(2 * p + 2)
        cvts(2 * p)
        cvts(2 * p + 1)
        if p < 3:
            dots(2 * p + 3)
        put(p)
    a('s_endpgm')


SORT8 = [(0, 1), (2, 3), (4, 5), (6, 7), (0, 2), (1, 3), (4, 6), (5, 7), (1, 2), (5, 6), (0, 4), (3, 7), (1, 5), (2, 6), (1, 4), (3, 6), (2, 4), (3, 5), (3, 4)]
M_ODD16, M_HI32, M_B1, M_B0 = 40, 42, 72, 74


def silu(a, regs, tmp):
    for op in (f'v_mul_f32 v{{t}}, {NLOG2E}, v{{r}}', 'v_exp_f32 v{t}, v{t}', 'v_add_f32 v{t}, 1.0, v{t}', 'v_rcp_f32 v{t}, v{t}', 'v_mul_f32 v{r}, v{r}, v{t}'):
        for r, t in zip(regs, tmp):
            a(op.format(r=r, t=t))


def clean8(a, v, t):
    a(f'''
    v_max_u32_dpp v{t}, v{v}, v{v} row_shl:4 row_mask:0xf bank_mask:0x5
    v_min_u32_dpp v{t}, v{v}, v{v} row_shr:4 row_mask:0xf bank_mask:0xa
    v_max_u32_dpp v{v}, v{t}, v{t} quad_perm:[2,3,0,1] {DPP}
    v_min_u32_dpp v{t}, v{t}, v{t} quad_perm:[2,3,0,1] {DPP}
    v_cndmask_b32 v{v}, v{v}, v{t}, s[{M_B1}:{M_B1+1}]
    v_max_u32_dpp v{t}, v{v}, v{v} quad_perm:[1,0,3,2] {DPP}
    v_min_u32_dpp v{v}, v{v}, v{v} quad_perm:[1,0,3,2] {DPP}
    v_cndmask_b32 v{v}, v{t}, v{v}, s[{M_B0}:{M_B0+1}]
    ''')


def merge_rows(a, v, t):
    for swap, mask in (('v_permlane16_swap_b32', M_ODD16), ('v_permlane32_swap_b32', M_HI32)):
        a(f'''
        v_mov_b32_dpp v{t}, v{v} row_half_mirror {DPP}
        v_mov_b32_dpp v{t+1}, v{v} row_half_mirror {DPP}
        {swap} v{t}, v{t+1}
        v_cndmask_b32 v{t}, v{t+1}, v{t}, s[{mask}:{mask+1}]
        v_max_u32 v{v}, v{v}, v{t}
        ''')
        clean8(a, v, t)


def ffn_role(a):
    a(f'''
    s_sub_u32 s65, s{S_J}, 20
    s_mul_i32 s64, s{S_X}, 12
    s_add_u32 s64, s64, s65
    v_lshrrev_b32 v8, 1, v1
    v_mul_u32_u24 v8, 3072, v8
    v_and_b32 v9, 1, v1
    v_lshl_add_u32 v8, v9, 4, v8
    s_mul_i32 s40, s3, {160*3072}
    s_lshl_b32 s41, s64, 5
    s_add_u32 s67, s40, s41
    s_mul_i32 s68, s3, 5120
    s_mul_i32 s59, s64, {16*1280}
    s_mul_i32 s41, s3, 320
    s_add_u32 s59, s59, s41
    v_and_b32 v2, 15, v1
    v_lshrrev_b32 v3, 4, v1
    v_lshlrev_b32 v10, 4, v2
    v_lshl_add_u32 v10, v3, 7, v10
    s_mul_i32 s66, s64, {PF}
    s_mul_i32 s41, s3, 5120
    s_add_u32 s66, s66, s41
    s_add_u32 s66, s66, {WS_P}
    s_lshl_b32 s18, s3, 13
    s_add_u32 s18, s18, {WS_RI}
    s_add_u32 s19, s18, 4096
    v_lshrrev_b32 v4, 2, v1
    v_and_b32 v5, 3, v1
    v_lshlrev_b32 v5, 4, v5
    v_lshl_add_u32 v4, v4, 7, v5
    s_mov_b32 s41, 0xcccd
    ''')
    a.srd(28, 46, 640 * 3072)
    a.srd(32, 48, 640 * 3072)
    a.srd(36, 50, 1536 * 1280)
    DA = 104
    for c in range(5):
        a(f'''
        v_add_u32 v{DA+c}, {64*c}, v1
        v_mul_u32_u24 v9, s41, v{DA+c}
        v_lshrrev_b32 v9, 20, v9
        v_mul_u32_u24 v9, {1280-320}, v9
        v_lshl_add_u32 v{DA+c}, v{DA+c}, 4, v9
        ''')
    a(f'''
    s_mov_b32 s{M_ODD16}, 0xffff0000
    s_mov_b32 s{M_ODD16+1}, 0xffff0000
    s_mov_b32 s{M_HI32}, 0
    s_mov_b32 s{M_HI32+1}, -1
    s_mov_b32 s{M_B1}, 0xcccccccc
    s_mov_b32 s{M_B1+1}, 0xcccccccc
    s_mov_b32 s{M_B0}, 0xaaaaaaaa
    s_mov_b32 s{M_B0+1}, 0xaaaaaaaa
    s_mov_b32 s76, 0x00010001
    s_mov_b32 s77, 0x00010001
    v_mov_b32 v34, 0
    v_mov_b32 v12, 1
    ''')
    D = []
    for c in range(5):
        D.append(f's_add_u32 m0, s68, {L_G + 1024*c}\ns_add_u32 s69, s67, {c*32*3072}\nbuffer_load_dwordx4 v8, s[28:31], s69 offen lds')
        D.append(f's_add_u32 m0, s68, {L_U + 1024*c}\ns_nop 0\nbuffer_load_dwordx4 v8, s[32:35], s69 offen lds')
    DN = [f's_add_u32 m0, s68, {L_D + 1024*c}\ns_nop 0\nbuffer_load_dwordx4 v{DA+c}, s[36:39], s59 offen lds' for c in range(5)]
    if OPT['ddn']:
        D, DN = D + DN, []
    if OPT['tdma']:
        D, DN = [], []
    a.lds_wait(11, 9, W_TFL if OPT['fgate'] else W_TST, 5)
    for _ in range(min(len(D), OPT['dmas'])):
        a(D.pop(0))
    KG = 16
    def fkl():
        for i in range(4):
            a(f'buffer_load_dwordx4 v[{KG+4*i}:{KG+4*i+3}], v4, {WS}, s{18+i//2} offen offset:{2048*(i%2)} sc1')
    e = a.lab('FK0')
    if OPT['fke']:
        fkl()
        a.lds_add(11, 12, W_FK)
        a('s_waitcnt vmcnt(0)')
        a.tagcheck(32, [KG + 2 * i + 1 for i in range(8)])
        a(f's_cbranch_vccz {e}\ns_mov_b64 exec, vcc')
    l = a.spin_begin('FK')
    fkl()
    a('s_waitcnt vmcnt(0)')
    a.tagcheck(32, [KG + 2 * i + 1 for i in range(8)])
    a.spin_end_exec(l)
    a.label(e)
    a(';STAMP F0')
    if OPT['tdma'] and not OPT['fke']:
        a.lds_add(11, 12, W_FK)
    key = [KG + 2 * i for i in range(8)]
    spare = KG + 1
    for n, (i, j) in enumerate(SORT8):
        a(f'v_max_u32 v{spare}, v{key[i]}, v{key[j]}\nv_min_u32 v{key[j]}, v{key[i]}, v{key[j]}')
        key[i], spare = spare, key[i]
        if n % 2 == 1 and len(D) > 8:
            a(D.pop(0))
    for rd in range(8):
        a(f'v_max_u32_dpp v33, v{key[0]}, v{key[0]} row_ror:8 {DPP}')
        if D:
            a(D.pop(0))
        for sh in (4, 2, 1):
            a(f'v_max_u32_dpp v33, v33, v33 row_ror:{sh} {DPP}')
        if rd < 7:
            a(f'v_cmp_eq_u32 vcc, v33, v{key[0]}')
        a('v_cndmask_b32 v34, v34, v33, s[76:77]\ns_lshl_b64 s[76:77], s[76:77], 1')
        for i in range(7 - rd):
            a(f'v_cndmask_b32 v{key[i]}, v{key[i]}, v{key[i+1]}, vcc')
    assert not D
    merge_rows(a, 34, 32)
    a(f'''
    s_lshl_b32 s76, s3, 5
    s_add_u32 s76, s76, {L_CAND}
    v_lshl_add_u32 v35, v1, 2, s76
    v_and_b32 v36, 7, v1
    v_lshlrev_b32 v36, 2, v36
    v_lshl_add_u32 v36, v3, 5, v36
    s_mov_b64 exec, 0xff
    ds_write_b32 v35, v34
    s_mov_b64 exec, 1
    ds_add_u32 v11, v12 offset:{W_S0}
    s_mov_b64 exec, -1
    ;STAMP Fex
    ''')
    a.lds_wait(11, 35, W_S0, 4)
    a(f'''
    ds_read_b32 v34, v36 offset:{L_CAND}
    s_mul_i32 s76, s3, 320
    v_lshl_add_u32 v36, v3, 4, s76
    v_bfe_u32 v37, v1, 3, 1
    v_lshl_add_u32 v36, v37, 6, v36
    s_mov_b32 s77, {WS_RI+64}
    s_waitcnt lgkmcnt(0)
    ''')
    merge_rows(a, 34, 32)
    XP = 40
    a(f'''
    ;STAMP F1
    v_and_b32 v35, 0x7ff, v34
    v_sub_u32 v35, 2047, v35
    v_mul_u32_u24 v37, 1280, v35
    v_add_u32 v36, v36, v37
    buffer_load_dwordx4 v[{XP}:{XP+3}], v36, s[20:23], 0 offen
    buffer_load_dwordx4 v[{XP+4}:{XP+7}], v36, s[20:23], 0 offen offset:128
    buffer_load_dwordx4 v[{XP+8}:{XP+11}], v36, s[20:23], 0 offen offset:256
    v_and_b32 v37, 0x7f8, v35
    v_add_u32 v37, v37, v35
    v_lshlrev_b32 v37, 3, v37
    buffer_load_dwordx2 v[38:39], v37, {WS}, s77 offen sc1
    ''')
    a(f'''
    v_lshlrev_b32 v15, 2, v1
    v_mov_b32_dpp v52, v34 quad_perm:[0,2,0,2] {DPP}
    v_mov_b32_dpp v54, v34 quad_perm:[1,3,1,3] {DPP}
    v_mov_b32 v53, s{S_EP}
    v_mov_b32 v55, s{S_EP}
    s_mov_b64 exec, 0xff
    ds_write_b32 v15, v34 offset:{L_SLOT}
    ds_write_b32 v11, v12 offset:{W_DMA}
    v_lshrrev_b32 v15, 2, v1
    v_lshlrev_b32 v15, 5, v15
    v_and_b32 v32, 1, v1
    v_lshl_add_u32 v15, v32, 4, v15
    s_lshl_b32 s76, s{S_X}, 7
    s_add_u32 s76, s76, {WS_IDX}
    s_or_b32 s40, s65, s3
    s_cmp_eq_u32 s40, 0
    s_cselect_b32 s76, s76, 0x80000000
    s_mov_b64 exec, 0x33
    buffer_store_dwordx4 v[52:55], v15, {WS}, s76 offen sc1
    s_or_b32 s40, s64, s3
    s_cmp_eq_u32 s40, 0
    s_cselect_b32 s76, {WS_E}, 0x80000000
    s_mov_b64 exec, 1
    buffer_store_dword v53, v15, {WS}, s76 offen sc1
    s_mov_b64 exec, -1
    ''')
    for o in DN:
        a(o)
    WA = 72
    a(f'''
    v_lshrrev_b32 v4, 2, v2
    v_and_b32 v5, 3, v2
    v_lshlrev_b32 v6, 5, v4
    v_lshl_add_u32 v6, v5, 3, v6
    v_lshl_add_u32 v6, v3, 8, v6
    v_add_u32 v6, s68, v6
    v_lshl_add_u32 v13, v3, 2, v4
    v_mul_u32_u24 v13, 320, v13
    v_lshl_add_u32 v13, v5, 3, v13
    v_add_u32 v13, s68, v13
    v_lshlrev_b32 v14, 4, v1
    v_add_u32 v7, s68, v14
    s_waitcnt vmcnt({len(DN)+2})
    ''')
    e = a.lab('FS0')
    a.tagcheck(32, [39])
    a(f's_cbranch_vccz {e}')
    l = a.spin_begin('FS')
    a(f'buffer_load_dwordx2 v[38:39], v37, {WS}, s77 offen sc1\ns_waitcnt vmcnt(0)')
    a.tagcheck(32, [39])
    a.spin_end_vcc(l)
    a.label(e)
    a(';STAMP Fx')
    if OPT['tdma']:
        a.lds_wait(11, 32, W_GU, 4)
    a(';STAMP Fgd')
    frag = []
    for c in (0, 2, 4, 1, 3):
        for mt, base in enumerate((L_G, L_U)):
            r = WA + 8 * c + 4 * mt
            frag.append(f'ds_read_b64_tr_b16 v[{r}:{r+1}], v6 offset:{base+1024*c}')
            frag.append(f'ds_read_b64_tr_b16 v[{r+2}:{r+3}], v6 offset:{base+1024*c+128}')
    XF = 112
    a('v_and_b32 v39, 0xffff0000, v38\nv_lshlrev_b32 v38, 16, v38\nv_rcp_f32 v60, v39')
    for i in range(12):
        unpack(a, XF + 2 * i, XP + i)
        a(frag.pop(0))
    for i in range(12):
        a(f'v_pk_add_f32 {pr(XF+2*i)}, {pr(XF+2*i)}, {pr(38)} {BC} {NEG}')
        if frag:
            a(frag.pop(0))
    for i in range(12):
        a(f'v_cvt_pk_bf16_f32 v{XP+i}, v{XF+2*i}, v{XF+2*i+1}')
    for i in range(12):
        unpack(a, XF + 2 * i, XP + i)
    for i in range(12):
        a(f'v_pk_mul_f32 {pr(XF+2*i)}, {pr(XF+2*i)}, {pr(60)} {BC}')
    for i in range(12):
        a(f'v_cvt_pk_bf16_f32 v{XP+i}, v{XF+2*i}, v{XF+2*i+1}')
    a(';STAMP Fxn\nv_mov_b32 v39, v60')
    XO = 52
    for i in range(8):
        a(f'v_mov_b32_dpp v{XO+i}, v{XP+i} row_ror:8 {DPP}')
    a('s_waitcnt lgkmcnt(0)')
    for c in (0, 2, 4, 1, 3):
        xr = XP + 4 * (c // 2) if c % 2 == 0 else XO + 4 * (c // 2)
        for mt in range(2):
            acc = 60 + 4 * mt
            r = WA + 8 * c + 4 * mt
            cc = '0' if c == 0 else f'v[{acc}:{acc+3}]'
            a(f'v_mfma_f32_16x16x32_bf16 v[{acc}:{acc+3}], v[{r}:{r+3}], v[{xr}:{xr+3}], {cc}')
    WDN, R, O = 112, 72, 72
    a(f'''
    s_mov_b32 s40, 0x07060503
    s_mov_b32 s41, 0x07060502
    s_mov_b32 s43, 0x07060501
    ds_write_b128 v7, v[60:63] offset:{L_G}
    ds_write_b128 v7, v[64:67] offset:{L_G+1024}
    s_mov_b64 exec, 1
    ds_add_u32 v11, v12 offset:{W_S1}
    s_mov_b64 exec, -1
    ;STAMP Fm1
    s_waitcnt vmcnt(0)
    ;STAMP Fdma
    ''')
    if OPT['tdma']:
        a.lds_wait(11, 32, W_DN, 4)
    for nt in range(10):
        a(f'ds_read_b64_tr_b16 v[{WDN+2*nt}:{WDN+2*nt+1}], v13 offset:{L_D+32*nt}')
    a.lds_wait(11, 32, W_S1, 4)
    a(';STAMP Fs1')
    for w in range(4):
        for mt in range(2):
            a(f'ds_read_b128 v[{R+8*w+4*mt}:{R+8*w+4*mt+3}], v14 offset:{L_G+5120*w+1024*mt}')
    a('s_waitcnt lgkmcnt(0)')
    for i in range(4):
        a(f'v_pk_add_f32 {pr(R+2*i)}, {pr(R+2*i)}, {pr(R+8+2*i)}')
        a(f'v_pk_add_f32 {pr(R+16+2*i)}, {pr(R+16+2*i)}, {pr(R+24+2*i)}')
    for i in range(4):
        a(f'v_pk_add_f32 {pr(R+2*i)}, {pr(R+2*i)}, {pr(R+16+2*i)}')
    for i in range(4):
        a(f'v_cvt_pk_bf16_f32 v{R+8+i}, v{R+2*i}, v{R+2*i+1}')
    for i in range(4):
        unpack(a, R + 2 * i, R + 8 + i)
    silu(a, range(R, R + 4), range(R + 8, R + 12))
    for i in range(2):
        a(f'v_cvt_pk_bf16_f32 v{R+8+i}, v{R+2*i}, v{R+2*i+1}')
    for i in range(2):
        unpack(a, R + 2 * i, R + 8 + i)
    for i in range(2):
        a(f'v_pk_mul_f32 {pr(R+2*i)}, {pr(R+2*i)}, {pr(R+4+2*i)}')
    for i in range(2):
        a(f'v_cvt_pk_bf16_f32 v{60+i}, v{R+2*i}, v{R+2*i+1}')
    a(';STAMP Fgu')
    for nt in range(10):
        a(f'v_mfma_f32_16x16x16_bf16 v[{O+4*nt}:{O+4*nt+3}], v[{WDN+2*nt}:{WDN+2*nt+1}], v[60:61], 0')
    a('s_mov_b32 exec_lo, 0x00ff00ff\ns_mov_b32 exec_hi, 0x00ff00ff')
    for nt in range(10):
        for d, sr in enumerate((40, 41, 43)):
            a(f'v_perm_b32 v{O+4*nt+d}, v{O+4*nt+d}, v{O+4*nt+3}, s{sr}')
        a(f'v_mov_b32 v{O+4*nt+3}, s{S_EP}')
        if nt == 8:
            a('s_add_u32 s66, s66, 4096')
        a(f'buffer_store_dwordx4 v[{O+4*nt}:{O+4*nt+3}], v10, {WS}, s66 offen offset:{512*(nt%8)} sc1')
    a(f'''
    s_mov_b64 exec, -1
    ;STAMP F2
    s_cmp_ge_u32 s64, 80
    s_cbranch_scc1 K_END
    s_cmp_ge_u32 s3, 2
    s_cbranch_scc1 K_END
    ''')
    PR = 40
    a(f'''
    s_lshl_b32 s42, s64, 1
    s_add_u32 s42, s42, s3
    s_lshl_b32 s50, s42, 7
    v_mov_b32 v6, {WS_F2}
    buffer_load_dword v16, v6, {WS}, s50 offen sc1
    v_lshrrev_b32 v4, 3, v1
    v_and_b32 v15, 7, v1
    v_mul_u32_u24 v5, {PF}, v4
    v_lshl_add_u32 v5, v15, 4, v5
    s_add_u32 s40, s50, {WS_P}
    v_add_u32 v5, s40, v5
    v_and_b32 v4, 3, v4
    s_lshl_b32 s42, s42, 2
    v_add_u32 v8, s42, v4
    v_mul_u32_u24 v9, 1280, v35
    v_lshl_add_u32 v9, v8, 1, v9
    buffer_load_ushort v12, v9, s[20:23], 0 offen
    v_lshlrev_b32 v13, 1, v35
    v_and_b32 v13, 0xfffffffc, v13
    v_mul_u32_u24 v8, {RS}, v8
    v_add3_u32 v8, v8, v13, s47
    v_cmp_eq_u32 s[72:73], 1, v4
    v_cmp_eq_u32 s[74:75], 2, v4
    v_cmp_eq_u32 s[76:77], 3, v4
    v_ashrrev_i32 v20, 31, v34
    v_not_b32 v20, v20
    v_or_b32 v20, 0x80000000, v20
    v_xor_b32 v20, v20, v34
    v_and_b32 v20, 0xffff0000, v20
    v_mul_f32 v20, {NLOG2E}, v20
    v_exp_f32 v20, v20
    v_and_b32 v23, 1, v35
    v_xor_b32 v23, 1, v23
    v_lshlrev_b32 v23, 4, v23
    v_add_f32 v20, 1.0, v20
    v_rcp_f32 v20, v20
    s_or_b64 s[74:75], s[74:75], s[76:77]
    '''.replace('v_add3_u32 v8, v8, v13, s47', f's_mov_b32 s47, {WS_Y2}\nv_add3_u32 v8, v8, v13, s47'))
    a.srd(24, 52, NB)
    for i in range(12):
        a(f's_mov_b32 s{28+i}, {i*8*PF}')
    rnd(a, 20, 20)
    e = a.lab('RG0')
    a('s_waitcnt vmcnt(0)\nv_lshlrev_b32 v21, 16, v12\nv_sub_f32 v22, v21, v38')
    rnd(a, 22, 22)
    a('v_mul_f32 v22, v39, v22')
    rnd(a, 22, 22)
    a.tagcheck(18, [16])
    a(f's_cbranch_vccz {e}')
    l = a.spin_begin('RG')
    a(f'buffer_load_dword v16, v6, {WS}, s50 offen sc1\ns_waitcnt vmcnt(0)')
    a.tagcheck(18, [16])
    a.spin_end_vcc(l, 2)
    a.label(e)
    a(';STAMP Rg\ns_mov_b32 s40, 0x04000c0c\ns_mov_b32 s41, 0x0706000c')
    if OPT['rpsl']:
        a(f's_sleep {OPT["rpsl"]}')
    l = a.spin_begin('RP')
    for i in range(12):
        a(f'buffer_load_dwordx4 v[{PR+4*i}:{PR+4*i+3}], v5, {WS}, s{28+i} offen sc1')
    a('s_waitcnt vmcnt(0)')
    a.tagcheck(18, [PR + 4 * i + 3 for i in range(12)])
    a.spin_end_exec(l)
    a(f';STAMP F3\ns_mov_b32 exec_hi, 0\nbuffer_load_dword v13, v8, {WS}, 0 offen sc1\ns_mov_b32 exec_hi, -1')
    for i in range(12):
        a(f'v_perm_b32 v{PR+4*i+3}, v{PR+4*i}, v{PR+4*i+1}, s40')
    for i in range(12):
        a(f'v_perm_b32 v{PR+4*i+3}, v{PR+4*i+3}, v{PR+4*i+2}, s41')
    for n in (24, 12):
        for i in range(0, n, 2):
            a(f'v_pk_add_f32 {pr(PR+i)}, {pr(PR+i)}, {pr(PR+n+i)}')
    for st in (4, 8):
        for i in (0, 2):
            a(f'v_pk_add_f32 {pr(PR+i)}, {pr(PR+i)}, {pr(PR+st+i)}')
    for i in range(4):
        a(f'v_add_f32_dpp v{PR+i}, v{PR+i}, v{PR+i} row_ror:8 {DPP}')
    for i in range(4):
        a(f'v_mov_b32 v{PR+4+i}, v{PR+i}')
    for i in range(4):
        a(f'v_permlane16_swap_b32 v{PR+i}, v{PR+4+i}')
    for i in (0, 2):
        a(f'v_pk_add_f32 {pr(PR+i)}, {pr(PR+i)}, {pr(PR+4+i)}')
    a(f'''
    v_cndmask_b32 v{PR}, v{PR}, v{PR+1}, s[72:73]
    v_cndmask_b32 v{PR+2}, v{PR+2}, v{PR+3}, s[76:77]
    v_cndmask_b32 v{PR}, v{PR}, v{PR+2}, s[74:75]
    v_mov_b32 v{PR+1}, v{PR}
    v_permlane32_swap_b32 v{PR}, v{PR+1}
    v_add_f32 v{PR}, v{PR}, v{PR+1}
    ''')
    rnd(a, PR, PR)
    a(f'v_mul_f32 v{PR}, v{PR}, v20')
    rnd(a, PR, PR)
    a(f'v_add_f32 v{PR}, v{PR}, v22')
    rnd(a, PR, PR)
    silu(a, [PR], [PR + 1])
    e = a.lab('RY0')
    a(';STAMP Rs')
    a(f'v_mul_f32 v22, v22, v{PR}\ns_mov_b32 exec_hi, 0\ns_waitcnt vmcnt(0)\nv_cmp_eq_u32 vcc, -1, v13\ns_cbranch_vccz {e}')
    l = a.spin_begin('RY')
    a(f'buffer_load_dword v13, v8, {WS}, 0 offen sc1\ns_waitcnt vmcnt(0)\nv_cmp_eq_u32 vcc, -1, v13')
    a.spin_end_vcc(l, 2)
    a.label(e)
    a(f'''
    ;STAMP Ry
    v_lshlrev_b32 v13, v23, v13
    v_and_b32 v13, 0xffff0000, v13
    v_fma_f32 v22, v22, v13, v21
    v_cvt_pk_bf16_f32 v22, v22, v22
    buffer_store_short v22, v9, s[24:27], 0 offen
    s_endpgm
    ''')


def kernel():
    a = K()
    a.label('K_FIRST')
    a(f'''
    s_cmp_ge_u32 s2, 256
    s_cbranch_scc1 K_END
    s_load_dwordx8 s[4:11], s[0:1], 0
    s_load_dwordx4 s[12:15], s[0:1], 32
    s_load_dwordx8 s[44:51], s[0:1], 56
    s_load_dwordx2 s[52:53], s[0:1], 88
    s_load_dwordx2 s[54:55], s[0:1], 104
    v_lshrrev_b32 v1, 6, v0
    s_and_b32 s{S_X}, s2, 7
    v_readfirstlane_b32 s3, v1
    s_lshr_b32 s{S_J}, s2, 3
    s_cmp_lg_u32 s3, 0
    s_cbranch_scc1 K_NOPF
    s_getpc_b64 s[20:21]
    K_PC:
    s_sub_u32 s20, s20, K_PC-K_FIRST
    s_subb_u32 s21, s21, 0
    s_mov_b32 s22, K_END-K_FIRST
    s_mov_b32 s23, 0x20000
    s_lshl_b32 s24, s{S_J}, 10
    v_lshlrev_b32 v1, 7, v0
    s_mov_b64 exec, 0xff
    buffer_load_dword v{PFV}, v1, s[20:23], s24 offen
    s_mov_b64 exec, -1
    K_NOPF:
    s_and_b32 s{S_G}, s{S_J}, 3
    s_and_b32 s{S_TT}, s{S_J}, 24
    s_add_u32 s{S_TT}, s{S_TT}, s{S_X}
    s_lshl_b32 s{S_TT}, s{S_TT}, 1
    s_bfe_u32 s18, s{S_J}, 0x10002
    s_add_u32 s{S_TT}, s{S_TT}, s18
    ''')
    if OPT['lfirst']:
        a('s_cmp_ge_u32 s3, 4\ns_cbranch_scc1 K_T')
        ln_head(a)
        a('s_branch K_L')
        a.label('K_T')
        tile_role(a)
        a.label('K_L')
    else:
        a('s_cmp_lt_u32 s3, 4\ns_cbranch_scc1 K_L')
        tile_role(a)
        a.label('K_L')
        ln_head(a)
    ln_role(a)
    a(f's_cmp_ge_u32 s{S_J}, 20\ns_cbranch_scc1 K_FFN')
    conv_role(a)
    a.label('K_FFN')
    ffn_role(a)
    a.label('K_END')
    a('s_endpgm')
    return a


def single_module(body):
    s = HDR + f'; @launch grid=(256,1,1) block=(576,1,1) lds={LDS_BYTES}\n'
    s += f'.amdgcn_target "amdgcn-amd-amdhsa--gfx950"\n.text\n.p2align 12\n.globl {KNAME}\n.p2align 8\n.type {KNAME},@function\n{KNAME}:\n{body}'
    nv, ns, na = max_regs(body)
    s += '.section .rodata,"a"\n' + KD.format(name=KNAME, vgpr=nv, sgpr=ns, acc=(nv + 3) // 4 * 4)
    return s


if __name__ == '__main__':
    out = sys.argv[1]
    rep = []
    for o in sys.argv[2:]:
        if '=' in o:
            k_, v_ = o.split('=')
            OPT[k_] = int(v_) if v_.lstrip('-').isdigit() else v_.replace('+', ' ')
    k = kernel()
    if 'diag' in sys.argv[2:]:
        import diag
        diag.CYC = 'cyc' in sys.argv
        sel = [o for o in sys.argv[2:] if o.startswith('@')]
        diag.instrument(k, 0, {n: i for g in sel for i, n in enumerate(g[1:].split(','))})
    k.lines = [l for l in k.lines if not l.startswith(';STAMP')]
    body = k.text(rep)
    assert not re.search(r'op_sel:\[[01,]*1', body), 'crossed low-half op_sel is unsafe beside MFMA'
    open(out, 'w').write(single_module(body))
    print('wrote', out, 'regs', max_regs(body), 'nops', len(rep), sum(n for n, _ in rep), 'lines', body.count('\n'))
```

```python
import sys, importlib
from asmlib import *
import diag
def encoder(field, wg_lo, wg_hi, waves, kind='max', base_ticks=4000, mult=10):
    a = Asm()
    a('s_cmp_ge_u32 s2, 1\ns_cbranch_scc1 ENC_END\ns_load_dwordx2 s[4:5], s[0:1], 104\ns_waitcnt lgkmcnt(0)')
    a.srd(8, 4, 1 << 18, diag.WS_STAMP)
    def reduce(op, fld, lo, hi, ws, sdst, tag):
        a(f'v_mov_b32 v10, {0 if op == "max" else -1}\ns_mov_b32 s20, {lo}')
        a.label(f'ENC_L{tag}')
        a(f'v_add_u32 v1, s20, v0\nv_min_u32 v1, {hi-1}, v1\nv_lshlrev_b32 v2, 9, v1')
        for n, w in enumerate(ws):
            a(f'buffer_load_dword v{20+n}, v2, s[8:11], 0 offen offset:{32*w+4*fld}')
        a('s_waitcnt vmcnt(0)')
        for n, w in enumerate(ws):
            a(f'v_{op}_u32 v10, v10, v{20+n}')
        a(f's_add_u32 s20, s20, 64\ns_cmp_lt_u32 s20, {hi}\ns_cbranch_scc1 ENC_L{tag}\ns_nop 4\nv_readlane_b32 s{sdst}, v10, 0')
        for l in range(1, 64):
            a(f'v_readlane_b32 s21, v10, {l}\ns_nop 0\ns_{op}_u32 s{sdst}, s{sdst}, s21')
    reduce('min', 0, 0, 256, range(9), 30, 'z')
    if field is None:
        a('s_mov_b32 s31, 0')
    else:
        reduce(kind, field, wg_lo, wg_hi, waves, 31, 'a')
        a(f's_sub_u32 s31, s31, s30\ns_min_u32 s31, s31, 5000\ns_mul_i32 s31, s31, {mult}')
    a(f's_add_u32 s31, s31, {base_ticks}')
    a.label('ENC_W')
    a('s_memrealtime s[34:35]\ns_waitcnt lgkmcnt(0)\ns_sub_u32 s34, s34, s30\ns_cmp_lt_u32 s34, s31\ns_cbranch_scc1 ENC_W')
    a.label('ENC_END')
    a('s_endpgm')
    return a
def sel(n):
    if n == 'base': return None, 0, 256, []
    if n == 'start': return 0, 0, 256, range(9)
    if n == 'end': return 1, 0, 256, range(9)
    if n == 'Tend': return 1, 0, 256, range(4, 9)
    if n == 'Cend': return 1, 0, 160, range(4)
    if n == 'Rend': return 1, 160, 208, range(9, 11)
    if n[0] == 'R': return 2, 160, 208, range(9, 11)
    if n[0] == 'T': return 2, 0, 256, range(4, 9)
    if n[0] == 'C': return 2, 0, 160, range(4)
    if n[0] == 'L': return 2, 0, 256, range(4)
    return 2, 160, 256, range(4)
if __name__ == '__main__':
    gen = importlib.import_module(sys.argv[1]); prefix = sys.argv[2]
    names = [o for o in sys.argv[3:] if '=' not in o]
    for o in sys.argv[3:]:
        if '=' in o:
            k_, v_ = o.split('='); gen.OPT[k_] = int(v_) if v_.lstrip('-').isdigit() else v_
    out = []
    for n in names:
        kind = 'max'; key = n
        if n.startswith('min'): kind = 'min'; key = n[3:]
        k = gen.kernel(); diag.instrument(k, 0, {key: 0})
        f, lo, hi, ws = sel(key)
        kk = [('main_kernel', k.text()), ('enc_kernel', encoder(f, lo, hi, list(ws), kind).text())]
        ls = [('main_kernel', 256, getattr(gen, 'BLOCK', 576), gen.LDS_BYTES), ('enc_kernel', 1, 64, 0)]
        open(f'{prefix}_{n}.s', 'w').write(module(gen.HDR, kk, ls))
        out.append(f'exp/{prefix}_{n}.s')
    print(out)
```

```python
import sys, re
from asmlib import *

KNAME = 'recurrent_scan__ssm_conv_h3__moe_arch_mod__prompt_kernel'
HDR = open('recurrent_scan__ssm_conv_h3__moe_arch_mod__prompt.s.ref').read().split('; Override launch')[0]

NB = 2048 * 1280
RS = 4224
WS_E = 0
WS_IDX = 4096
WS_RI = 64 << 10
WS_F2 = 128 << 10
WS_HN = 256 << 10
WS_F1 = 512 << 10
WS_UR = 1 << 20
WS_Y2 = 4 << 20
WS_P = 8 << 20
WS_SIZE = 16 << 20
PTOK = 2560
PF = 8 * PTOK
NLOG2E = 0xbfb8aa3b
INV640 = 0x3acccccd
EPS = 0x3727c5ac
SPIN = 100000

H0_OFF, H1_OFF, U_OFF, CW_LDS = 0, 4160, 8288, 12864
L_G, L_U, L_D, L_MISC = 0, 20480, 40960, 61440
L_CNT, L_CAND, L_SLOT, L_RI, L_TP = L_MISC, L_MISC + 64, L_MISC + 192, L_MISC + 320, L_MISC + 512
LDS_BYTES = L_TP + 5 * 2304
W_S0, W_S1, W_EPN, W_EP, W_RI, W_TST, W_TFL, W_CF, W_FK, W_YC, W_DMA = 0, 4, 12, 16, 20, 24, 32, 36, 40, 44, 48
W_GU, W_DN, W_TI = 52, 56, 28

OPT = dict(sleep=1, rpsl=16, prio=1, out='sc1', pfat=2, hgate=1, qgate=2, fgate=1, dmas=10, ddn=0, qe=0, hpos=-1, ycr=2, tprio=0, lfirst=1, wre=1, tdma=2, ox4=0, fke=1, thsl=2, tq=2, dnpf=0, cfe=0, ylds=0, eb=2)

S_X, S_J, S_EP, S_CNT, ONES = 16, 17, 56, 57, 58
S_G, S_TT, S_RI = 74, 75, 76
C_NL2E, C_ONE = 70, 72
WS = 's[60:63]'
PFV = 71


class K(Asm):
    def __init__(self):
        super().__init__()
        self.n = 0

    def lab(self, p):
        self.n += 1
        return f'{p}_{self.n}'

    def spin_begin(self, p):
        l = self.lab(p)
        self(f's_mov_b32 s{S_CNT}, 0')
        self.label(l)
        return l

    def _tail(self, l, slp):
        self(f'''
        {f's_sleep {slp}' if slp else ''}
        s_add_u32 s{S_CNT}, s{S_CNT}, 1
        s_cmp_lt_u32 s{S_CNT}, {SPIN}
        s_cbranch_scc1 {l}
        ''')
        self.label(l + '_x')

    def spin_end_vcc(self, l, slp=None):
        self(f's_cbranch_vccz {l}_x')
        self._tail(l, OPT['sleep'] if slp is None else slp)

    def spin_end_exec(self, l, restore='-1', slp=None):
        self(f's_and_b64 exec, exec, vcc\ns_cbranch_execz {l}_x')
        self._tail(l, OPT['sleep'] if slp is None else slp)
        self(f's_mov_b64 exec, {restore}')

    def lds_wait(self, vaddr, vtmp, word, count, slp=0):
        l = self.spin_begin('LW')
        self(f'ds_read_b32 v{vtmp}, v{vaddr} offset:{word}\ns_waitcnt lgkmcnt(0)\nv_cmp_gt_u32 vcc, {count}, v{vtmp}')
        self.spin_end_vcc(l, slp)

    def lds_add(self, vaddr, vone, word):
        self(f's_mov_b64 exec, 1\nds_add_u32 v{vaddr}, v{vone} offset:{word}\ns_mov_b64 exec, -1')

    def maxtree(self, d, regs):
        regs = list(regs)
        self(f'v_max3_u32 v{d}, v{regs[0]}, v{regs[1]}, v{regs[2]}')
        regs = regs[3:]
        while len(regs) >= 2:
            self(f'v_max3_u32 v{d}, v{d}, v{regs[0]}, v{regs[1]}')
            regs = regs[2:]
        if regs:
            self(f'v_max_u32 v{d}, v{d}, v{regs[0]}')

    def tagcheck(self, d, regs):
        regs = list(regs)
        if len(regs) == 1:
            self(f'v_cmp_ne_u32 vcc, s{S_EP}, v{regs[0]}')
            return
        self.maxtree(d, regs)
        r = regs
        self(f'v_min3_u32 v{d+1}, v{r[0]}, v{r[1]}, v{r[2]}')
        r = r[3:]
        while len(r) >= 2:
            self(f'v_min3_u32 v{d+1}, v{d+1}, v{r[0]}, v{r[1]}')
            r = r[2:]
        if r:
            self(f'v_min_u32 v{d+1}, v{d+1}, v{r[0]}')
        self(f'v_xor_b32 v{d}, s{S_EP}, v{d}\nv_xor_b32 v{d+1}, s{S_EP}, v{d+1}\nv_or_b32 v{d}, v{d}, v{d+1}\nv_cmp_ne_u32 vcc, 0, v{d}')


def rnd(a, d, s):
    a(f'v_cvt_pk_bf16_f32 v{d}, v{s}, v{s}\nv_and_b32 v{d}, 0xffff0000, v{d}')


def unpack(a, d, s):
    a(f'v_lshlrev_b32 v{d}, 16, v{s}\nv_and_b32 v{d+1}, 0xffff0000, v{s}')


def pr(r):
    return f'v[{r}:{r+1}]'


DPP = 'row_mask:0xf bank_mask:0xf'
BC = 'op_sel_hi:[1,0]'
NEG = 'neg_lo:[0,1] neg_hi:[0,1]'


def rows8(a, op, reg0, vaddr, srd, mods=''):
    for i in range(8):
        so = '0' if i < 4 else 's18'
        a(f'{op} v{reg0+i}, v{vaddr}, {srd}, {so} offen offset:{1280*(i%4)} {mods}')


def weight_prefetch(a, vb, sb):
    a(f'''
    s_mul_i32 s40, s{S_J}, 60
    v_min_u32 v{vb}, 59, v0
    v_add_u32 v{vb}, s40, v{vb}
    s_mov_b32 s40, 0x5556
    v_mul_u32_u24 v{vb+1}, s40, v{vb}
    v_lshrrev_b32 v{vb+1}, 16, v{vb+1}
    s_cmp_eq_u32 s3, 0
    s_cselect_b32 s{sb}, s46, s48
    s_cselect_b32 s{sb+1}, s47, s49
    s_cmp_eq_u32 s3, 2
    s_cselect_b32 s{sb}, s50, s{sb}
    s_cselect_b32 s{sb+1}, s51, s{sb+1}
    s_cselect_b32 s40, 0, {3072-384}
    s_cselect_b32 s41, 640, 1
    s_mul_i32 s41, s41, s{S_X}
    s_mul_i32 s41, s41, 384
    s_cmp_ge_u32 s3, {3 if OPT['dnpf'] else 2}
    s_cselect_b32 s{sb+2}, 0, {640*3072}
    s_mov_b32 s{sb+3}, 0x20000
    v_mul_u32_u24 v{vb+1}, s40, v{vb+1}
    v_lshl_add_u32 v{vb}, v{vb}, 7, v{vb+1}
    buffer_load_dword v{vb+2}, v{vb}, s[{sb}:{sb+3}], s41 offen
    ''')


def tile_role(a):
    KK, VV, W, WF, KF, S, P = 8, 20, 28, 32, 40, 64, 80
    a(f'''
    s_sub_u32 s3, s3, 4
    s_mul_i32 s18, s{S_G}, 160
    s_lshl_b32 s19, s3, 5
    s_add_u32 s64, s18, s19
    s_lshl_b32 s19, s{S_TT}, 5
    v_and_b32 v0, 63, v0
    v_and_b32 v1, 15, v0
    v_lshrrev_b32 v2, 4, v0
    v_lshl_add_u32 v1, v1, 1, s64
    v_lshl_add_u32 v2, v2, 3, s19
    v_mul_u32_u24 v3, 1280, v2
    v_lshl_add_u32 v3, v1, 1, v3
    v_subrev_u32 v4, 3840, v3
    v_cmp_eq_u32 vcc, 0, v2
    v_mov_b32 v5, 0x80000000
    v_cndmask_b32 v4, v4, v5, vcc
    v_lshlrev_b32 v5, 3, v1
    s_mov_b32 s18, 5120
    s_mov_b32 s22, {NB}
    s_mov_b32 s23, 0x20000
    s_mov_b32 s26, {NB}
    s_mov_b32 s27, 0x20000
    s_mov_b32 s30, {640*8}
    s_mov_b32 s31, 0x20000
    s_waitcnt lgkmcnt(0)
    ;STAMP Targ
    {'s_barrier' if OPT['eb'] else ''}
    s_mov_b64 s[20:21], s[6:7]
    ''')
    rows8(a, 'buffer_load_dword', KK + 3, 3, 's[20:23]')
    for i in range(3):
        a(f'buffer_load_dword v{KK+i}, v4, s[20:23], 0 offen offset:{1280*i}')
    a(f's_mov_b64 s[28:29], s[10:11]\ns_mov_b64 s[24:25], s[8:9]\nbuffer_load_dwordx4 v[{W}:{W+3}], v5, s[28:31], 0 offen')
    rows8(a, 'buffer_load_dword', VV, 3, 's[24:27]')
    a(';STAMP Tiss' if OPT['eb'] else ';STAMP Tiss\ns_barrier')
    a.srd(32, 4, NB)
    QE = 98
    E = 8 * OPT['qe'] + (1 if OPT['pfat'] == 2 else 0)
    if OPT['qe']:
        rows8(a, 'buffer_load_dword', QE, 3, 's[32:35]')
    if OPT['eb'] == 2:
        a(f'v_mov_b32 v92, {L_CNT}\nv_mov_b32 v93, 1')
        a.lds_add(92, 93, W_TI)
        a.lds_wait(92, 88, W_TI, 5)
    if OPT['pfat'] == 2:
        weight_prefetch(a, 95, 76)
    a.srd(36, 52, NB)
    a.srd(60, 54, WS_SIZE)
    a(f'''
    s_mul_i32 s67, s64, {RS}
    s_lshl_b32 s40, s{S_TT}, 6
    s_sub_u32 s65, s67, s40
    s_add_u32 s65, s65, {WS_UR + 63*64}
    s_add_u32 s66, s65, {16*RS}
    s_add_u32 s67, s67, s40
    s_add_u32 s67, s67, {WS_Y2}
    s_add_u32 s68, s67, {16*RS}
    v_lshrrev_b32 v6, 2, v0
    v_and_b32 v90, 3, v0
    v_mul_u32_u24 v6, {RS}, v6
    v_lshl_add_u32 v6, v90, 4, v6
    s_mul_i32 s40, s3, 2304
    s_add_u32 s40, s40, {L_TP}
    v_lshrrev_b32 v91, 3, v0
    v_add_u32 v91, v91, v0
    v_lshl_add_u32 v91, v91, 4, s40
    v_and_b32 v90, 15, v0
    v_mul_u32_u24 v90, 144, v90
    v_lshrrev_b32 v93, 4, v0
    v_lshl_add_u32 v94, v93, 4, v90
    v_add_u32 v94, s40, v94
    v_sub_u32 v93, 3, v93
    v_lshl_add_u32 v90, v93, 4, v90
    v_add_u32 v90, s40, v90
    v_mov_b32 v92, {L_CNT}
    v_mov_b32 v93, 1
    v_lshlrev_b32 v5, 4, v2
    v_add_u32 v5, {WS_RI+64}, v5
    s_lshl_b32 s40, s64, 1
    s_add_u32 s40, s40, s{S_TT}
    s_lshl_b32 s40, s40, 7
    s_add_u32 s40, s40, {WS_F1}
    v_mov_b32 v89, s40
    s_mov_b32 s{C_NL2E}, {NLOG2E}
    s_mov_b32 s{C_NL2E+1}, {NLOG2E}
    s_mov_b32 s{C_ONE}, 1.0
    s_mov_b32 s{C_ONE+1}, 1.0
    s_waitcnt vmcnt({8+E})
    ;STAMP Tk
    ''')
    for j in range(4):
        for hf in range(2):
            src = W + 2 * hf + j // 2
            a(f'v_lshlrev_b32 v{WF+2*j+hf}, 16, v{src}' if j % 2 == 0 else f'v_and_b32 v{WF+2*j+hf}, 0xffff0000, v{src}')
    for i in range(11):
        unpack(a, KF + 2 * i, KK + i)
    for t in range(8):
        a(f'v_pk_mul_f32 {pr(S+2*t)}, {pr(KF+2*t)}, {pr(WF+6)}')
    for j in (2, 1, 0):
        for t in range(8):
            a(f'v_pk_fma_f32 {pr(S+2*t)}, {pr(KF+2*(t+3-j))}, {pr(WF+2*j)}, {pr(S+2*t)}')
    a(f's_waitcnt vmcnt({E})\n;STAMP Tv')
    for t in range(8):
        unpack(a, KF + 2 * t, VV + t)
    for t in range(8):
        a(f'v_pk_mul_f32 {pr(S+2*t)}, {pr(S+2*t)}, {pr(KF+2*t)}')
    for hf in range(2):
        for m in range(4):
            a(f'v_cvt_pk_bf16_f32 v{P+4*hf+m}, v{S+2*(7-2*m)+hf}, v{S+2*(6-2*m)+hf}')
        a(f'ds_write_b128 v90, v[{P+4*hf}:{P+4*hf+3}] offset:{64*hf}')
    a(f'ds_read_b128 v[{S}:{S+3}], v91\nds_read_b128 v[{S+4}:{S+7}], v91 offset:1152')
    for hf in range(2):
        a(f's_waitcnt lgkmcnt({1-hf})\nbuffer_store_dwordx4 v[{S+4*hf}:{S+4*hf+3}], v6, {WS}, s{65+hf} offen sc1')
    a(';STAMP T1')
    Q, ST, X, F, T = 8, 16, 32, 48, 64

    def stl():
        for i in range(4):
            a(f'buffer_load_dwordx4 v[{ST+4*i}:{ST+4*i+3}], v5, {WS}, 0 offen offset:{16*i} sc1')
    ste = OPT['qgate'] < 0
    a.lds_add(92, 93, W_TST)
    a.lds_wait(92, 88, W_EPN, 1)
    if ste:
        a.lds_wait(92, 88, W_TST, 5)
        stl()
    a(f'''
    ds_read_b32 v88, v92 offset:{W_EP}
    s_waitcnt vmcnt({4 if ste else 0}) lgkmcnt(0)
    ;STAMP Tack
    s_mov_b64 exec, 1
    buffer_store_dword v88, v89, {WS}, 0 offen sc1
    ds_add_u32 v92, v93 offset:{W_TFL}
    s_mov_b64 exec, -1
    v_readfirstlane_b32 s{S_EP}, v88
    ''')
    if OPT['qgate'] > 0:
        a.lds_wait(92, 88, W_TST if OPT['qgate'] == 1 else W_TFL, 5)
    if OPT['tdma']:
        e, w4 = a.lab('TD'), a.lab('TD')
        a(f'''
        s_cmp_lt_u32 s{S_J}, 20
        s_cbranch_scc1 {e}
        s_cmp_eq_u32 s3, 4
        s_cbranch_scc1 {w4}
        s_sub_u32 s40, s{S_J}, 20
        s_mul_i32 s41, s{S_X}, 12
        s_add_u32 s40, s40, s41
        v_lshrrev_b32 v8, 1, v0
        v_mul_u32_u24 v8, 3072, v8
        v_and_b32 v9, 1, v0
        v_lshl_add_u32 v8, v9, 4, v8
        s_mul_i32 s41, s3, {160*3072}
        s_lshl_b32 s42, s40, 5
        s_add_u32 s41, s41, s42
        s_mul_i32 s42, s3, 5120
        s_mul_i32 s40, s40, {16*1280}
        s_mul_i32 s43, s3, 320
        s_add_u32 s40, s40, s43
        s_mov_b32 s43, 0xcccd
        ''')
        a.srd(20, 46, 640 * 3072)
        a.srd(24, 48, 640 * 3072)
        a.srd(28, 50, 1536 * 1280)
        for c in range(5):
            a(f'''
            v_add_u32 v{10+c}, {64*c}, v0
            v_mul_u32_u24 v9, s43, v{10+c}
            v_lshrrev_b32 v9, 20, v9
            v_mul_u32_u24 v9, {1280-320}, v9
            v_lshl_add_u32 v{10+c}, v{10+c}, 4, v9
            ''')
        if OPT['tq'] == 2:
            stl()
            rows8(a, 'buffer_load_dword', QE, 3, 's[32:35]')
        a.lds_wait(92, 88, W_FK, 4)
        for c in range(5):
            a(f's_add_u32 m0, s42, {L_G + 1024*c}\ns_nop 0\nbuffer_load_dwordx4 v8, s[20:23], s41 offen lds')
            a(f's_add_u32 m0, s42, {L_U + 1024*c}\ns_nop 0\nbuffer_load_dwordx4 v8, s[24:27], s41 offen lds\ns_add_u32 s41, s41, {32*3072}')
        if OPT['tq'] == 1:
            stl()
            rows8(a, 'buffer_load_dword', QE, 3, 's[32:35]')
        if OPT['tdma'] == 2:
            a.lds_wait(92, 88, W_DMA, 1)
        for c in range(5):
            a(f's_add_u32 m0, s42, {L_D + 1024*c}\ns_nop 0\nbuffer_load_dwordx4 v{10+c}, s[28:31], s40 offen lds')
        a('s_waitcnt vmcnt(5)')
        a.lds_add(92, 93, W_GU)
        a('s_waitcnt vmcnt(0)')
        a.lds_add(92, 93, W_DN)
        skipq = a.lab('TD')
        if OPT['tq']:
            a(f's_branch {skipq}')
        a.label(w4)
        if OPT['tq'] == 0:
            a.lds_wait(92, 88, W_DN, 4, 2)
        elif OPT['tq'] == 1:
            a.lds_wait(92, 88, W_FK, 4, 2)
            a('s_sleep 8')
        a.label(e)
    if ste:
        for t in range(8):
            unpack(a, X + 2 * t, QE + t)
        a('s_waitcnt vmcnt(1)')
    else:
        stl()
        if OPT['qe']:
            for t in range(8):
                unpack(a, X + 2 * t, QE + t)
        else:
            rows8(a, 'buffer_load_dword', QE, 3, 's[32:35]')
        a('s_waitcnt vmcnt(0)')
    if OPT['tdma'] and OPT['tq']:
        a.label(skipq)
    e = a.lab('TS0')
    a.tagcheck(T + 8, [ST + 2 * i + 1 for i in range(8)])
    a(f's_cbranch_vccz {e}\ns_mov_b64 exec, vcc')
    l = a.spin_begin('TS')
    stl()
    a('s_waitcnt vmcnt(0)')
    a.tagcheck(T + 8, [ST + 2 * i + 1 for i in range(8)])
    a.spin_end_exec(l)
    a.label(e)
    a(';STAMP Tst')
    if OPT['tprio']:
        a('s_setprio 3')
    if OPT['pfat'] == 0:
        weight_prefetch(a, 95, 76)
    for t in range(8):
        a(f'v_and_b32 v{T+2*t}, 0xffff0000, v{ST+2*t}\nv_lshlrev_b32 v{ST+2*t}, 16, v{ST+2*t}\nv_rcp_f32 v{T+2*t}, v{T+2*t}')
    if not OPT['qe']:
        for t in range(8):
            unpack(a, X + 2 * t, QE + t)
    for t in range(8):
        a(f'v_pk_add_f32 {pr(F+2*t)}, {pr(X+2*t)}, {pr(ST+2*t)} {BC} {NEG}')

    def round_pairs(base):
        for t in range(8):
            a(f'v_cvt_pk_bf16_f32 v{Q+t}, v{base+2*t}, v{base+2*t+1}')
        for t in range(8):
            unpack(a, base + 2 * t, Q + t)
    round_pairs(F)
    for t in range(8):
        a(f'v_pk_mul_f32 {pr(F+2*t)}, {pr(F+2*t)}, {pr(T+2*t)} {BC}')
    round_pairs(F)
    for t in range(8):
        a(f'v_pk_mul_f32 {pr(T+2*t)}, {pr(F+2*t)}, s[{C_NL2E}:{C_NL2E+1}]')
    for i in range(16):
        a(f'v_exp_f32 v{T+i}, v{T+i}')
    for t in range(8):
        a(f'v_pk_mul_f32 {pr(F+2*t)}, {pr(F+2*t)}, {pr(F+2*t)}')
        a(f'v_pk_add_f32 {pr(T+2*t)}, {pr(T+2*t)}, s[{C_ONE}:{C_ONE+1}]')
    for i in range(16):
        a(f'v_rcp_f32 v{T+i}, v{T+i}')
    for t in range(8):
        a(f'v_pk_mul_f32 {pr(F+2*t)}, {pr(F+2*t)}, {pr(T+2*t)}')
    a(';STAMP T2')
    if OPT['tprio']:
        a('s_setprio 0')
    if OPT['pfat'] == 1:
        weight_prefetch(a, 95, 76)
    AD, Y = 16, 80
    if OPT['ox4']:
        a(f'''
        v_lshrrev_b32 v24, 2, v0
        v_and_b32 v25, 3, v0
        s_lshl_b32 s40, s{S_TT}, 5
        v_add_u32 v26, s40, v24
        v_mul_u32_u24 v16, 1280, v26
        v_lshl_add_u32 v16, v25, 4, v16
        s_lshl_b32 s40, s64, 1
        v_add_u32 v16, s40, v16
        v_add_u32 v17, {16*1280}, v16
        s_mul_i32 s40, s3, 2304
        s_add_u32 s40, s40, {L_TP}
        v_mul_u32_u24 v18, 72, v24
        v_lshl_add_u32 v18, v25, 4, v18
        v_add_u32 v18, s40, v18
        v_lshrrev_b32 v19, 4, v0
        v_mul_u32_u24 v19, {8*72}, v19
        v_and_b32 v25, 15, v0
        v_lshl_add_u32 v19, v25, 2, v19
        v_add_u32 v19, s40, v19
        ''')
    else:
        for t in range(8):
            a(f'v_mov_b32 v{AD+t}, v3')
    o, e = a.lab('TO'), a.lab('TE')
    a(f'''
    v_and_b32 v8, 7, v0
    v_lshlrev_b32 v13, 3, v8
    v_lshlrev_b32 v8, 2, v8
    v_lshlrev_b32 v9, 7, v0
    s_lshl_b32 s41, s64, 5
    s_add_u32 s41, s41, {WS_F2}
    s_lshl_b32 s40, s{S_X}, 7
    s_add_u32 s40, s40, {WS_IDX}
    s_lshl_b32 s42, s{S_TT}, 5
    s_sub_u32 s42, 2016, s42
    s_cmp_ge_u32 s{S_J}, 20
    s_cbranch_scc1 {o}
    ''')
    a.lds_wait(92, 11, W_YC, 4, 4)
    l = a.spin_begin('TI')
    a(f'buffer_load_dwordx2 v[10:11], v13, {WS}, s40 offen sc1\ns_waitcnt vmcnt(0)')
    a.tagcheck(14, [11])
    a.spin_end_vcc(l, 2)
    a(f's_branch {e}')
    a.label(o)
    a.lds_wait(92, 11, W_DMA, 1, 4)
    a(f'ds_read_b32 v10, v8 offset:{L_SLOT}\ns_waitcnt lgkmcnt(0)')
    a.label(e)
    e = a.lab('TM')
    a(f'''
    s_mov_b64 exec, 0xff
    buffer_load_dword v12, v9, {WS}, s41 offen sc1
    s_mov_b64 exec, -1
    v_and_b32 v10, 0x7ff, v10
    v_subrev_u32 v11, s42, v10
    v_cmp_gt_u32 vcc, 32, v11
    s_cbranch_vccz {e}
    v_sub_u32 v10, 2047, v10
    v_mov_b32 v7, 0
    ''')
    for k in range(8):
        a(f'v_readlane_b32 s{44+k}, v10, {k}')
    if OPT['ox4']:
        a('v_mov_b32 v8, 0x80000000\nv_add_u32 v27, 16, v26')
        for k in range(8):
            a(f'''
            v_cmp_eq_u32 vcc, s{44+k}, v26
            v_cmp_eq_u32 s[76:77], s{44+k}, v27
            v_cndmask_b32 v16, v16, v8, vcc
            v_cndmask_b32 v17, v17, v8, s[76:77]
            ''')
    else:
        for k in range(8):
            a(f'''
            v_sub_u32 v8, s{44+k}, v2
            v_cmp_gt_u32 vcc, 8, v8
            v_lshlrev_b32 v8, v8, 1
            v_cndmask_b32 v8, 0, v8, vcc
            v_or_b32 v7, v7, v8
            ''')
        for t in range(8):
            a(f'v_bfe_i32 v{AD+t}, v7, {t}, 1\nv_and_b32 v{AD+t}, 0x80000000, v{AD+t}\nv_or_b32 v{AD+t}, v{AD+t}, v3')
    a.label(e)
    e = a.lab('TF0')
    a('s_mov_b64 exec, 0xff\ns_waitcnt vmcnt(0)')
    a.tagcheck(14, [12])
    a(f's_and_b64 exec, exec, vcc\ns_cbranch_execz {e}')
    l = a.spin_begin('TF')
    a(f'buffer_load_dword v12, v9, {WS}, s41 offen sc1\ns_waitcnt vmcnt(0)')
    a.tagcheck(14, [12])
    a.spin_end_exec(l, slp=2)
    a.label(e)
    a('s_mov_b64 exec, -1')
    a(';STAMP Tix')
    if OPT['hpos'] < 0:
        a('s_mov_b32 exec_lo, 0\ns_mov_b32 exec_hi, 0x80000000')
        l = a.spin_begin('TH')
        a(f'buffer_load_dword v9, v6, {WS}, s68 offen offset:12 sc1\ns_waitcnt vmcnt(0)\nv_cmp_eq_u32 vcc, -1, v9')
        a.spin_end_exec(l, slp=OPT['thsl'])
    else:
        a(f's_lshr_b32 s40, s64, 2\ns_add_u32 s40, s40, s{S_X}\ns_lshl_b32 s40, s40, 7\nv_mov_b32 v8, {WS_HN}\ns_mov_b64 exec, 1')
        l = a.spin_begin('TH')
        a(f'buffer_load_dword v9, v8, {WS}, s40 offen sc1\ns_waitcnt vmcnt(0)')
        a.tagcheck(14, [9])
        a.spin_end_exec(l)
    a(';STAMP Th')
    l = a.spin_begin('TY')
    a(f'buffer_load_dwordx4 v[{Y}:{Y+3}], v6, {WS}, s67 offen sc1')
    a(f'buffer_load_dwordx4 v[{Y+4}:{Y+7}], v6, {WS}, s68 offen sc1')
    a('s_waitcnt vmcnt(0)')
    a.maxtree(8, range(Y, Y + 8))
    a('v_cmp_eq_u32 vcc, -1, v8')
    a.spin_end_exec(l)
    a(f''';STAMP T3
    ds_write_b128 v91, v[{Y}:{Y+3}]
    ds_write_b128 v91, v[{Y+4}:{Y+7}] offset:1152
    ds_read_b128 v[{Y}:{Y+3}], v94
    ds_read_b128 v[{Y+4}:{Y+7}], v94 offset:64
    s_waitcnt lgkmcnt(0)
    ''')
    for t in range(8):
        for hf in range(2):
            src = Y + 4 * hf + t // 2
            a(f'v_lshlrev_b32 v{T+2*t+hf}, 16, v{src}' if t % 2 == 0 else f'v_and_b32 v{T+2*t+hf}, 0xffff0000, v{src}')
        a(f'v_pk_fma_f32 {pr(T+2*t)}, {pr(T+2*t)}, {pr(F+2*t)}, {pr(X+2*t)}')
        a(f'v_cvt_pk_bf16_f32 v{Q+t}, v{T+2*t}, v{T+2*t+1}')
        so = '0' if t < 4 else 's18'
        if OPT['ox4']:
            a(f'ds_write_b32 v19, v{Q+t} offset:{72*t}')
        else:
            a(f'buffer_store_dword v{Q+t}, v{AD+t}, s[36:39], {so} offen offset:{1280*(t%4)}')
    if OPT['ox4']:
        a(f'''
        ds_read2_b64 v[{Y}:{Y+3}], v18 offset0:0 offset1:1
        ds_read2_b64 v[{Y+4}:{Y+7}], v18 offset0:{16*72//8} offset1:{16*72//8+1}
        s_waitcnt lgkmcnt(1)
        buffer_store_dwordx4 v[{Y}:{Y+3}], v16, s[36:39], 0 offen {OPT["out"]}
        s_waitcnt lgkmcnt(0)
        buffer_store_dwordx4 v[{Y+4}:{Y+7}], v17, s[36:39], 0 offen {OPT["out"]}
        ''')
    a('s_endpgm')


LX, LW, LF, LA = 72, 84, 96, 120
HD, HX = 40, 56


INIT = '''
    ds_write_b128 v11, v[12:15]
    ds_write_b128 v11, v[12:15] offset:16
    ds_write_b128 v11, v[12:15] offset:32
    ds_write_b128 v11, v[12:15] offset:48
'''


def ln_head(a):
    a(f'''
    s_lshl_b32 s{S_RI}, s{S_TT}, 2
    s_add_u32 s{S_RI}, s{S_RI}, s{S_G}
    s_lshl_b32 s18, s{S_RI}, 3
    s_lshl_b32 s19, s3, 1
    s_add_u32 s18, s18, s19
    v_and_b32 v1, 63, v0
    v_lshrrev_b32 v2, 5, v1
    v_add_u32 v2, s18, v2
    v_and_b32 v3, 31, v1
    v_lshlrev_b32 v4, 4, v3
    v_lshlrev_b32 v5, 3, v3
    v_mul_u32_u24 v6, 1280, v2
    v_add_u32 v7, v6, v5
    v_add_u32 v6, v6, v4
    v_mov_b32 v12, 0
    v_mov_b32 v13, 0
    v_mov_b32 v14, 0
    v_mov_b32 v15, 0
    v_mov_b32 v11, {L_CNT}
    {INIT if OPT['eb'] else ''}
    s_waitcnt lgkmcnt(0)
    ;STAMP Larg
    {f's_barrier' + chr(10) + f's_load_dword s{S_EP}, s[54:55], {WS_E}' if OPT['eb'] else ''}
    ''')
    a.srd(20, 4, NB)
    a(f'''
    buffer_load_dwordx4 v[{LX}:{LX+3}], v6, s[20:23], 0 offen
    buffer_load_dwordx4 v[{LX+4}:{LX+7}], v6, s[20:23], 0 offen offset:512
    buffer_load_dwordx2 v[{LX+8}:{LX+9}], v7, s[20:23], 0 offen offset:1024
    ''')
    a.srd(24, 44, 1280)
    if OPT['wre']:
        a(wr_loads())


def wr_loads():
    return f'''
    buffer_load_dwordx4 v[{LW}:{LW+3}], v4, s[24:27], 0 offen
    buffer_load_dwordx4 v[{LW+4}:{LW+7}], v4, s[24:27], 0 offen offset:512
    buffer_load_dwordx2 v[{LW+8}:{LW+9}], v5, s[24:27], 0 offen offset:1024
    '''


def ln_role(a):
    A = LA
    a.srd(60, 54, WS_SIZE)
    if not OPT['eb']:
        a(INIT + f's_waitcnt lgkmcnt(0)\n;STAMP Lb0\ns_barrier\n;STAMP Lb1\ns_load_dword s{S_EP}, s[54:55], {WS_E}')
    a(f'''
    {'' if OPT['wre'] else wr_loads()}
    v_mov_b32 v18, 1
    s_mov_b32 s{ONES}, 0x3f803f80
    s_mov_b32 s41, {INV640}
    s_waitcnt vmcnt(3)
    ;STAMP Lq
    v_dot2_f32_bf16 v{A}, v{LX}, s{ONES}, 0
    ''')
    for i in range(1, 10):
        a(f'v_dot2_f32_bf16 v{A}, v{LX+i}, s{ONES}, v{A}')
    for i in range(3):
        unpack(a, LF + 2 * i, LX + i)
    for n, sh in enumerate((8, 4, 2, 1)):
        a(f'v_add_f32_dpp v{A}, v{A}, v{A} row_ror:{sh} {DPP}')
        unpack(a, LF + 2 * (3 + n), LX + 3 + n)
    a(f'v_mov_b32 v{A+1}, v{A}')
    unpack(a, LF + 14, LX + 7)
    a(f'v_permlane16_swap_b32 v{A}, v{A+1}')
    unpack(a, LF + 16, LX + 8)
    a(f'v_add_f32 v{A}, v{A}, v{A+1}')
    unpack(a, LF + 18, LX + 9)
    a(f'v_mul_f32 v{A}, s41, v{A}')
    rnd(a, A + 2, A)
    a(f'v_sub_f32 v{A}, v{A}, v{A+2}')
    for i in range(10):
        a(f'v_pk_add_f32 {pr(LF+2*i)}, {pr(LF+2*i)}, {pr(A+2)} {BC} {NEG}')
    a(f'v_pk_mul_f32 {pr(A+4)}, {pr(LF)}, {pr(LF)}')
    for i in range(1, 10):
        a(f'v_pk_fma_f32 {pr(A+4)}, {pr(LF+2*i)}, {pr(LF+2*i)}, {pr(A+4)}')
    a(f'v_add_f32 v{A+4}, v{A+4}, v{A+5}')
    cv = [f'v_cvt_pk_bf16_f32 v{LX+i}, v{LF+2*i}, v{LF+2*i+1}' for i in range(10)]
    a(cv.pop(0) + '\n' + cv.pop(0))
    for sh in (8, 4, 2, 1):
        a(f'v_add_f32_dpp v{A+4}, v{A+4}, v{A+4} row_ror:{sh} {DPP}')
        a(cv.pop(0) + '\n' + cv.pop(0))
    a(f'v_mov_b32 v{A+1}, v{A+4}')
    unpack(a, LF, LX)
    a(f'''
    v_permlane16_swap_b32 v{A+4}, v{A+1}
    v_add_f32 v{A+4}, v{A+4}, v{A+1}
    v_mul_f32 v{A+4}, s41, v{A+4}
    v_fma_f32 v{A+4}, -v{A}, v{A}, v{A+4}
    v_max_f32 v{A+4}, 0, v{A+4}
    ''')
    rnd(a, A + 4, A + 4)
    a(f'v_add_f32 v{A+4}, {EPS}, v{A+4}')
    rnd(a, A + 4, A + 4)
    a(f'v_sqrt_f32 v{A+4}, v{A+4}')
    unpack(a, LF + 2, LX + 1)
    rnd(a, A + 4, A + 4)
    a(f'v_rcp_f32 v{A+6}, v{A+4}')
    for i in range(2, 10):
        unpack(a, LF + 2 * i, LX + i)
    for i in range(10):
        a(f'v_pk_mul_f32 {pr(LF+2*i)}, {pr(LF+2*i)}, {pr(A+6)} {BC}')
    for i in range(10):
        a(f'v_cvt_pk_bf16_f32 v{LX+i}, v{LF+2*i}, v{LF+2*i+1}')
    a(f'''
    s_waitcnt vmcnt(0) lgkmcnt(0)
    s_add_u32 s{S_EP}, s{S_EP}, 1
    v_mov_b32 v17, s{S_EP}
    s_mov_b64 exec, 1
    ds_write_b32 v11, v17 offset:{W_EP}
    ds_write_b32 v11, v18 offset:{W_EPN}
    s_mov_b64 exec, -1
    v_dot2_f32_bf16 v{A+6}, v{LX}, v{LW}, 0
    ''')
    for i in range(1, 10):
        a(f'v_dot2_f32_bf16 v{A+6}, v{LX+i}, v{LW+i}, v{A+6}')
    fill = [f'v_lshrrev_b32 v{A+2}, 16, v{A+2}', f'v_or_b32 v{LF}, v{A+2}, v{A+4}', f'v_and_b32 v{LF+4}, 7, v2',
            f'v_lshlrev_b32 v{LF+4}, 3, v{LF+4}', f'v_mov_b32 v{LF+1}, s{S_EP}', f'v_mov_b32 v{LF+3}, s{S_EP}',
            f'v_lshlrev_b32 v{LF+6}, 4, v1', f'v_sub_u32 v{A+7}, 2047, v2', f's_lshl_b32 s40, s{S_RI}, 7', f's_add_u32 s40, s40, {WS_RI}',
            's_nop 0']
    a('\n'.join(fill[:3]))
    fill = fill[3:]
    for sh in (8, 4, 2, 1):
        a(f'v_add_f32_dpp v{A+6}, v{A+6}, v{A+6} row_ror:{sh} {DPP}')
        a(fill.pop(0) + '\n' + fill.pop(0))
    a(f'''
    v_mov_b32 v{A+1}, v{A+6}
    v_permlane16_swap_b32 v{A+6}, v{A+1}
    v_add_f32 v{A+6}, v{A+6}, v{A+1}
    v_add_f32 v{A+6}, 0, v{A+6}
    v_cvt_pk_bf16_f32 v{A+6}, v{A+6}, v{A+6}
    v_ashrrev_i32 v{A+1}, 31, v{A+6}
    v_or_b32 v{A+1}, 0x80000000, v{A+1}
    v_xor_b32 v{A+6}, v{A+6}, v{A+1}
    v_and_b32 v{A+6}, 0xffff0000, v{A+6}
    v_or_b32 v{LF+2}, v{A+6}, v{A+7}
    s_mov_b32 exec_lo, 1
    s_mov_b32 exec_hi, 1
    ds_write_b64 v{LF+4}, v[{LF+2}:{LF+3}] offset:{L_RI}
    ds_write_b64 v{LF+4}, v[{LF}:{LF+1}] offset:{L_RI+64}
    s_mov_b32 exec_hi, 0
    ds_add_rtn_u32 v18, v11, v18 offset:{W_RI}
    s_mov_b64 exec, 0xff
    ds_read_b128 v[{LF+12}:{LF+15}], v{LF+6} offset:{L_RI}
    s_waitcnt lgkmcnt(0)
    v_readfirstlane_b32 s41, v18
    s_cmp_eq_u32 s41, 3
    s_cselect_b32 s40, s40, 0x80000000
    buffer_store_dwordx4 v[{LF+12}:{LF+15}], v{LF+6}, {WS}, s40 offen sc1
    ;STAMP Lri
    s_mov_b64 exec, -1
    ''')


def lds_schedule(a, ops):
    issued, pos, done = 0, {}, 0
    for o in ops:
        if o[0] == 'ld':
            a(o[1])
            issued += 1
            pos[o[2]] = issued
        elif o[0] == 'raw':
            a(o[1])
        else:
            needp = max(pos[k] for k in o[2])
            if needp > done:
                n = min(issued - needp, 15)
                a(f's_waitcnt lgkmcnt({n})')
                done = issued - n
            a(o[1])


def conv_role(a):
    AA, GA = 136, 140
    ACC, AF, GF = 8, 40, 72
    a(f'''
    s_mul_i32 s18, s{S_X}, 80
    s_lshl_b32 s19, s{S_J}, 2
    s_add_u32 s19, s19, s3
    s_add_u32 s64, s18, s19
    s_lshl_b32 s65, s64, 12
    v_lshlrev_b32 v8, 4, v1
    ''')
    a.srd(28, 12, NB)
    if OPT['hgate']:
        a.lds_wait(11, 16, W_TST if OPT['hgate'] == 1 else W_TFL, 5)
    for m in range(4):
        a(f'buffer_load_dwordx4 v[{HD+4*m}:{HD+4*m+3}], v8, s[28:31], s65 offen offset:{1024*m}')
    a(f'''
    s_mul_i32 s66, s64, {RS}
    s_mul_i32 s67, s3, {CW_LDS}
    s_lshl_b32 s40, s64, 1
    s_and_b32 s40, s40, 0xfffffffc
    s_add_u32 s14, s14, s40
    s_addc_u32 s15, s15, 0
    s_load_dword s68, s[14:15], 0
    v_add_u32 v9, s67, v8
    s_mov_b64 exec, 0x3fffffff
    ds_write_b128 v9, v[12:15] offset:{U_OFF+4096}
    s_mov_b64 exec, 3
    ds_write_b128 v9, v[12:15] offset:{H0_OFF}
    ds_write_b128 v9, v[12:15] offset:{H1_OFF}
    s_mov_b64 exec, -1
    v_mov_b32 v{GA+3}, {L_CNT}
    v_and_b32 v10, 15, v1
    v_lshrrev_b32 v11, 4, v1
    v_and_b32 v16, 1, v10
    v_add_u32 v{AA}, v10, v16
    v_lshlrev_b32 v{AA}, 1, v{AA}
    v_lshl_add_u32 v{AA}, v11, 4, v{AA}
    v_xor_b32 v16, 1, v16
    v_mul_u32_u24 v16, {H1_OFF}, v16
    v_add3_u32 v{AA}, v{AA}, v16, s67
    v_add_u32 v{AA+1}, 1024, v{AA}
    v_add_u32 v{AA+2}, 2048, v{AA}
    v_add_u32 v{AA+3}, 3072, v{AA}
    v_lshlrev_b32 v{GA}, 5, v10
    v_sub_u32 v{GA}, {U_OFF+480}, v{GA}
    v_lshl_add_u32 v{GA}, v11, 4, v{GA}
    v_add_u32 v{GA}, s67, v{GA}
    v_lshlrev_b32 v{GA+1}, 5, v10
    v_lshl_add_u32 v{GA+2}, v11, 3, v{GA+1}
    v_sub_u32 v{GA+2}, {U_OFF+2*2044-3584}, v{GA+2}
    v_add_u32 v{GA+2}, s67, v{GA+2}
    ''')
    if OPT['ylds']:
        a(f'''
        v_lshl_add_u32 v{GA+1}, v11, 3, v{GA+1}
        v_lshrrev_b32 v16, 2, v10
        v_lshl_add_u32 v{GA+1}, v16, 4, v{GA+1}
        v_add_u32 v{GA+1}, s67, v{GA+1}
        v_lshrrev_b32 v16, 3, v1
        v_add_u32 v16, v16, v1
        v_lshl_add_u32 v{GA+9}, v16, 4, s67
        ''')
    else:
        a(f'''
        v_and_b32 v16, 1, v11
        v_lshl_add_u32 v{GA+1}, v16, 9, v{GA+1}
        v_lshrrev_b32 v16, 1, v11
        v_lshl_add_u32 v{GA+1}, v16, 4, v{GA+1}
        ''')
    a(f'''
    v_mov_b32 v12, 1
    s_lshr_b32 s43, s64, 5
    s_lshl_b32 s43, s43, 13
    s_add_u32 s43, s43, {WS_F1}
    v_lshlrev_b32 v19, 7, v1
    s_waitcnt vmcnt(0)
    ;STAMP Ch
    ''')
    if OPT['cfe']:
        e = a.lab('CA')
        a(f'v_mov_b32 v17, 0\ns_cmp_lg_u32 s3, 0\ns_cbranch_scc1 {e}')
        a.lds_wait(GA + 3, 17, W_TFL, 5)
        a(f'buffer_load_dword v17, v19, {WS}, s43 offen sc1')
        a.label(e)
    for m in range(4):
        a(f'v_mov_b32_dpp v{HX+m}, v{HD+4*m} wave_shl:1 {DPP}')
    for m in range(3):
        a(f'v_readlane_b32 s{40+m}, v{HD+4*m+4}, 0')
    for m in range(3):
        a(f'v_writelane_b32 v{HX+m}, s{40+m}, 63')
    for m in range(4):
        a(f'ds_write_b128 v9, v[{HD+4*m}:{HD+4*m+3}] offset:{H0_OFF+32+1024*m}')
        T = 20 + 4 * m
        for d in range(4):
            hi = HD + 4 * m + d + 1 if d < 3 else HX + m
            a(f'v_alignbyte_b32 v{T+d}, v{hi}, v{HD+4*m+d}, 2')
        a(f'ds_write_b128 v9, v[{T}:{T+3}] offset:{H1_OFF+32+1024*m}')
    a(f'''
    v_lshlrev_b32 v16, 16, v{HD}
    s_mov_b64 exec, 1
    ds_write_b32 v9, v16 offset:{H1_OFF+28}
    s_mov_b64 exec, -1
    ''')

    def ldA(g, rho):
        o = 128 * (g & 1) + 16 * rho
        r = AF + 4 * g
        return [('ld', f'ds_read2_b32 v[{r}:{r+1}], v{AA+g//2} offset0:{o} offset1:{o+1}', ('A0', g, rho)),
                ('ld', f'ds_read2_b32 v[{r+2}:{r+3}], v{AA+g//2} offset0:{o+2} offset1:{o+3}', ('A', g, rho))]

    def greg(d, rho):
        return GF + 4 * d + 32 * (rho & 1)

    def ldG(d, rho):
        r = greg(d, rho)
        return [('ld', f'ds_read_b128 v[{r}:{r+3}], v{GA} offset:{512*(7-d)+64*rho}', ('G', d, rho))]
    for g in range(7, -1, -1):
        for o in ldA(g, 0):
            a(o[1])
    a(f's_add_u32 s40, s66, {WS_UR}\ns_add_u32 m0, s67, {U_OFF}')
    o, e = a.lab('CO'), a.lab('CE')
    a(f's_cmp_lg_u32 s3, 0\ns_cbranch_scc1 {o}')
    if OPT['cfe']:
        ok = a.lab('CK')
        a('s_waitcnt vmcnt(0)')
        a.tagcheck(18, [17])
        a(f's_cbranch_vccz {ok}\ns_mov_b64 exec, vcc')
    else:
        a.lds_wait(GA + 3, 17, W_TFL, 5)
    l = a.spin_begin('CF')
    a(f'buffer_load_dword v17, v19, {WS}, s43 offen sc1\ns_waitcnt vmcnt(0)')
    a.tagcheck(18, [17])
    a.spin_end_exec(l)
    if OPT['cfe']:
        a.label(ok)
    a(f'ds_write_b32 v{GA+3}, v12 offset:{W_CF}\ns_branch {e}')
    a.label(o)
    a.lds_wait(GA + 3, 17, W_CF, 1)
    a.label(e)
    a(';STAMP Cfl')
    for m in (3, 2, 1, 0):
        a(f'buffer_load_dwordx4 v8, {WS}, s40 offen offset:{1024*m} sc1 lds')
    if OPT['prio']:
        a(f's_setprio {OPT["prio"]}')
    a(f'''
    s_lshr_b32 s42, s64, 2
    s_lshl_b32 s42, s42, 7
    s_add_u32 s42, s42, {WS_F2}
    s_lshr_b32 s43, s64, 5
    s_lshl_b32 s43, s43, 10
    s_add_u32 s43, s43, {WS_HN}
    s_and_b32 s41, s64, 31
    s_cmp_eq_u32 s41, 31
    s_cselect_b32 s43, s43, 0x80000000
    v_mov_b32 v{GA+4}, 1
    v_mov_b32 v{GA+5}, s{S_EP}
    v_mov_b32 v{GA+6}, 0
    v_mov_b32 v12, -1
    v_mov_b32 v13, -1
    v_mov_b32 v14, -1
    v_mov_b32 v15, -1
    s_and_b32 s41, s64, 1
    s_lshl_b32 s41, s41, 4
    s_waitcnt lgkmcnt(0)
    s_lshr_b32 s68, s68, s41
    s_and_b32 s68, s68, 0xffff
    s_lshl_b32 s69, s68, 16
    s_add_u32 s40, s66, {WS_Y2}
    s_waitcnt vmcnt(0)
    ;STAMP C1
    ''')
    ops = []
    for d in range(8):
        ops += ldG(d, 0)
    clr = [('raw', f'buffer_store_dwordx4 v[12:15], v{GA+7}, {WS}, s40 offen offset:{1024*m} sc1') for m in range(4)]
    a(f'v_mov_b32 v{GA+7}, v8')
    first, pend, nm = set(), [], 0
    a(f'v_mov_b32 v{GA+8}, v19')
    for rho in range(8):
        nxt = rho + 1 < 8
        if rho == OPT['ycr']:
            ops.append(('ld', f's_waitcnt vmcnt(0)\ns_mov_b64 exec, 1\nds_add_rtn_u32 v{GA+4}, v{GA+3}, v{GA+4} offset:{W_YC}\ns_mov_b64 exec, -1', 'yc'))
        if rho == OPT['ycr'] + 1:
            ops.append(('mfma', f'v_readfirstlane_b32 s41, v{GA+4}\ns_cmp_eq_u32 s41, 3\ns_cselect_b32 s42, s42, 0x80000000\ns_mov_b64 exec, 1\nbuffer_store_dword v{GA+5}, v{GA+6}, {WS}, s42 offen sc1\ns_mov_b64 exec, -1', ['yc']))
        for g in range(7, -1, -1):
            for d in range(8 - g):
                i = g + d
                c = f'v[{ACC+4*i}:{ACC+4*i+3}]' if i in first else '0'
                first.add(i)
                keys = [('G', d, rho)] + ([('A', g, rho)] if rho else [])
                r = greg(d, rho)
                ops.append(('mfma', f'v_mfma_f32_16x16x32_bf16 v[{ACC+4*i}:{ACC+4*i+3}], v[{AF+4*g}:{AF+4*g+3}], v[{r}:{r+3}], {c}', keys))
                if pend:
                    ops.append(pend.pop(0))
                nm += 1
                if nm == 288 - OPT['hpos'] and OPT['hpos'] >= 0:
                    ops.append(('raw', f's_mov_b64 exec, 0xff\nbuffer_store_dword v{GA+5}, v19, {WS}, s43 offen sc1\ns_mov_b64 exec, -1'.replace('v19', f'v{GA+8}')))
                if rho == 0 and g == 4 and clr:
                    ops.append(clr.pop(0))
                slot = {(4, 3): 0, (3, 3): 1, (2, 3): 2, (2, 5): 3, (1, 3): 4, (1, 5): 5, (0, 3): 6, (0, 5): 7}.get((g, d))
                if nxt and slot is not None:
                    ops += ldG(slot, rho + 1)
                if not nxt and g <= 1 and d < 4:
                    n = (1 - g) * 4 + d
                    ops.append(('ld', f'ds_read_b64 v[{72+2*n}:{73+2*n}], v{GA+2} offset:{512*(7-n)}', ('U', n)))
            if nxt:
                pend += ldA(g, rho + 1)
    lds_schedule(a, ops)
    UU, T, OUT = 72, 40, 88
    a('s_waitcnt lgkmcnt(0)\n;STAMP C2')

    def dots(i):
        for r in range(4):
            src = UU + 2 * i + (1 if r < 2 else 0)
            sel = 's69' if r % 2 == 0 else 's68'
            a(f'v_dot2_f32_bf16 v{T+4*i+r}, v{src}, {sel}, v{ACC+4*i+r}')

    def cvts(i):
        a(f'v_cvt_pk_bf16_f32 v{OUT+2*i}, v{T+4*i}, v{T+4*i+1}')
        a(f'v_cvt_pk_bf16_f32 v{OUT+2*i+1}, v{T+4*i+2}, v{T+4*i+3}')

    def put(p):
        a(f'v_permlane16_swap_b32 v{OUT+4*p}, v{OUT+4*p+2}')
        a(f'v_permlane16_swap_b32 v{OUT+4*p+1}, v{OUT+4*p+3}')
        a(f'buffer_store_dwordx4 v[{OUT+4*p}:{OUT+4*p+3}], v{GA+1}, {WS}, s40 offen offset:{1024*p} sc1')
    if OPT['ylds']:
        RD = 104
        dots(0)
        for i in range(8):
            if i < 7:
                dots(i + 1)
            cvts(i)
            a(f'ds_write_b64 v{GA+1}, v[{OUT+2*i}:{OUT+2*i+1}] offset:{576*i}')
            if i % 2:
                p = i // 2
                a(f'ds_read_b128 v[{RD+4*p}:{RD+4*p+3}], v{GA+9} offset:{1152*p}')
            if i in (3, 5):
                p = i // 2 - 1
                a(f's_waitcnt lgkmcnt(3)\nbuffer_store_dwordx4 v[{RD+4*p}:{RD+4*p+3}], v{GA+7}, {WS}, s40 offen offset:{1024*p} sc1')
        for p in (2, 3):
            a(f's_waitcnt lgkmcnt({3 if p == 2 else 0})\nbuffer_store_dwordx4 v[{RD+4*p}:{RD+4*p+3}], v{GA+7}, {WS}, s40 offen offset:{1024*p} sc1')
        a('s_endpgm')
        return
    dots(0)
    dots(1)
    for p in range(4):
        if p < 3:
            dots(2 * p + 2)
        cvts(2 * p)
        cvts(2 * p + 1)
        if p < 3:
            dots(2 * p + 3)
        put(p)
    a('s_endpgm')


SORT8 = [(0, 1), (2, 3), (4, 5), (6, 7), (0, 2), (1, 3), (4, 6), (5, 7), (1, 2), (5, 6), (0, 4), (3, 7), (1, 5), (2, 6), (1, 4), (3, 6), (2, 4), (3, 5), (3, 4)]
M_ODD16, M_HI32, M_B1, M_B0 = 40, 42, 72, 74


def silu(a, regs, tmp):
    for op in (f'v_mul_f32 v{{t}}, {NLOG2E}, v{{r}}', 'v_exp_f32 v{t}, v{t}', 'v_add_f32 v{t}, 1.0, v{t}', 'v_rcp_f32 v{t}, v{t}', 'v_mul_f32 v{r}, v{r}, v{t}'):
        for r, t in zip(regs, tmp):
            a(op.format(r=r, t=t))


def clean8(a, v, t):
    a(f'''
    v_max_u32_dpp v{t}, v{v}, v{v} row_shl:4 row_mask:0xf bank_mask:0x5
    v_min_u32_dpp v{t}, v{v}, v{v} row_shr:4 row_mask:0xf bank_mask:0xa
    v_max_u32_dpp v{v}, v{t}, v{t} quad_perm:[2,3,0,1] {DPP}
    v_min_u32_dpp v{t}, v{t}, v{t} quad_perm:[2,3,0,1] {DPP}
    v_cndmask_b32 v{v}, v{v}, v{t}, s[{M_B1}:{M_B1+1}]
    v_max_u32_dpp v{t}, v{v}, v{v} quad_perm:[1,0,3,2] {DPP}
    v_min_u32_dpp v{v}, v{v}, v{v} quad_perm:[1,0,3,2] {DPP}
    v_cndmask_b32 v{v}, v{t}, v{v}, s[{M_B0}:{M_B0+1}]
    ''')


def merge_rows(a, v, t):
    for swap, mask in (('v_permlane16_swap_b32', M_ODD16), ('v_permlane32_swap_b32', M_HI32)):
        a(f'''
        v_mov_b32_dpp v{t}, v{v} row_half_mirror {DPP}
        v_mov_b32_dpp v{t+1}, v{v} row_half_mirror {DPP}
        {swap} v{t}, v{t+1}
        v_cndmask_b32 v{t}, v{t+1}, v{t}, s[{mask}:{mask+1}]
        v_max_u32 v{v}, v{v}, v{t}
        ''')
        clean8(a, v, t)


def ffn_role(a):
    a(f'''
    s_sub_u32 s65, s{S_J}, 20
    s_mul_i32 s64, s{S_X}, 12
    s_add_u32 s64, s64, s65
    v_lshrrev_b32 v8, 1, v1
    v_mul_u32_u24 v8, 3072, v8
    v_and_b32 v9, 1, v1
    v_lshl_add_u32 v8, v9, 4, v8
    s_mul_i32 s40, s3, {160*3072}
    s_lshl_b32 s41, s64, 5
    s_add_u32 s67, s40, s41
    s_mul_i32 s68, s3, 5120
    s_mul_i32 s59, s64, {16*1280}
    s_mul_i32 s41, s3, 320
    s_add_u32 s59, s59, s41
    v_and_b32 v2, 15, v1
    v_lshrrev_b32 v3, 4, v1
    v_lshlrev_b32 v10, 4, v2
    v_lshl_add_u32 v10, v3, 7, v10
    s_mul_i32 s66, s64, {PF}
    s_mul_i32 s41, s3, 5120
    s_add_u32 s66, s66, s41
    s_add_u32 s66, s66, {WS_P}
    s_lshl_b32 s18, s3, 13
    s_add_u32 s18, s18, {WS_RI}
    s_add_u32 s19, s18, 4096
    v_lshrrev_b32 v4, 2, v1
    v_and_b32 v5, 3, v1
    v_lshlrev_b32 v5, 4, v5
    v_lshl_add_u32 v4, v4, 7, v5
    s_mov_b32 s41, 0xcccd
    ''')
    a.srd(28, 46, 640 * 3072)
    a.srd(32, 48, 640 * 3072)
    a.srd(36, 50, 1536 * 1280)
    DA = 104
    for c in range(5):
        a(f'''
        v_add_u32 v{DA+c}, {64*c}, v1
        v_mul_u32_u24 v9, s41, v{DA+c}
        v_lshrrev_b32 v9, 20, v9
        v_mul_u32_u24 v9, {1280-320}, v9
        v_lshl_add_u32 v{DA+c}, v{DA+c}, 4, v9
        ''')
    a(f'''
    s_mov_b32 s{M_ODD16}, 0xffff0000
    s_mov_b32 s{M_ODD16+1}, 0xffff0000
    s_mov_b32 s{M_HI32}, 0
    s_mov_b32 s{M_HI32+1}, -1
    s_mov_b32 s{M_B1}, 0xcccccccc
    s_mov_b32 s{M_B1+1}, 0xcccccccc
    s_mov_b32 s{M_B0}, 0xaaaaaaaa
    s_mov_b32 s{M_B0+1}, 0xaaaaaaaa
    s_mov_b32 s76, 0x00010001
    s_mov_b32 s77, 0x00010001
    v_mov_b32 v34, 0
    v_mov_b32 v12, 1
    ''')
    D = []
    for c in range(5):
        D.append(f's_add_u32 m0, s68, {L_G + 1024*c}\ns_add_u32 s69, s67, {c*32*3072}\nbuffer_load_dwordx4 v8, s[28:31], s69 offen lds')
        D.append(f's_add_u32 m0, s68, {L_U + 1024*c}\ns_nop 0\nbuffer_load_dwordx4 v8, s[32:35], s69 offen lds')
    DN = [f's_add_u32 m0, s68, {L_D + 1024*c}\ns_nop 0\nbuffer_load_dwordx4 v{DA+c}, s[36:39], s59 offen lds' for c in range(5)]
    if OPT['ddn']:
        D, DN = D + DN, []
    if OPT['tdma']:
        D, DN = [], []
    a.lds_wait(11, 9, W_TFL if OPT['fgate'] else W_TST, 5)
    for _ in range(min(len(D), OPT['dmas'])):
        a(D.pop(0))
    KG = 16
    def fkl():
        for i in range(4):
            a(f'buffer_load_dwordx4 v[{KG+4*i}:{KG+4*i+3}], v4, {WS}, s{18+i//2} offen offset:{2048*(i%2)} sc1')
    e = a.lab('FK0')
    if OPT['fke']:
        fkl()
        a.lds_add(11, 12, W_FK)
        a('s_waitcnt vmcnt(0)')
        a.tagcheck(32, [KG + 2 * i + 1 for i in range(8)])
        a(f's_cbranch_vccz {e}\ns_mov_b64 exec, vcc')
    l = a.spin_begin('FK')
    fkl()
    a('s_waitcnt vmcnt(0)')
    a.tagcheck(32, [KG + 2 * i + 1 for i in range(8)])
    a.spin_end_exec(l)
    a.label(e)
    a(';STAMP F0')
    if OPT['tdma'] and not OPT['fke']:
        a.lds_add(11, 12, W_FK)
    key = [KG + 2 * i for i in range(8)]
    spare = KG + 1
    for n, (i, j) in enumerate(SORT8):
        a(f'v_max_u32 v{spare}, v{key[i]}, v{key[j]}\nv_min_u32 v{key[j]}, v{key[i]}, v{key[j]}')
        key[i], spare = spare, key[i]
        if n % 2 == 1 and len(D) > 8:
            a(D.pop(0))
    for rd in range(8):
        a(f'v_max_u32_dpp v33, v{key[0]}, v{key[0]} row_ror:8 {DPP}')
        if D:
            a(D.pop(0))
        for sh in (4, 2, 1):
            a(f'v_max_u32_dpp v33, v33, v33 row_ror:{sh} {DPP}')
        if rd < 7:
            a(f'v_cmp_eq_u32 vcc, v33, v{key[0]}')
        a('v_cndmask_b32 v34, v34, v33, s[76:77]\ns_lshl_b64 s[76:77], s[76:77], 1')
        for i in range(7 - rd):
            a(f'v_cndmask_b32 v{key[i]}, v{key[i]}, v{key[i+1]}, vcc')
    assert not D
    merge_rows(a, 34, 32)
    a(f'''
    s_lshl_b32 s76, s3, 5
    s_add_u32 s76, s76, {L_CAND}
    v_lshl_add_u32 v35, v1, 2, s76
    v_and_b32 v36, 7, v1
    v_lshlrev_b32 v36, 2, v36
    v_lshl_add_u32 v36, v3, 5, v36
    s_mov_b64 exec, 0xff
    ds_write_b32 v35, v34
    s_mov_b64 exec, 1
    ds_add_u32 v11, v12 offset:{W_S0}
    s_mov_b64 exec, -1
    ;STAMP Fex
    ''')
    a.lds_wait(11, 35, W_S0, 4)
    a(f'''
    ds_read_b32 v34, v36 offset:{L_CAND}
    s_mul_i32 s76, s3, 320
    v_lshl_add_u32 v36, v3, 4, s76
    v_bfe_u32 v37, v1, 3, 1
    v_lshl_add_u32 v36, v37, 6, v36
    s_mov_b32 s77, {WS_RI+64}
    s_waitcnt lgkmcnt(0)
    ''')
    merge_rows(a, 34, 32)
    XP = 40
    a(f'''
    ;STAMP F1
    v_and_b32 v35, 0x7ff, v34
    v_sub_u32 v35, 2047, v35
    v_mul_u32_u24 v37, 1280, v35
    v_add_u32 v36, v36, v37
    buffer_load_dwordx4 v[{XP}:{XP+3}], v36, s[20:23], 0 offen
    buffer_load_dwordx4 v[{XP+4}:{XP+7}], v36, s[20:23], 0 offen offset:128
    buffer_load_dwordx4 v[{XP+8}:{XP+11}], v36, s[20:23], 0 offen offset:256
    v_and_b32 v37, 0x7f8, v35
    v_add_u32 v37, v37, v35
    v_lshlrev_b32 v37, 3, v37
    buffer_load_dwordx2 v[38:39], v37, {WS}, s77 offen sc1
    ''')
    a(f'''
    v_lshlrev_b32 v15, 2, v1
    v_mov_b32_dpp v52, v34 quad_perm:[0,2,0,2] {DPP}
    v_mov_b32_dpp v54, v34 quad_perm:[1,3,1,3] {DPP}
    v_mov_b32 v53, s{S_EP}
    v_mov_b32 v55, s{S_EP}
    s_mov_b64 exec, 0xff
    ds_write_b32 v15, v34 offset:{L_SLOT}
    ds_write_b32 v11, v12 offset:{W_DMA}
    v_lshrrev_b32 v15, 2, v1
    v_lshlrev_b32 v15, 5, v15
    v_and_b32 v32, 1, v1
    v_lshl_add_u32 v15, v32, 4, v15
    s_lshl_b32 s76, s{S_X}, 7
    s_add_u32 s76, s76, {WS_IDX}
    s_or_b32 s40, s65, s3
    s_cmp_eq_u32 s40, 0
    s_cselect_b32 s76, s76, 0x80000000
    s_mov_b64 exec, 0x33
    buffer_store_dwordx4 v[52:55], v15, {WS}, s76 offen sc1
    s_or_b32 s40, s64, s3
    s_cmp_eq_u32 s40, 0
    s_cselect_b32 s76, {WS_E}, 0x80000000
    s_mov_b64 exec, 1
    buffer_store_dword v53, v15, {WS}, s76 offen sc1
    s_mov_b64 exec, -1
    ''')
    for o in DN:
        a(o)
    WA = 72
    a(f'''
    v_lshrrev_b32 v4, 2, v2
    v_and_b32 v5, 3, v2
    v_lshlrev_b32 v6, 5, v4
    v_lshl_add_u32 v6, v5, 3, v6
    v_lshl_add_u32 v6, v3, 8, v6
    v_add_u32 v6, s68, v6
    v_lshl_add_u32 v13, v3, 2, v4
    v_mul_u32_u24 v13, 320, v13
    v_lshl_add_u32 v13, v5, 3, v13
    v_add_u32 v13, s68, v13
    v_lshlrev_b32 v14, 4, v1
    v_add_u32 v7, s68, v14
    s_waitcnt vmcnt({len(DN)+2})
    ''')
    e = a.lab('FS0')
    a.tagcheck(32, [39])
    a(f's_cbranch_vccz {e}')
    l = a.spin_begin('FS')
    a(f'buffer_load_dwordx2 v[38:39], v37, {WS}, s77 offen sc1\ns_waitcnt vmcnt(0)')
    a.tagcheck(32, [39])
    a.spin_end_vcc(l)
    a.label(e)
    a(';STAMP Fx')
    if OPT['tdma']:
        a.lds_wait(11, 32, W_GU, 4)
    a(';STAMP Fgd')
    frag = []
    for c in (0, 2, 4, 1, 3):
        for mt, base in enumerate((L_G, L_U)):
            r = WA + 8 * c + 4 * mt
            frag.append(f'ds_read_b64_tr_b16 v[{r}:{r+1}], v6 offset:{base+1024*c}')
            frag.append(f'ds_read_b64_tr_b16 v[{r+2}:{r+3}], v6 offset:{base+1024*c+128}')
    XF = 112
    a('v_and_b32 v39, 0xffff0000, v38\nv_lshlrev_b32 v38, 16, v38\nv_rcp_f32 v60, v39')
    for i in range(12):
        unpack(a, XF + 2 * i, XP + i)
        a(frag.pop(0))
    for i in range(12):
        a(f'v_pk_add_f32 {pr(XF+2*i)}, {pr(XF+2*i)}, {pr(38)} {BC} {NEG}')
        if frag:
            a(frag.pop(0))
    for i in range(12):
        a(f'v_cvt_pk_bf16_f32 v{XP+i}, v{XF+2*i}, v{XF+2*i+1}')
    for i in range(12):
        unpack(a, XF + 2 * i, XP + i)
    for i in range(12):
        a(f'v_pk_mul_f32 {pr(XF+2*i)}, {pr(XF+2*i)}, {pr(60)} {BC}')
    for i in range(12):
        a(f'v_cvt_pk_bf16_f32 v{XP+i}, v{XF+2*i}, v{XF+2*i+1}')
    a(';STAMP Fxn\nv_mov_b32 v39, v60')
    XO = 52
    for i in range(8):
        a(f'v_mov_b32_dpp v{XO+i}, v{XP+i} row_ror:8 {DPP}')
    a('s_waitcnt lgkmcnt(0)')
    for c in (0, 2, 4, 1, 3):
        xr = XP + 4 * (c // 2) if c % 2 == 0 else XO + 4 * (c // 2)
        for mt in range(2):
            acc = 60 + 4 * mt
            r = WA + 8 * c + 4 * mt
            cc = '0' if c == 0 else f'v[{acc}:{acc+3}]'
            a(f'v_mfma_f32_16x16x32_bf16 v[{acc}:{acc+3}], v[{r}:{r+3}], v[{xr}:{xr+3}], {cc}')
    WDN, R, O = 112, 72, 72
    a(f'''
    s_mov_b32 s40, 0x07060503
    s_mov_b32 s41, 0x07060502
    s_mov_b32 s43, 0x07060501
    ds_write_b128 v7, v[60:63] offset:{L_G}
    ds_write_b128 v7, v[64:67] offset:{L_G+1024}
    s_mov_b64 exec, 1
    ds_add_u32 v11, v12 offset:{W_S1}
    s_mov_b64 exec, -1
    ;STAMP Fm1
    s_waitcnt vmcnt(0)
    ;STAMP Fdma
    ''')
    if OPT['tdma']:
        a.lds_wait(11, 32, W_DN, 4)
    for nt in range(10):
        a(f'ds_read_b64_tr_b16 v[{WDN+2*nt}:{WDN+2*nt+1}], v13 offset:{L_D+32*nt}')
    a.lds_wait(11, 32, W_S1, 4)
    a(';STAMP Fs1')
    for w in range(4):
        for mt in range(2):
            a(f'ds_read_b128 v[{R+8*w+4*mt}:{R+8*w+4*mt+3}], v14 offset:{L_G+5120*w+1024*mt}')
    a('s_waitcnt lgkmcnt(0)')
    for i in range(4):
        a(f'v_pk_add_f32 {pr(R+2*i)}, {pr(R+2*i)}, {pr(R+8+2*i)}')
        a(f'v_pk_add_f32 {pr(R+16+2*i)}, {pr(R+16+2*i)}, {pr(R+24+2*i)}')
    for i in range(4):
        a(f'v_pk_add_f32 {pr(R+2*i)}, {pr(R+2*i)}, {pr(R+16+2*i)}')
    for i in range(4):
        a(f'v_cvt_pk_bf16_f32 v{R+8+i}, v{R+2*i}, v{R+2*i+1}')
    for i in range(4):
        unpack(a, R + 2 * i, R + 8 + i)
    silu(a, range(R, R + 4), range(R + 8, R + 12))
    for i in range(2):
        a(f'v_cvt_pk_bf16_f32 v{R+8+i}, v{R+2*i}, v{R+2*i+1}')
    for i in range(2):
        unpack(a, R + 2 * i, R + 8 + i)
    for i in range(2):
        a(f'v_pk_mul_f32 {pr(R+2*i)}, {pr(R+2*i)}, {pr(R+4+2*i)}')
    for i in range(2):
        a(f'v_cvt_pk_bf16_f32 v{60+i}, v{R+2*i}, v{R+2*i+1}')
    a(';STAMP Fgu')
    for nt in range(10):
        a(f'v_mfma_f32_16x16x16_bf16 v[{O+4*nt}:{O+4*nt+3}], v[{WDN+2*nt}:{WDN+2*nt+1}], v[60:61], 0')
    a('s_mov_b32 exec_lo, 0x00ff00ff\ns_mov_b32 exec_hi, 0x00ff00ff')
    for nt in range(10):
        for d, sr in enumerate((40, 41, 43)):
            a(f'v_perm_b32 v{O+4*nt+d}, v{O+4*nt+d}, v{O+4*nt+3}, s{sr}')
        a(f'v_mov_b32 v{O+4*nt+3}, s{S_EP}')
        if nt == 8:
            a('s_add_u32 s66, s66, 4096')
        a(f'buffer_store_dwordx4 v[{O+4*nt}:{O+4*nt+3}], v10, {WS}, s66 offen offset:{512*(nt%8)} sc1')
    a(f'''
    s_mov_b64 exec, -1
    ;STAMP F2
    s_cmp_ge_u32 s64, 80
    s_cbranch_scc1 K_END
    s_cmp_ge_u32 s3, 2
    s_cbranch_scc1 K_END
    ''')
    PR = 40
    a(f'''
    s_lshl_b32 s42, s64, 1
    s_add_u32 s42, s42, s3
    s_lshl_b32 s50, s42, 7
    v_mov_b32 v6, {WS_F2}
    buffer_load_dword v16, v6, {WS}, s50 offen sc1
    v_lshrrev_b32 v4, 3, v1
    v_and_b32 v15, 7, v1
    v_mul_u32_u24 v5, {PF}, v4
    v_lshl_add_u32 v5, v15, 4, v5
    s_add_u32 s40, s50, {WS_P}
    v_add_u32 v5, s40, v5
    v_and_b32 v4, 3, v4
    s_lshl_b32 s42, s42, 2
    v_add_u32 v8, s42, v4
    v_mul_u32_u24 v9, 1280, v35
    v_lshl_add_u32 v9, v8, 1, v9
    buffer_load_ushort v12, v9, s[20:23], 0 offen
    v_lshlrev_b32 v13, 1, v35
    v_and_b32 v13, 0xfffffffc, v13
    v_mul_u32_u24 v8, {RS}, v8
    v_add3_u32 v8, v8, v13, s47
    v_cmp_eq_u32 s[72:73], 1, v4
    v_cmp_eq_u32 s[74:75], 2, v4
    v_cmp_eq_u32 s[76:77], 3, v4
    v_ashrrev_i32 v20, 31, v34
    v_not_b32 v20, v20
    v_or_b32 v20, 0x80000000, v20
    v_xor_b32 v20, v20, v34
    v_and_b32 v20, 0xffff0000, v20
    v_mul_f32 v20, {NLOG2E}, v20
    v_exp_f32 v20, v20
    v_and_b32 v23, 1, v35
    v_xor_b32 v23, 1, v23
    v_lshlrev_b32 v23, 4, v23
    v_add_f32 v20, 1.0, v20
    v_rcp_f32 v20, v20
    s_or_b64 s[74:75], s[74:75], s[76:77]
    '''.replace('v_add3_u32 v8, v8, v13, s47', f's_mov_b32 s47, {WS_Y2}\nv_add3_u32 v8, v8, v13, s47'))
    a.srd(24, 52, NB)
    for i in range(12):
        a(f's_mov_b32 s{28+i}, {i*8*PF}')
    rnd(a, 20, 20)
    e = a.lab('RG0')
    a('s_waitcnt vmcnt(0)\nv_lshlrev_b32 v21, 16, v12\nv_sub_f32 v22, v21, v38')
    rnd(a, 22, 22)
    a('v_mul_f32 v22, v39, v22')
    rnd(a, 22, 22)
    a.tagcheck(18, [16])
    a(f's_cbranch_vccz {e}')
    l = a.spin_begin('RG')
    a(f'buffer_load_dword v16, v6, {WS}, s50 offen sc1\ns_waitcnt vmcnt(0)')
    a.tagcheck(18, [16])
    a.spin_end_vcc(l, 2)
    a.label(e)
    a(';STAMP Rg\ns_mov_b32 s40, 0x04000c0c\ns_mov_b32 s41, 0x0706000c')
    if OPT['rpsl']:
        a(f's_sleep {OPT["rpsl"]}')
    l = a.spin_begin('RP')
    for i in range(12):
        a(f'buffer_load_dwordx4 v[{PR+4*i}:{PR+4*i+3}], v5, {WS}, s{28+i} offen sc1')
    a('s_waitcnt vmcnt(0)')
    a.tagcheck(18, [PR + 4 * i + 3 for i in range(12)])
    a.spin_end_exec(l)
    a(f';STAMP F3\ns_mov_b32 exec_hi, 0\nbuffer_load_dword v13, v8, {WS}, 0 offen sc1\ns_mov_b32 exec_hi, -1')
    for i in range(12):
        a(f'v_perm_b32 v{PR+4*i+3}, v{PR+4*i}, v{PR+4*i+1}, s40')
    for i in range(12):
        a(f'v_perm_b32 v{PR+4*i+3}, v{PR+4*i+3}, v{PR+4*i+2}, s41')
    for n in (24, 12):
        for i in range(0, n, 2):
            a(f'v_pk_add_f32 {pr(PR+i)}, {pr(PR+i)}, {pr(PR+n+i)}')
    for st in (4, 8):
        for i in (0, 2):
            a(f'v_pk_add_f32 {pr(PR+i)}, {pr(PR+i)}, {pr(PR+st+i)}')
    for i in range(4):
        a(f'v_add_f32_dpp v{PR+i}, v{PR+i}, v{PR+i} row_ror:8 {DPP}')
    for i in range(4):
        a(f'v_mov_b32 v{PR+4+i}, v{PR+i}')
    for i in range(4):
        a(f'v_permlane16_swap_b32 v{PR+i}, v{PR+4+i}')
    for i in (0, 2):
        a(f'v_pk_add_f32 {pr(PR+i)}, {pr(PR+i)}, {pr(PR+4+i)}')
    a(f'''
    v_cndmask_b32 v{PR}, v{PR}, v{PR+1}, s[72:73]
    v_cndmask_b32 v{PR+2}, v{PR+2}, v{PR+3}, s[76:77]
    v_cndmask_b32 v{PR}, v{PR}, v{PR+2}, s[74:75]
    v_mov_b32 v{PR+1}, v{PR}
    v_permlane32_swap_b32 v{PR}, v{PR+1}
    v_add_f32 v{PR}, v{PR}, v{PR+1}
    ''')
    rnd(a, PR, PR)
    a(f'v_mul_f32 v{PR}, v{PR}, v20')
    rnd(a, PR, PR)
    a(f'v_add_f32 v{PR}, v{PR}, v22')
    rnd(a, PR, PR)
    silu(a, [PR], [PR + 1])
    e = a.lab('RY0')
    a(';STAMP Rs')
    a(f'v_mul_f32 v22, v22, v{PR}\ns_mov_b32 exec_hi, 0\ns_waitcnt vmcnt(0)\nv_cmp_eq_u32 vcc, -1, v13\ns_cbranch_vccz {e}')
    l = a.spin_begin('RY')
    a(f'buffer_load_dword v13, v8, {WS}, 0 offen sc1\ns_waitcnt vmcnt(0)\nv_cmp_eq_u32 vcc, -1, v13')
    a.spin_end_vcc(l, 2)
    a.label(e)
    a(f'''
    ;STAMP Ry
    v_lshlrev_b32 v13, v23, v13
    v_and_b32 v13, 0xffff0000, v13
    v_fma_f32 v22, v22, v13, v21
    v_cvt_pk_bf16_f32 v22, v22, v22
    buffer_store_short v22, v9, s[24:27], 0 offen
    s_endpgm
    ''')


def kernel():
    a = K()
    a.label('K_FIRST')
    a(f'''
    s_cmp_ge_u32 s2, 256
    s_cbranch_scc1 K_END
    s_load_dwordx8 s[4:11], s[0:1], 0
    s_load_dwordx4 s[12:15], s[0:1], 32
    s_load_dwordx8 s[44:51], s[0:1], 56
    s_load_dwordx2 s[52:53], s[0:1], 88
    s_load_dwordx2 s[54:55], s[0:1], 104
    v_lshrrev_b32 v1, 6, v0
    s_and_b32 s{S_X}, s2, 7
    v_readfirstlane_b32 s3, v1
    s_lshr_b32 s{S_J}, s2, 3
    s_cmp_lg_u32 s3, 0
    s_cbranch_scc1 K_NOPF
    s_getpc_b64 s[20:21]
    K_PC:
    s_sub_u32 s20, s20, K_PC-K_FIRST
    s_subb_u32 s21, s21, 0
    s_mov_b32 s22, K_END-K_FIRST
    s_mov_b32 s23, 0x20000
    s_lshl_b32 s24, s{S_J}, 10
    v_lshlrev_b32 v1, 7, v0
    s_mov_b64 exec, 0xff
    buffer_load_dword v{PFV}, v1, s[20:23], s24 offen
    s_mov_b64 exec, -1
    K_NOPF:
    s_and_b32 s{S_G}, s{S_J}, 3
    s_and_b32 s{S_TT}, s{S_J}, 24
    s_add_u32 s{S_TT}, s{S_TT}, s{S_X}
    s_lshl_b32 s{S_TT}, s{S_TT}, 1
    s_bfe_u32 s18, s{S_J}, 0x10002
    s_add_u32 s{S_TT}, s{S_TT}, s18
    ''')
    if OPT['lfirst']:
        a('s_cmp_ge_u32 s3, 4\ns_cbranch_scc1 K_T')
        ln_head(a)
        a('s_branch K_L')
        a.label('K_T')
        tile_role(a)
        a.label('K_L')
    else:
        a('s_cmp_lt_u32 s3, 4\ns_cbranch_scc1 K_L')
        tile_role(a)
        a.label('K_L')
        ln_head(a)
    ln_role(a)
    a(f's_cmp_ge_u32 s{S_J}, 20\ns_cbranch_scc1 K_FFN')
    conv_role(a)
    a.label('K_FFN')
    ffn_role(a)
    a.label('K_END')
    a('s_endpgm')
    return a


def single_module(body):
    s = HDR + f'; @launch grid=(256,1,1) block=(576,1,1) lds={LDS_BYTES}\n'
    s += f'.amdgcn_target "amdgcn-amd-amdhsa--gfx950"\n.text\n.p2align 12\n.globl {KNAME}\n.p2align 8\n.type {KNAME},@function\n{KNAME}:\n{body}'
    nv, ns, na = max_regs(body)
    s += '.section .rodata,"a"\n' + KD.format(name=KNAME, vgpr=nv, sgpr=ns, acc=(nv + 3) // 4 * 4)
    return s


if __name__ == '__main__':
    out = sys.argv[1]
    rep = []
    for o in sys.argv[2:]:
        if '=' in o:
            k_, v_ = o.split('=')
            OPT[k_] = int(v_) if v_.lstrip('-').isdigit() else v_.replace('+', ' ')
    k = kernel()
    if 'diag' in sys.argv[2:]:
        import diag
        diag.CYC = 'cyc' in sys.argv
        sel = [o for o in sys.argv[2:] if o.startswith('@')]
        diag.instrument(k, 0, {n: i for g in sel for i, n in enumerate(g[1:].split(','))})
    k.lines = [l for l in k.lines if not l.startswith(';STAMP')]
    body = k.text(rep)
    assert not re.search(r'op_sel:\[[01,]*1', body), 'crossed low-half op_sel is unsafe beside MFMA'
    open(out, 'w').write(single_module(body))
    print('wrote', out, 'regs', max_regs(body), 'nops', len(rep), sum(n for n, _ in rep), 'lines', body.count('\n'))
```

```python
import sys
from asmlib import *
import diag, enc2, gen26 as gen
def mk(name, block, lds, vg):
    t = Asm(); t('s_cmp_ge_u32 s2, 256\ns_cbranch_scc1 TK_END'); t(f'v_mov_b32 v{vg-1}, 0'); t.label('TK_END'); t('s_endpgm')
    diag.instrument(t, 0, {})
    k = gen.kernel(); k.lines = [l for l in k.lines if not l.startswith(';STAMP')]
    e = enc2.encoder(None, 0, 256, [], base_ticks=6000)
    e.lines = [l for l in e.lines]
    txt = e.text()
    import re
    nw = block // 64
    kk = [('tiny_kernel', t.text()), ('main_kernel', k.text()), ('enc_kernel', re.sub(r'offset:(\d+)\n', lambda m: f'offset:{min(int(m.group(1)), 32*(nw-1))}\n', txt))]
    ls = [('tiny_kernel', 256, block, lds), ('main_kernel', 256, 576, gen.LDS_BYTES), ('enc_kernel', 1, 64, 0)]
    open(f'{name}.s', 'w').write(module(gen.HDR, kk, ls))
mk('f_a', 64, 0, 16); mk('f_b', 576, 0, 16); mk('f_c', 576, 73472, 16); mk('f_d', 576, 73472, 149); mk('f_e', 64, 73472, 16); mk('f_f', 576, 0, 149)
```
